```python
import torch

def _softmax(x, axis=-1):
    return torch.softmax(x, dim=axis)
def _gelu(x):
    return torch.nn.functional.gelu(x, approximate="tanh")
def _silu(x):
    return torch.nn.functional.silu(x)
def _sigmoid(x):
    return torch.sigmoid(x)
def _layernorm(x, axis=-1, eps=1e-5):
    m = x.mean(dim=axis, keepdim=True)
    v = x.var(dim=axis, keepdim=True, unbiased=False)
    return (x - m) / torch.sqrt(v + eps)
def _scatter_add(tgt, idx, src, axis=0):
    return tgt.clone().index_add_(axis, idx, src)
def _segment_sum(src, seg, n):
    out = torch.zeros((n,) + src.shape[1:], dtype=src.dtype)
    return out.index_add_(0, seg, src)
def _pad(x, pw):
    flat = tuple(v for pair in reversed(pw) for v in pair)
    return torch.nn.functional.pad(x, flat)

kernel_name = 'recurrent_scan__grouped_kv_mqa__mixer_channel_mlp__prompt'

def setup_inputs():

    _w = (lambda a: (lambda t: t.to(torch.bfloat16) if t.is_floating_point() else t)(torch.as_tensor(a)))
    def _A_setup():
        B, S, D, H = 1, 2048, 512, 32
        Dh = D // H
        return {
            "x": _w((lambda *s: torch.randn(*s, dtype=torch.bfloat16) * 0.05)(B, S, D)),
            "wq": _w((lambda *s: torch.randn(*s, dtype=torch.bfloat16) * 0.05)(D, H * Dh)),
            "wk": _w((lambda *s: torch.randn(*s, dtype=torch.bfloat16) * 0.05)(D, Dh)),
            "wv": _w((lambda *s: torch.randn(*s, dtype=torch.bfloat16) * 0.05)(D, Dh)),
            "wo": _w((lambda *s: torch.randn(*s, dtype=torch.bfloat16) * 0.05)(H * Dh, D)),
        }
    _A_in = _A_setup()

    def _B_setup():
        B, S, D, F = 1, 2048, 512, 1376
        return {
            "x": _w((lambda *s: torch.randn(*s, dtype=torch.bfloat16) * 0.05)(B, S, D)),
            "w1": _w((lambda *s: torch.randn(*s, dtype=torch.bfloat16) * 3.2)(D, F) * (D ** -0.5)),
            "b1": _w((lambda *s: torch.randn(*s, dtype=torch.bfloat16) * 1.6)(F)),
            "w2": _w((lambda *s: torch.randn(*s, dtype=torch.bfloat16) * 0.05)(F, D) * (F ** -0.5)),
            "b2": _w((lambda *s: torch.randn(*s, dtype=torch.bfloat16) * 0.05)(D)),
        }
    _B_in = _B_setup()

    return {
        "A_x": _A_in["x"],
        "A_wq": _A_in["wq"],
        "A_wk": _A_in["wk"],
        "A_wv": _A_in["wv"],
        "A_wo": _A_in["wo"],
        "B_x": _B_in["x"],
        "B_w1": _B_in["w1"],
        "B_b1": _B_in["b1"],
        "B_w2": _B_in["w2"],
        "B_b2": _B_in["b2"],
    }

def reference(A_x, A_wq, A_wk, A_wv, A_wo, B_x, B_w1, B_b1, B_w2, B_b2):
    def _A_ref(x, wq, wk, wv, wo):
        B, S, D = x.shape
        H = 32
        Dh = D // H
        q = (lambda x, *d: x.permute(*d))((x @ wq).reshape(B, S, H, Dh), 0, 2, 1, 3)
        k = x @ wk
        v = x @ wv
        scores = torch.einsum("bhqd,bkd->bhqk", q, k) * (Dh ** -0.5)
        p = _softmax(scores, axis=-1)
        o = torch.einsum("bhqk,bkd->bhqd", p, v)
        return (lambda x, *d: x.permute(*d))(o, 0, 2, 1, 3).reshape(B, S, H * Dh) @ wo

    def _B_ref(x, w1, b1, w2, b2):
        y = _layernorm(x, axis=-1)
        h = _gelu(torch.einsum("bsd,df->bsf", y, w1) + b1)
        return torch.einsum("bsf,fd->bsd", h, w2) + b2

    x = A_x
    xn = _layernorm(x, axis=-1)
    s = _A_ref(xn, A_wq, A_wk, A_wv, A_wo)
    g = _silu(_B_ref(xn, B_w1, B_b1, B_w2, B_b2))
    return x + s * g
```

```python
import re

TRANS = ("v_exp_f32", "v_log_f32", "v_rcp_f32", "v_rsq_f32", "v_sqrt_f32", "v_sin_f32", "v_cos_f32")

_REG = re.compile(r"^(-|abs\()?([vsa])(\d+)\)?$")
_RNG = re.compile(r"^(-)?([vsa])\[(\d+):(\d+)\]$")


def regs_of(op):
    op = op.strip()
    m = _RNG.match(op)
    if m:
        return [(m.group(2), i) for i in range(int(m.group(3)), int(m.group(4)) + 1)]
    m = _REG.match(op)
    if m:
        return [(m.group(2), int(m.group(3)))]
    if op.startswith("|") and op.endswith("|"):
        return regs_of(op[1:-1])
    if op == "vcc":
        return [("s", "vcc_lo"), ("s", "vcc_hi")]
    if op in ("vcc_lo", "vcc_hi", "m0"):
        return [("s", op)]
    if op == "exec":
        return [("s", "exec")]
    return []


def split_ops(rest):
    out, depth, cur = [], 0, ""
    for ch in rest:
        if ch in "[(":
            depth += 1
        if ch in "])":
            depth -= 1
        if ch == "," and depth == 0:
            out.append(cur.strip())
            cur = ""
        else:
            cur += ch
    if cur.strip():
        out.append(cur.strip())
    if out:
        last = out[-1].split()
        out[-1] = last[0]
        mods = last[1:]
    else:
        mods = []
    return out, mods


class Ins:
    def __init__(self, text):
        self.text = text
        parts = text.split(None, 1)
        self.op = parts[0]
        ops, mods = split_ops(parts[1]) if len(parts) > 1 else ([], [])
        self.ops, self.mods = ops, mods
        op = self.op
        self.reads, self.writes = [], []
        self.kind = "other"
        self.srcc = []
        self.passes = 0
        R = regs_of
        if op.startswith("v_mfma") or op.startswith("v_smfmac"):
            self.kind = "mfma"
            self.passes = 8 if "32x32" in op else 4
            self.writes = R(ops[0])
            self.ab = R(ops[1]) + R(ops[2])
            if op.startswith("v_smfmac"):
                self.ab += R(ops[3])
                self.srcc = R(ops[0])
            else:
                self.srcc = R(ops[3])
            self.reads = self.ab + self.srcc
        elif op.startswith("v_"):
            self.kind = "valu"
            if op.startswith("v_permlane") and "swap" in op:
                self.reads = R(ops[0]) + R(ops[1])
                self.writes = list(self.reads)
            elif op == "v_nop":
                pass
            else:
                self.writes = R(ops[0])
                srcs = ops[1:]
                if "_co_" in op:
                    self.writes += R(ops[1])
                    srcs = ops[2:]
                for o in srcs:
                    self.reads += R(o)
                if op.startswith(("v_fmac", "v_dot2c", "v_writelane")) or "UNUSED_PRESERVE" in text:
                    self.reads += R(ops[0])
                if op.startswith("v_cmpx"):
                    self.writes += R("exec")
        elif op.startswith("ds_"):
            self.kind = "lds"
            if op.startswith(("ds_read", "ds_bpermute", "ds_permute", "ds_swizzle")) or "_rtn" in op:
                self.writes = R(ops[0])
                for o in ops[1:]:
                    self.reads += R(o)
            else:
                for o in ops:
                    self.reads += R(o)
        elif op.startswith(("buffer_", "global_")):
            self.kind = "vmem"
            self.is_dma = "lds" in mods
            self.is_store = "store" in op or ("atomic" in op and "sc0" not in mods)
            if op in ("buffer_wbl2", "buffer_inv"):
                pass
            elif self.is_dma:
                for o in ops:
                    self.reads += R(o)
                self.reads += R("m0")
            elif self.is_store:
                for o in ops:
                    self.reads += R(o)
                self.data = R(ops[0])
            else:
                self.writes = R(ops[0])
                for o in ops[1:]:
                    self.reads += R(o)
                if "atomic" in op:
                    self.reads += R(ops[0])
        elif op.startswith(("s_load", "s_memtime", "s_memrealtime", "s_buffer_load")):
            self.kind = "smem"
            self.writes = R(ops[0])
            for o in ops[1:]:
                self.reads += R(o)
        elif op.startswith("s_"):
            self.kind = "salu"
            if op.startswith(("s_cmp", "s_cbranch", "s_branch", "s_waitcnt", "s_nop", "s_barrier", "s_endpgm",
                              "s_setprio", "s_sleep", "s_bitcmp")):
                for o in ops:
                    self.reads += R(o)
            else:
                self.writes = R(ops[0])
                for o in ops[1:]:
                    self.reads += R(o)
                if "saveexec" in op:
                    self.writes += R("exec")
        self.is_trans = op.replace("_e32", "").replace("_e64", "") in TRANS
        self.is_dpp = "_dpp" in op
        self.is_dot = op.startswith("v_dot")
        self.is_lane = op.startswith(("v_readlane", "v_readfirstlane", "v_writelane"))
        self.is_perml = op.startswith("v_permlane")
        self.states = 1
        if op == "s_nop":
            self.states = int(ops[0], 0) + 1


def need_states(p, c):
    n = 0
    pw, pr = set(p.writes), set(p.reads)
    cr, cw = set(c.reads), set(c.writes)
    vw = {r for r in pw if r[0] in "va"}
    sw = {r for r in pw if r[0] == "s"}
    if p.kind == "mfma":
        big = p.passes == 8
        if c.kind == "mfma":
            if vw & set(c.ab):
                n = max(n, 12 if big else 8)
            if vw & set(c.srcc):
                same = p.writes == c.srcc and p.passes == c.passes
                n = max(n, 0 if same else (10 if big else 6))
            elif vw & cw:
                n = max(n, 0 if (p.writes == c.writes and p.passes == c.passes) else (10 if big else 6))
        elif c.kind in ("valu", "lds", "vmem"):
            if vw & (cr | cw):
                n = max(n, 12 if big else 8)
            if c.kind == "valu" and set(p.srcc) & cw:
                n = max(n, 7 if big else 3)
    if p.kind == "valu":
        if c.kind == "mfma":
            if vw & cr:
                n = max(n, 3 if p.is_dot else 2)
            if ("s", "exec") in sw:
                n = max(n, 4)
        if c.kind == "valu":
            if p.is_trans and not c.is_trans and vw & cr:
                n = max(n, 1)
            if p.is_dot and vw & (cr | cw):
                if not (c.op == p.op and len(c.ops) == 4 and vw <= set(regs_of(c.ops[3])) and
                        not vw & set(regs_of(c.ops[1]) + regs_of(c.ops[2]))):
                    n = max(n, 3)
            if c.is_dpp and vw & cr:
                n = max(n, 2)
            if c.is_perml and vw & cr:
                n = max(n, 2)
            if c.is_lane and vw & cr:
                n = max(n, 1)
            if sw & cr:
                n = max(n, 4 if c.is_lane else 2)
            if ("s", "exec") in sw and (c.is_dpp or c.is_lane or c.is_perml):
                n = max(n, 5)
            if ("sdwa" in p.op or "op_sel:" in p.text) and vw & (cr | cw):
                n = max(n, 1)
        if c.kind in ("vmem", "lds"):
            if p.is_dot and vw & cr:
                n = max(n, 3)
            if p.is_trans and vw & cr:
                n = max(n, 1)
        if c.kind == "vmem" and sw & cr:
            n = max(n, 5)
        if c.kind == "salu" and sw & cr:
            n = max(n, 2)
    if p.kind == "salu" and ("s", "m0") in sw and c.kind == "vmem" and getattr(c, "is_dma", False):
        n = max(n, 1)
    if p.kind == "vmem" and getattr(p, "is_store", False) and len(getattr(p, "data", [])) >= 3:
        if set(p.data) & cw:
            n = max(n, 2)
    if p.kind == "lds" and p.op.startswith("ds_write") and ("b128" in p.op or "b96" in p.op):
        if c.kind == "valu" and pr & cw:
            n = max(n, 1)
    return n


class Asm:
    def __init__(self):
        self.lines = []
        self.reset_state()
        self.nops = 0

    def reset_state(self):
        self.hist = []
        self.vm = []
        self.lg = []
        self.smem_pending = set()

    def raw(self, text):
        self.lines.append(text)

    def comment(self, text):
        self.lines.append("    ; " + text)

    def _emit(self, ins):
        self.lines.append("    " + ins.text)
        self.hist.append(ins)
        if len(self.hist) > 24:
            self.hist.pop(0)

    def _wait(self, vm=None, lg=None):
        parts = []
        if vm is not None:
            vm = min(vm, 63)
            parts.append(f"vmcnt({vm})")
            if len(self.vm) > vm:
                self.vm = self.vm[len(self.vm) - vm:] if vm else []
        if lg is not None:
            lg = min(lg, 15)
            parts.append(f"lgkmcnt({lg})")
            if len(self.lg) > lg:
                self.lg = self.lg[len(self.lg) - lg:] if lg else []
            if lg == 0:
                self.smem_pending = set()
        self._emit(Ins("s_waitcnt " + " ".join(parts)))

    def wait_tok(self, *toks):
        vm = lg = None
        for t in toks:
            if t is None:
                continue
            for q, name in ((self.vm, "vm"), (self.lg, "lg")):
                for i, e in enumerate(q):
                    if e is t:
                        n = len(q) - 1 - i
                        if name == "vm":
                            vm = n if vm is None else min(vm, n)
                        else:
                            lg = n if lg is None else min(lg, n)
        if lg is not None and self.smem_pending:
            lg = 0
        if vm is not None or lg is not None:
            self._wait(vm, lg)

    def wait_all(self, vm=True, lg=True):
        self._wait(0 if vm else None, 0 if lg else None)

    def __call__(self, text):
        tok = None
        for line in text.strip().split("\n"):
            line = line.strip()
            if line:
                tok = self._one(line)
        return tok

    def _one(self, text):
        ins = Ins(text)
        if ins.op == "s_waitcnt":
            raise ValueError("use wait_tok / wait_all")
        touched = set(ins.reads) | set(ins.writes)
        toks = [e for e in self.vm + self.lg if set(e.writes) & touched]
        if self.smem_pending & touched and ins.kind != "smem":
            self._wait(None, 0)
        if toks:
            self.wait_tok(*toks)
        dist, pad = 0, 0
        for p in reversed(self.hist):
            n = need_states(p, ins)
            if n > dist:
                pad = max(pad, n - dist)
            dist += p.states
        while pad > 0:
            k = min(pad, 16)
            self._emit(Ins(f"s_nop {k - 1}"))
            self.nops += k
            pad -= k
        self._emit(ins)
        if ins.kind == "vmem":
            self.vm.append(ins)
        elif ins.kind == "lds":
            self.lg.append(ins)
        elif ins.kind == "smem":
            self.smem_pending |= set(ins.writes)
        return ins

    def settle(self):
        dist, pad = 0, 0
        for p in reversed(self.hist):
            n = 0
            if p.kind == "mfma":
                n = 12 if p.passes == 8 else 8
            elif p.kind == "valu":
                n = 5 if any(r[0] == "s" for r in p.writes) else (3 if p.is_dot else 2)
            elif p.kind == "vmem" and getattr(p, "is_store", False):
                n = 2
            elif p.kind == "salu" and ("s", "m0") in p.writes:
                n = 1
            if n > dist:
                pad = max(pad, n - dist)
            dist += p.states
        if pad:
            self._emit(Ins(f"s_nop {pad - 1}"))

    def label(self, name):
        self.lines.append(name + ":")

    def snapshot(self):
        return (list(self.hist), list(self.vm), list(self.lg), set(self.smem_pending))

    def restore(self, snap):
        self.hist, self.vm, self.lg, self.smem_pending = list(snap[0]), list(snap[1]), list(snap[2]), set(snap[3])

    def text(self):
        return "\n".join(self.lines) + "\n"


def vr(base, n=1):
    return f"v{base}" if n == 1 else f"v[{base}:{base + n - 1}]"


def sr(base, n=1):
    return f"s{base}" if n == 1 else f"s[{base}:{base + n - 1}]"
```

```python
import struct
import sys
from asmgen import Asm, vr, sr

NAME = "recurrent_scan__grouped_kv_mqa__mixer_channel_mlp__prompt"

WS_KF = 0x000000
WS_VF = 0x010000
WS_QF = 0x100000
WS_HF = 0x400000
HF_STRIDE = 0x2C000
WS_W2T = 0xA00000
WS_WOT = 0xC00000
WS_OF = 0xD00000

P_X, P_WQ, P_WK, P_WV, P_WO, P_BX, P_W1, P_B1, P_W2, P_B2, P_OUT, P_DBG, P_WS = range(16, 42, 2)
S_WAVE, S_TG, S_J = 3, 4, 5

LOG2E = 1.4426950408889634


def f32(x):
    return "0x%08x" % struct.unpack("<I", struct.pack("<f", x))[0]


def srd(a, dst, ptr, size, off=None):
    if off is None:
        a(f"s_mov_b32 s{dst}, s{ptr}")
        a(f"s_mov_b32 s{dst + 1}, s{ptr + 1}")
    else:
        a(f"s_add_u32 s{dst}, s{ptr}, {off}")
        a(f"s_addc_u32 s{dst + 1}, s{ptr + 1}, 0")
    a(f"s_mov_b32 s{dst + 2}, {size}")
    a(f"s_mov_b32 s{dst + 3}, 0x00020000")


def csel(a, dst, if_true, if_false):
    a(f"s_mov_b32 s{dst}, {if_false}")
    a(f"s_cselect_b32 s{dst}, {if_true}, s{dst}")


def prologue(a, name):
    a.raw(f".globl {name}\n.p2align 8\n.type {name},@function\n{name}:")
    a.reset_state()
    a("s_cmp_ge_u32 s2, 256")
    a(f"s_cbranch_scc1 {name}_end")
    a("s_load_dwordx16 s[16:31], s[0:1], 0")
    a("s_load_dwordx8 s[32:39], s[0:1], 64")
    a("s_load_dwordx2 s[40:41], s[0:1], 96")
    a("v_lshrrev_b32 v1, 6, v0")
    a("v_and_b32 v0, 63, v0")
    a(f"v_readfirstlane_b32 s{S_WAVE}, v1")
    a(f"s_and_b32 s{S_TG}, s2, 7")
    a(f"s_lshl_b32 s{S_TG}, s{S_TG}, 2")
    a("s_bfe_u32 s6, s2, 0x20003")
    a(f"s_add_u32 s{S_TG}, s{S_TG}, s6")
    a(f"s_lshr_b32 s{S_J}, s2, 5")


def epilogue(a, name):
    a.wait_all()
    a.label(f"{name}_end")
    a("s_endpgm")


def descriptor(name):
    return f""".section .rodata,"a"
.p2align 6
.amdhsa_kernel {name}
  .amdhsa_next_free_vgpr 256
  .amdhsa_next_free_sgpr 96
  .amdhsa_accum_offset 256
  .amdhsa_group_segment_fixed_size 0
  .amdhsa_kernarg_size 104
  .amdhsa_user_sgpr_count 2
  .amdhsa_user_sgpr_kernarg_segment_ptr 1
  .amdhsa_system_sgpr_workgroup_id_x 1
  .amdhsa_float_denorm_mode_32 3
.end_amdhsa_kernel
.text
"""


L_XC, L_RING, L_WKV, L_STATS = 0, 65536, 131072, 155648


def gen_front(a, name):
    prologue(a, name)
    SX, SW, SKV, SWS, ST, SB1, SH = 44, 48, 52, 56, 60, 64, 68
    X = 16
    ACC = 64
    a("v_lshrrev_b32 v2, 3, v0")
    a("v_and_b32 v3, 7, v0")
    a("v_lshlrev_b32 v4, 10, v2")
    a("v_lshl_add_u32 v4, v3, 4, v4")
    a(f"s_lshl_b32 s6, s{S_TG}, 16")
    a(f"s_lshl_b32 s7, s{S_WAVE}, 13")
    a("s_add_u32 s6, s6, s7")
    srd(a, SX, P_X, 2097152)
    for i in range(8):
        a(f"buffer_load_dwordx4 {vr(X + 4 * i, 4)}, v4, {sr(SX, 4)}, s6 offen offset:{128 * i}")
    a(f"s_bitcmp1_b32 s{S_J}, 0")
    a(f"s_cselect_b32 s{SKV}, s{P_WV}, s{P_WK}")
    a(f"s_cselect_b32 s{SKV + 1}, s{P_WV + 1}, s{P_WK + 1}")
    a(f"s_mov_b32 s{SKV + 2}, 16384")
    a(f"s_mov_b32 s{SKV + 3}, 0x00020000")
    a("v_lshlrev_b32 v5, 4, v0")
    a(f"s_lshl_b32 s7, s{S_WAVE}, 11")
    a(f"s_add_u32 s8, s7, {L_WKV}")
    a("s_mov_b32 m0, s8")
    a(f"buffer_load_dwordx4 v5, {sr(SKV, 4)}, s7 offen lds")
    t_kv = a(f"buffer_load_dwordx4 v5, {sr(SKV, 4)}, s7 offen offset:1024 lds")
    a(f"s_mul_i32 s9, s{S_J}, 6")
    a(f"s_add_u32 s9, s9, s{S_WAVE}")
    a("s_sub_u32 s9, s9, 2")
    a("s_max_i32 s9, s9, 0")
    a(f"s_lshl_b32 s10, s{S_J}, 1")
    a(f"s_add_u32 s10, s10, s{S_WAVE}")
    a(f"s_cmp_lt_u32 s{S_WAVE}, 2")
    a(f"s_cselect_b32 s{SW}, s{P_WQ}, s{P_W1}")
    a(f"s_cselect_b32 s{SW + 1}, s{P_WQ + 1}, s{P_W1 + 1}")
    csel(a, SW + 2, 524288, 1409024)
    a(f"s_mov_b32 s{SW + 3}, 0x00020000")
    csel(a, 11, 1024, 2752)
    a("s_cselect_b32 s12, s10, s9")
    a("s_lshl_b32 s12, s12, 6")
    a("s_lshl_b32 s13, s11, 4")
    a("v_lshrrev_b32 v6, 2, v0")
    a("v_and_b32 v7, 3, v0")
    a("v_mul_u32_u24 v8, s11, v6")
    a("v_lshl_add_u32 v8, v7, 4, v8")
    a(f"s_lshl_b32 s14, s{S_WAVE}, 13")
    a(f"s_add_u32 s14, s14, {L_RING}")
    dma = {}

    def issue_w(ks):
        a(f"s_add_u32 m0, s14, {(ks % 8) * 1024}")
        dma[ks] = a(f"buffer_load_dwordx4 v8, {sr(SW, 4)}, s12 offen lds")
        a("s_add_u32 s12, s12, s13")

    for ks in range(8):
        issue_w(ks)
    a("v_lshlrev_b32 v9, 10, v6")
    a("v_lshl_add_u32 v9, v7, 4, v9")
    a("s_mov_b32 s72, 0x3f803f80")
    a("s_mov_b32 s73, 0x00003f80")
    a("s_mov_b32 s74, 0x3f800000")
    a(f"v_dot2_f32_bf16 v48, v{X}, s72, 0")
    for r in range(1, 32):
        a(f"v_dot2_f32_bf16 v48, v{X + r}, s72, v48")
    a(f"s_and_b32 s7, s{S_WAVE}, 3")
    a("s_lshl_b32 s7, s7, 3")
    a("v_add_u32 v10, s7, v2")
    a("v_xor_b32 v11, v10, v3")
    a("v_lshlrev_b32 v11, 4, v11")
    a("v_lshl_add_u32 v11, v3, 9, v11")
    a(f"s_lshr_b32 s7, s{S_WAVE}, 2")
    a("s_lshl_b32 s7, s7, 15")
    a("v_add_u32 v11, s7, v11")

    def row_reduce(r):
        a(f"v_add_f32_dpp v{r}, v{r}, v{r} quad_perm:[1,0,3,2] row_mask:0xf bank_mask:0xf")
        a(f"v_add_f32_dpp v{r}, v{r}, v{r} quad_perm:[2,3,0,1] row_mask:0xf bank_mask:0xf")
        a(f"v_add_f32_dpp v{r}, v{r}, v{r} row_half_mirror row_mask:0xf bank_mask:0xf")

    row_reduce(48)
    a(f"v_mul_f32 v48, {f32(-1.0 / 512)}, v48")
    for i in range(8):
        for r in range(4):
            a(f"v_dot2_f32_bf16 v{52 + 2 * r}, v{X + 4 * i + r}, s73, v48")
            a(f"v_dot2_f32_bf16 v{53 + 2 * r}, v{X + 4 * i + r}, s74, v48")
        if i > 0:
            for r in range(4):
                src = "0" if (i == 1 and r == 0) else "v49"
                a(f"v_dot2_f32_bf16 v49, v{X + 4 * (i - 1) + r}, v{X + 4 * (i - 1) + r}, {src}")
        for r in range(4):
            a(f"v_cvt_pk_bf16_f32 v{X + 4 * i + r}, v{52 + 2 * r}, v{53 + 2 * r}")
        a(f"ds_write_b128 v11, {vr(X + 4 * i, 4)} offset:{4096 * i}")
    for r in range(4):
        a(f"v_dot2_f32_bf16 v49, v{X + 28 + r}, v{X + 28 + r}, v49")
    row_reduce(49)
    a(f"v_mul_f32 v49, {f32(1.0 / 512)}, v49")
    a(f"v_add_f32 v50, {f32(1e-5)}, v49")
    a("v_rsq_f32 v50, v50")
    a("v_mul_f32 v51, v49, v50")
    a(f"v_fmaak_f32 v51, v51, v50, {f32(1e-5)}")
    a("v_rsq_f32 v51, v51")
    a("v_mul_f32 v51, v51, v50")
    a(f"s_lshl_b32 s7, s{S_WAVE}, 5")
    a(f"s_add_u32 s7, s7, {L_STATS}")
    a("v_lshl_add_u32 v12, v2, 2, s7")
    a("ds_write2_b32 v12, v50, v51 offset0:0 offset1:64")
    a("v_and_b32 v13, 31, v0")
    a("v_lshrrev_b32 v14, 5, v0")
    for c in range(4):
        a(f"v_or_b32 v15, {2 * c}, v14")
        a("v_xor_b32 v15, v15, v13")
        a("v_lshlrev_b32 v15, 4, v15")
        a("v_lshl_add_u32 v15, v14, 9, v15")
        a(f"v_add_u32 v{60 + c}, {1024 * c}, v15")
    a("v_bfe_u32 v52, v0, 2, 2")
    a("v_bfe_u32 v53, v0, 4, 1")
    a("v_lshlrev_b32 v54, 3, v7")
    a("v_lshl_add_u32 v54, v52, 6, v54")
    a("v_lshl_add_u32 v54, v53, 5, v54")
    a("v_add_u32 v54, s14, v54")
    a("v_lshl_add_u32 v55, v14, 8, v54")
    a("v_lshl_add_u32 v54, v14, 9, v54")
    srd(a, SWS, P_WS, 0x1000000)
    a.wait_tok(t_kv)
    a.wait_all(vm=False)
    a("s_barrier")

    a(f"s_cmp_lg_u32 s{S_WAVE}, 0")
    a.settle()
    a(f"s_cbranch_scc1 {name}_nokv")
    snap = a.snapshot()
    a("s_setprio 3")
    a("v_and_b32 v128, 15, v0")
    a("v_lshrrev_b32 v129, 4, v0")
    a(f"s_bfe_u32 s7, s{S_J}, 0x10001")
    a("s_lshl_b32 s8, s7, 4")
    a("v_add_u32 v130, s8, v128")
    a(f"s_lshr_b32 s8, s{S_J}, 2")
    a("s_lshl_b32 s15, s8, 15")
    for par in range(2):
        a(f"v_or_b32 v131, {4 * par}, v129")
        a("v_xor_b32 v131, v131, v130")
        a("v_lshlrev_b32 v131, 4, v131")
        a("v_lshl_add_u32 v131, v129, 9, v131")
        a(f"v_add_u32 v{132 + par}, s15, v131")
    a("v_lshlrev_b32 v134, 3, v128")
    a("v_lshl_add_u32 v134, v129, 8, v134")
    a(f"v_add_u32 v134, {L_WKV}, v134")
    a(f"s_lshl_b32 s15, s{S_TG}, 1")
    a("s_add_u32 s15, s15, s8")
    a("s_lshl_b32 s15, s15, 10")
    KB = 144
    a(f"s_bitcmp1_b32 s{S_J}, 0")
    a.settle()
    a(f"s_cbranch_scc1 {name}_doV")
    snap2 = a.snapshot()
    for isv in (0, 1):
        if isv:
            a.label(f"{name}_doV")
            a.restore(snap2)
        if isv:
            a(f"s_lshr_b32 s8, s{S_J}, 1")
            a("s_lshl_b32 s8, s8, 6")
            a(f"s_add_u32 s8, s8, {L_STATS}")
            a("v_lshl_add_u32 v135, v129, 4, s8")
            a("ds_read_b128 v[140:143], v135")
        else:
            a(f"s_lshr_b32 s8, s{S_J}, 1")
            a("s_lshl_b32 s8, s8, 6")
            a(f"s_add_u32 s8, s8, {L_STATS}")
            a("v_lshl_add_u32 v135, v128, 2, s8")
            a("ds_read_b32 v140, v135")

        def rd(s):
            b = KB + 8 * (s % 8)
            a(f"ds_read_b128 {vr(b, 4)}, v{132 + (s & 1)} offset:{2048 * s}")
            a(f"ds_read_b64_tr_b16 {vr(b + 4, 2)}, v134 offset:{1024 * s}")
            a(f"ds_read_b64_tr_b16 {vr(b + 6, 2)}, v134 offset:{1024 * s + 128}")

        for s in range(4):
            rd(s)
        for s in range(16):
            if s + 4 < 16:
                rd(s + 4)
            b = KB + 8 * (s % 8)
            opa, opb = (vr(b, 4), vr(b + 4, 4)) if isv else (vr(b + 4, 4), vr(b, 4))
            a(f"v_mfma_f32_16x16x32_bf16 v[136:139], {opa}, {opb}, {'0' if s == 0 else 'v[136:139]'}")
        if isv:
            a("v_lshrrev_b32 v131, 1, v129")
            a("v_lshl_add_u32 v131, v131, 4, v128")
            a("v_lshlrev_b32 v131, 4, v131")
            a("v_and_b32 v135, 1, v129")
            a("v_lshl_add_u32 v131, v135, 3, v131")
            a("s_lshl_b32 s8, s7, 9")
            a("s_add_u32 s15, s15, s8")
            a(f"s_add_u32 s15, s15, {WS_VF}")
            for r in range(4):
                a(f"v_mul_f32 v{136 + r}, v{136 + r}, v{140 + r}")
        else:
            a("v_and_b32 v135, 1, v129")
            a("v_lshl_add_u32 v131, v135, 5, v130")
            a("v_lshlrev_b32 v131, 4, v131")
            a("v_lshrrev_b32 v135, 1, v129")
            a("v_lshl_add_u32 v131, v135, 3, v131")
            a(f"s_add_u32 s15, s15, {WS_KF}")
            for r in range(4):
                a(f"v_mul_f32 v{136 + r}, v{136 + r}, v140")
        a("v_cvt_pk_bf16_f32 v136, v136, v137")
        a("v_cvt_pk_bf16_f32 v137, v138, v139")
        a(f"buffer_store_dwordx2 v[136:137], v131, {sr(SWS, 4)}, s15 offen")
        a("s_setprio 0")
        a.wait_all()
        a.settle()
        if not isv:
            a(f"s_branch {name}_nokv")
    a.label(f"{name}_nokv")
    a.restore(snap)

    a(f"s_lshl_b32 s76, s2, 3")
    a(f"s_add_u32 s76, s76, s{S_WAVE}")
    a("s_sub_u32 s77, s76, 1376")
    a("s_cmp_lt_u32 s76, 1376")
    a(f"s_cselect_b32 s{ST}, s{P_W2}, s{P_WO}")
    a(f"s_cselect_b32 s{ST + 1}, s{P_W2 + 1}, s{P_WO + 1}")
    csel(a, ST + 2, 1409024, 524288)
    a(f"s_mov_b32 s{ST + 3}, 0x00020000")
    a("s_cselect_b32 s77, s76, s77")
    csel(a, 78, HF_STRIDE, 65536)
    csel(a, 79, WS_W2T, WS_WOT)
    a("s_lshr_b32 s80, s77, 4")
    a("s_and_b32 s81, s77, 15")
    a("s_lshl_b32 s82, s80, 14")
    a("s_lshl_b32 s83, s81, 6")
    a("s_add_u32 s82, s82, s83")
    a("s_lshr_b32 s83, s81, 1")
    a("s_mul_i32 s83, s83, s78")
    a("s_add_u32 s79, s79, s83")
    a("s_lshl_b32 s83, s80, 11")
    a("s_add_u32 s79, s79, s83")
    a("s_and_b32 s83, s81, 1")
    a("s_lshl_b32 s83, s83, 10")
    a("s_add_u32 s79, s79, s83")
    a("s_cmp_lt_u32 s76, 1888")
    a("s_cselect_b32 s79, s79, 0x1000000")
    srd(a, SB1, P_B1, 2752)
    a("s_lshl_b32 s7, s9, 6")
    a("v_lshlrev_b32 v56, 3, v14")
    for q in range(4):
        a(f"buffer_load_dwordx2 {vr(120 + 2 * q, 2)}, v56, {sr(SB1, 4)}, s7 offen offset:{16 * q}")

    def reads(ks):
        ab, bb = 96 + 4 * (ks & 1), 104 + 8 * (ks & 1)
        a.wait_tok(dma[ks])
        a(f"ds_read_b64_tr_b16 {vr(ab, 2)}, v54 offset:{(ks % 8) * 1024}")
        t = a(f"ds_read_b64_tr_b16 {vr(ab + 2, 2)}, v54 offset:{(ks % 8) * 1024 + 256}")
        for tt in range(2):
            a(f"ds_read_b128 {vr(bb + 4 * tt, 4)}, v{60 + (ks & 3)} offset:{tt * 32768 + (ks >> 2) * 4096}")
        return t

    tk = {0: reads(0)}
    t_tr = None
    for ks in range(32):
        if ks + 1 < 32:
            tk[ks + 1] = reads(ks + 1)
        ab, bb = 96 + 4 * (ks & 1), 104 + 8 * (ks & 1)
        for tt in range(2):
            acc = vr(ACC + 16 * tt, 16)
            a(f"v_mfma_f32_32x32x16_bf16 {acc}, {vr(ab, 4)}, {vr(bb + 4 * tt, 4)}, {'0' if ks == 0 else acc}")
            if tt == 0:
                a.wait_tok(tk[ks])
                if ks + 8 < 32:
                    issue_w(ks + 8)
                elif ks == 24:
                    a("s_mov_b32 m0, s14")
                    t_tr = a(f"buffer_load_dwordx4 v9, {sr(ST, 4)}, s82 offen lds")
    a.wait_tok(t_tr)
    a("ds_read_b64_tr_b16 v[96:97], v55")
    a("ds_read_b64_tr_b16 v[98:99], v55 offset:512")
    a(f"v_lshlrev_b32 v57, 2, v13")
    a(f"v_add_u32 v57, {L_STATS}, v57")
    a(f"buffer_store_dwordx4 v[96:99], v5, {sr(SWS, 4)}, s79 offen")
    a(f"s_cmp_lt_u32 s{S_WAVE}, 2")
    a.settle()
    a(f"s_cbranch_scc0 {name}_mlp")
    snap = a.snapshot()
    a("ds_read2_b32 v[58:59], v57 offset0:0 offset1:32")
    a("s_lshl_b32 s7, s2, 13")
    a(f"s_lshl_b32 s8, s{S_WAVE}, 12")
    a("s_add_u32 s7, s7, s8")
    a(f"s_add_u32 s7, s7, {WS_QF}")
    a(f"v_mul_f32 v58, {f32(0.25 * LOG2E)}, v58")
    a(f"v_mul_f32 v59, {f32(0.25 * LOG2E)}, v59")
    for tt in range(2):
        for r in range(16):
            a(f"v_mul_f32 v{ACC + 16 * tt + r}, v{ACC + 16 * tt + r}, v{58 + tt}")
        for ab in range(2):
            d = 104 + 8 * tt + 4 * ab
            for r in range(4):
                s0 = ACC + 16 * tt + 8 * ab + 2 * r
                a(f"v_cvt_pk_bf16_f32 v{d + r}, v{s0}, v{s0 + 1}")
            a(f"buffer_store_dwordx4 {vr(d, 4)}, v5, {sr(SWS, 4)}, s7 offen offset:{(2 * tt + ab) * 1024}")
    a.wait_all()
    a("s_endpgm")
    a.label(f"{name}_mlp")
    a.restore(snap)
    a("ds_read2_b32 v[58:59], v57 offset0:64 offset1:96")
    a(f"s_mul_i32 s7, s{S_TG}, {HF_STRIDE}")
    a(f"s_add_u32 s7, s7, {WS_HF}")
    srd(a, SH, P_WS, 86 * 2048, "s7")
    a("s_lshl_b32 s7, s9, 12")
    BI = 128
    for q in range(8):
        a(f"v_lshlrev_b32 v{BI + 2 * q}, 16, v{120 + q}")
        a(f"v_and_b32 v{BI + 2 * q + 1}, 0xffff0000, v{120 + q}")
    c0 = -2.0 * 0.7978845608028654 * LOG2E
    a(f"v_mov_b32 v144, {f32(c0)}")
    a(f"v_mov_b32 v146, {f32(c0 * 0.044715)}")
    a("v_mov_b32 v148, 1.0")
    a("v_mov_b32 v150, v59")
    for tt in range(2):
        rs = "v[58:59]" if tt == 0 else "v[150:151]"
        for half in range(2):
            U = ACC + 16 * tt + 8 * half
            T = 152
            for r in range(4):
                a(f"v_pk_fma_f32 {vr(U + 2 * r, 2)}, {vr(U + 2 * r, 2)}, {rs}, {vr(BI + 8 * half + 2 * r, 2)} op_sel_hi:[1,0,1]")
            for r in range(4):
                a(f"v_pk_mul_f32 {vr(T + 2 * r, 2)}, {vr(U + 2 * r, 2)}, {vr(U + 2 * r, 2)}")
            for r in range(4):
                a(f"v_pk_fma_f32 {vr(T + 2 * r, 2)}, {vr(T + 2 * r, 2)}, v[146:147], v[144:145] op_sel_hi:[1,0,0]")
            for r in range(4):
                a(f"v_pk_mul_f32 {vr(T + 2 * r, 2)}, {vr(T + 2 * r, 2)}, {vr(U + 2 * r, 2)}")
            for r in range(8):
                a(f"v_exp_f32 v{T + r}, v{T + r}")
            for r in range(4):
                a(f"v_pk_add_f32 {vr(T + 2 * r, 2)}, {vr(T + 2 * r, 2)}, v[148:149] op_sel_hi:[1,0]")
            for r in range(8):
                a(f"v_rcp_f32 v{T + r}, v{T + r}")
            for r in range(4):
                a(f"v_pk_mul_f32 {vr(U + 2 * r, 2)}, {vr(U + 2 * r, 2)}, {vr(T + 2 * r, 2)}")
            d = 104 + 8 * tt + 4 * half
            for r in range(4):
                a(f"v_cvt_pk_bf16_f32 v{d + r}, v{U + 2 * r}, v{U + 2 * r + 1}")
            a(f"buffer_store_dwordx4 {vr(d, 4)}, v5, {sr(SH, 4)}, s7 offen offset:{half * 2048 + tt * 1024}")
    epilogue(a, name)


KT = 2064
L_XCH = 133120


def gen_attn(a, name):
    prologue(a, name)
    SWS = 44
    S0, O0, Q0, KR, V0R, V1R, IDX = 16, 48, 80, 88, 92, 96, 100
    srd(a, SWS, P_WS, 0x1000000)
    a("v_lshlrev_b32 v5, 4, v0")
    a(f"s_and_b32 s6, s{S_WAVE}, 3")
    a(f"s_lshr_b32 s7, s{S_WAVE}, 2")
    a("s_lshl_b32 s8, s2, 13")
    a("s_lshl_b32 s9, s6, 11")
    a("s_add_u32 s8, s8, s9")
    a(f"s_add_u32 s8, s8, {WS_QF}")
    for ab in range(2):
        a(f"buffer_load_dwordx4 {vr(Q0 + 4 * ab, 4)}, v5, {sr(SWS, 4)}, s8 offen offset:{1024 * ab}")
    chunk_tok = []
    a(f"s_mul_i32 s10, s{S_WAVE}, {KT}")
    a(f"s_lshl_b32 s11, s{S_WAVE}, 10")
    for c in range(4):
        for half in range(2):
            kt = 8 * c + 32 * half
            a(f"s_add_u32 m0, s10, {kt * KT}")
            a(f"s_add_u32 s12, s11, {WS_KF + kt * 1024}")
            a(f"buffer_load_dwordx4 v5, {sr(SWS, 4)}, s12 offen lds")
            a(f"s_add_u32 m0, s10, {kt * KT + 1024}")
            a(f"s_add_u32 s12, s11, {WS_VF + kt * 1024}")
            t = a(f"buffer_load_dwordx4 v5, {sr(SWS, 4)}, s12 offen lds")
        chunk_tok.append(t)
    for r in range(4):
        a(f"v_mov_b32 v{8 + r}, 0x3f803f80")
    a(f"v_mul_u32_u24 v6, {KT}, v0")
    a(f"ds_write_b128 v6, v[8:11] offset:2048")
    a(f"s_mul_i32 s13, s7, {32 * KT}")
    a("v_add_u32 v1, s13, v5")
    a("v_and_b32 v6, 15, v0")
    a("v_lshrrev_b32 v7, 5, v0")
    a("v_lshlrev_b32 v6, 4, v6")
    a("v_lshl_add_u32 v6, v7, 8, v6")
    a("v_and_b32 v7, 31, v0")
    a("v_cmp_eq_u32 vcc, 16, v7")
    a("v_add_u32 v2, 1024, v6")
    a("v_add_u32 v3, 1536, v6")
    a("v_mov_b32 v7, 2048")
    a("v_cndmask_b32 v2, v2, v7, vcc")
    a("v_cndmask_b32 v3, v3, v7, vcc")
    a("v_add_u32 v2, s13, v2")
    a("v_add_u32 v3, s13, v3")
    a(f"v_mov_b32 v{IDX}, 0xdddddddd")
    for r in range(32):
        a(f"v_mov_b32 v{O0 + r}, 0")

    def rk(it):
        a(f"ds_read_b128 {vr(KR, 4)}, v1 offset:{it * KT}")

    def rv(it, p):
        a(f"ds_read_b128 {vr((V0R, V1R)[p], 4)}, v{2 + p} offset:{it * KT}")

    def mf(t):
        a(f"v_mfma_f32_32x32x16_bf16 {vr(S0 + 16 * (t & 1), 16)}, {vr(KR, 4)}, {vr(Q0 + 4 * (t & 1), 4)}, 0")

    def smf(t, p):
        a(f"v_smfmac_f32_32x32x32_bf16 {vr(O0 + 16 * (t & 1), 16)}, {vr((V0R, V1R)[p], 4)}, "
          f"{vr(S0 + 16 * (t & 1) + 8 * p, 8)}, v{IDX}")

    def ex(t, lo, hi):
        for i in range(lo, hi):
            r = S0 + 16 * (t & 1) + i
            a(f"v_exp_f32 v{r}, v{r}")

    a.wait_tok(chunk_tok[0])
    a.wait_all(vm=False)
    a("s_barrier")
    rk(0)
    rv(0, 0)
    rv(0, 1)
    mf(0)
    NT = 64
    for t in range(NT):
        it = t >> 1
        if t % 16 == 14 and t + 2 < NT:
            a.wait_tok(chunk_tok[(t + 2) // 16])
            a("s_barrier")
        ex(t, 0, 2)
        if t > 0:
            smf(t - 1, 1)
            if t % 2 == 0:
                rv(it, 1)
        ex(t, 2, 5)
        if t + 1 < NT:
            mf(t + 1)
            if t % 2 == 0 and it + 1 < 32:
                rk(it + 1)
        ex(t, 5, 10)
        smf(t, 0)
        if t % 2 == 1 and it + 1 < 32:
            rv(it + 1, 0)
        ex(t, 10, 16)
    smf(NT - 1, 1)

    a(f"s_mul_i32 s8, s{S_WAVE}, 2304")
    a(f"s_add_u32 s8, s8, {L_XCH}")
    a(f"s_xor_b32 s9, s{S_WAVE}, 4")
    a("s_mul_i32 s9, s9, 2304")
    a(f"s_add_u32 s9, s9, {L_XCH}")
    a("v_add_u32 v6, s8, v5")
    a("v_lshl_add_u32 v7, v0, 2, s8")
    a("v_add_u32 v8, s9, v5")
    a("v_lshl_add_u32 v9, v0, 2, s9")
    a("s_cmp_eq_u32 s7, 0")
    a.settle()
    a(f"s_cbranch_scc1 {name}_lo")
    snap = a.snapshot()
    for kh in (1, 0):
        if kh == 0:
            a.label(f"{name}_lo")
            a.restore(snap)
        give, keep = O0 + 16 * (1 - kh), O0 + 16 * kh
        a(f"ds_write_b128 v6, {vr(give, 4)}")
        a(f"ds_write_b128 v6, {vr(give + 4, 4)} offset:1024")
        a(f"ds_write_b32 v7, v{give + 8} offset:2048")
        for r in range(9):
            a(f"v_mov_b32 v{S0 + r}, v{keep + r}")
        for r in range(4):
            a(f"v_mov_b32 v{S0 + 28 + r}, v{Q0 + 4 * kh + r}")
        a.wait_all(vm=False)
        a.settle()
        if kh == 1:
            a(f"s_branch {name}_join")
    a.label(f"{name}_join")
    a("s_barrier")
    a(f"ds_read_b128 {vr(O0, 4)}, v8")
    a(f"ds_read_b128 {vr(O0 + 4, 4)}, v8 offset:1024")
    a(f"ds_read_b32 v{O0 + 8}, v9 offset:2048")
    a(f"s_lshl_b32 s8, s{S_TG}, 16")
    a(f"s_lshl_b32 s9, s{S_J}, 13")
    a("s_add_u32 s8, s8, s9")
    a("s_lshr_b32 s9, s6, 1")
    a("s_lshl_b32 s9, s9, 12")
    a("s_add_u32 s8, s8, s9")
    a("s_lshl_b32 s9, s7, 11")
    a("s_add_u32 s8, s8, s9")
    a("s_and_b32 s9, s6, 1")
    a("s_lshl_b32 s9, s9, 10")
    a("s_add_u32 s8, s8, s9")
    a(f"s_add_u32 s8, s8, {WS_OF}")
    for r in range(9):
        a(f"v_add_f32 v{O0 + r}, v{O0 + r}, v{S0 + r}")
    a(f"v_mov_b32 v10, v{O0 + 8}")
    a(f"v_permlane32_swap_b32 v{O0 + 8}, v10")
    a(f"v_max3_f32 v11, |v{O0}|, |v{O0 + 1}|, |v{O0 + 2}|")
    a(f"v_max3_f32 v11, |v{O0 + 3}|, |v{O0 + 4}|, v11")
    a(f"v_max3_f32 v11, |v{O0 + 5}|, |v{O0 + 6}|, v11")
    a(f"v_max3_f32 v11, |v{O0 + 7}|, v{O0 + 8}, v11")
    a(f"v_cmp_gt_f32 vcc, {f32(2.0 ** 100)}, v11")
    a(f"s_mov_b32 s9, {f32(2.0 ** -60)}")
    a(f"v_cmp_lt_f32 s[14:15], s9, v{O0 + 8}")
    a("s_and_b64 vcc, vcc, s[14:15]")
    a("s_cmp_eq_u64 vcc, exec")
    a.settle()
    a(f"s_cbranch_scc0 {name}_slow")
    a.label(f"{name}_fin")
    a(f"v_rcp_f32 v10, v{O0 + 8}")
    for r in range(8):
        a(f"v_mul_f32 v{O0 + r}, v{O0 + r}, v10")
    for r in range(4):
        a(f"v_cvt_pk_bf16_f32 v{12 + r}, v{O0 + 2 * r}, v{O0 + 2 * r + 1}")
    a(f"buffer_store_dwordx4 v[12:15], v5, {sr(SWS, 4)}, s8 offen")
    a.wait_all()
    a("s_endpgm")

    a.label(f"{name}_slow")
    a.reset_state()
    QS, C0 = S0 + 28, 64
    a(f"v_mov_b32 v10, 0xff800000")
    a("s_mov_b32 s9, 0")
    a.settle()
    a.label(f"{name}_p1")
    a(f"s_add_u32 s12, s9, {WS_KF}")
    a(f"buffer_load_dwordx4 {vr(KR, 4)}, v5, {sr(SWS, 4)}, s12 offen sc1")
    a(f"v_mfma_f32_32x32x16_bf16 {vr(S0, 16)}, {vr(KR, 4)}, {vr(QS, 4)}, 0")
    for r in range(8):
        a(f"v_max3_f32 v10, v{S0 + 2 * r}, v{S0 + 2 * r + 1}, v10")
    a("s_add_u32 s9, s9, 1024")
    a("s_cmp_lt_u32 s9, 65536")
    a.settle()
    a(f"s_cbranch_scc1 {name}_p1")
    a("v_mov_b32 v11, v10")
    a("v_permlane32_swap_b32 v10, v11")
    a("v_max_f32 v10, v10, v11")
    for r in range(16):
        a(f"v_sub_f32 v{C0 + r}, 0, v10")
        a(f"v_mov_b32 v{O0 + r}, 0")
    for r in range(8):
        a(f"v_mov_b32 v{V0R + r}, 0x3f803f80")
    a("v_and_b32 v6, 15, v0")
    a("v_lshrrev_b32 v7, 5, v0")
    a("v_lshlrev_b32 v6, 4, v6")
    a("v_lshl_add_u32 v6, v7, 8, v6")
    a("s_mov_b32 s9, 0")
    a("s_mov_b32 s14, 0x0000ffff")
    a("s_mov_b32 s15, 0x0000ffff")
    a.settle()
    a.label(f"{name}_p2")
    a(f"s_add_u32 s12, s9, {WS_KF}")
    a(f"buffer_load_dwordx4 {vr(KR, 4)}, v5, {sr(SWS, 4)}, s12 offen sc1")
    a(f"s_add_u32 s12, s9, {WS_VF}")
    a("s_mov_b64 exec, s[14:15]")
    a(f"buffer_load_dwordx4 {vr(V0R, 4)}, v6, {sr(SWS, 4)}, s12 offen sc1")
    a(f"buffer_load_dwordx4 {vr(V1R, 4)}, v6, {sr(SWS, 4)}, s12 offen offset:512 sc1")
    a("s_mov_b64 exec, -1")
    a(f"v_mfma_f32_32x32x16_bf16 {vr(S0, 16)}, {vr(KR, 4)}, {vr(QS, 4)}, {vr(C0, 16)}")
    ex(0, 0, 16)
    smf(0, 0)
    smf(0, 1)
    a("s_add_u32 s9, s9, 1024")
    a("s_cmp_lt_u32 s9, 65536")
    a.wait_all()
    a.settle()
    a(f"s_cbranch_scc1 {name}_p2")
    a(f"s_branch {name}_fin")
    a.label(f"{name}_end")
    a("s_endpgm")


PART = 64 * 272


def gen_tail(a, name):
    prologue(a, name)
    SH, SW2, SO, SWO, SX, SB2, SOUT = 44, 48, 52, 56, 60, 64, 68
    a(f"s_mul_i32 s6, s{S_TG}, {HF_STRIDE}")
    a(f"s_add_u32 s6, s6, {WS_HF}")
    srd(a, SH, P_WS, 86 * 2048, "s6")
    a(f"s_mul_i32 s6, s{S_J}, {HF_STRIDE}")
    a(f"s_add_u32 s6, s6, {WS_W2T}")
    srd(a, SW2, P_WS, 86 * 2048, "s6")
    a(f"s_lshl_b32 s6, s{S_TG}, 16")
    a(f"s_add_u32 s6, s6, {WS_OF}")
    srd(a, SO, P_WS, 65536, "s6")
    a(f"s_lshl_b32 s6, s{S_J}, 16")
    a(f"s_add_u32 s6, s6, {WS_WOT}")
    srd(a, SWO, P_WS, 65536, "s6")
    srd(a, SX, P_X, 2097152)
    srd(a, SB2, P_B2, 1024)
    srd(a, SOUT, P_OUT, 2097152)
    a("v_lshlrev_b32 v5, 4, v0")
    a(f"s_and_b32 s6, s{S_WAVE}, 1")
    a(f"s_lshr_b32 s7, s{S_WAVE}, 1")
    a("s_lshl_b32 s8, s7, 11")
    a("s_lshl_b32 s9, s6, 10")
    a("s_add_u32 s9, s9, s8")
    a("s_lshl_b32 s10, s7, 14")
    a("s_lshl_b32 s11, s6, 10")
    a("s_add_u32 s11, s11, s10")
    M, S = 16, 48
    DEPTH = 10
    BUF = 80
    steps = [("m", i) for i in range(22)] + [("s", i) for i in range(8)]

    def load(n):
        kind, i = steps[n]
        b = BUF + 12 * (n % DEPTH)
        if kind == "m":
            a(f"buffer_load_dwordx4 {vr(b, 4)}, v5, {sr(SW2, 4)}, s9 offen")
            a(f"buffer_load_dwordx4 {vr(b + 4, 4)}, v5, {sr(SH, 4)}, s8 offen")
            a(f"buffer_load_dwordx4 {vr(b + 8, 4)}, v5, {sr(SH, 4)}, s8 offen offset:1024")
            a("s_add_u32 s8, s8, 8192")
            a("s_add_u32 s9, s9, 8192")
        else:
            a(f"buffer_load_dwordx4 {vr(b, 4)}, v5, {sr(SO, 4)}, s11 offen")
            a(f"buffer_load_dwordx4 {vr(b + 4, 4)}, v5, {sr(SWO, 4)}, s10 offen")
            a(f"buffer_load_dwordx4 {vr(b + 8, 4)}, v5, {sr(SWO, 4)}, s10 offen offset:1024")
            a("s_add_u32 s10, s10, 2048")
            a("s_add_u32 s11, s11, 2048")

    def mm(n):
        kind, i = steps[n]
        b = BUF + 12 * (n % DEPTH)
        for u in range(2):
            acc = vr((M if kind == "m" else S) + 16 * u, 16)
            if kind == "m":
                opa, opb = vr(b, 4), vr(b + 4 + 4 * u, 4)
            else:
                opa, opb = vr(b + 4 + 4 * u, 4), vr(b, 4)
            a(f"v_mfma_f32_32x32x16_bf16 {acc}, {opa}, {opb}, {'0' if i == 0 else acc}")

    for n in range(DEPTH):
        load(n)
    a("v_lshrrev_b32 v2, 3, v0")
    a("v_and_b32 v3, 7, v0")
    a("v_lshlrev_b32 v6, 10, v2")
    a("v_lshl_add_u32 v6, v3, 4, v6")
    a(f"s_lshl_b32 s12, s{S_TG}, 16")
    a(f"s_lshl_b32 s13, s{S_WAVE}, 13")
    a("s_add_u32 s12, s12, s13")
    a(f"s_lshl_b32 s13, s{S_J}, 7")
    a("s_add_u32 s12, s12, s13")
    a("v_lshlrev_b32 v7, 4, v3")
    a("v_and_b32 v8, 31, v0")
    a("v_lshrrev_b32 v9, 5, v0")
    a("v_mul_u32_u24 v10, 272, v8")
    a("v_lshl_add_u32 v10, v9, 4, v10")
    a(f"s_mul_i32 s14, s7, {PART}")
    a("s_lshl_b32 s15, s6, 7")
    a("s_add_u32 s15, s15, s14")
    a("v_add_u32 v11, s15, v10")
    a(f"s_mul_i32 s15, s6, {32 * 272}")
    a("s_add_u32 s15, s15, s14")
    a(f"s_add_u32 s15, s15, {4 * PART}")
    a("v_add_u32 v12, s15, v10")
    a(f"s_mul_i32 s15, s{S_WAVE}, {8 * 272}")
    a("v_mul_u32_u24 v13, 272, v2")
    a("v_lshl_add_u32 v13, v3, 5, v13")
    a("v_add_u32 v13, s15, v13")
    a(f"v_add_u32 v14, {4 * PART}, v13")
    for n in range(len(steps)):
        mm(n)
        if n + DEPTH < len(steps):
            load(n + DEPTH)
        if n + DEPTH == len(steps):
            a(f"buffer_load_dwordx4 v[200:203], v6, {sr(SX, 4)}, s12 offen")
            a(f"buffer_load_dwordx4 v[204:207], v7, {sr(SB2, 4)}, s13 offen")
        if n == 23:
            for u in range(2):
                for q in range(4):
                    a(f"ds_write_b128 v11, {vr(M + 16 * u + 4 * q, 4)} offset:{u * 32 * 272 + q * 32}")
    for u in range(2):
        for q in range(4):
            a(f"ds_write_b128 v12, {vr(S + 16 * u + 4 * q, 4)} offset:{u * 128 + q * 32}")
    a.wait_all(vm=False)
    a("s_barrier")
    for k, ad in enumerate((13, 14)):
        for kq in range(4):
            for i in range(2):
                a(f"ds_read_b128 {vr(80 + 32 * k + 8 * kq + 4 * i, 4)}, v{ad} offset:{kq * PART + 16 * i}")
    for r in range(4):
        a(f"v_lshlrev_b32 v{208 + 2 * r}, 16, v{204 + r}")
        a(f"v_and_b32 v{209 + 2 * r}, 0xffff0000, v{204 + r}")
        a(f"v_lshlrev_b32 v{216 + 2 * r}, 16, v{200 + r}")
        a(f"v_and_b32 v{217 + 2 * r}, 0xffff0000, v{200 + r}")
    for r in range(8):
        a(f"v_add_f32 v{208 + r}, v{208 + r}, v{80 + r}")
    for kq in range(1, 4):
        for r in range(8):
            a(f"v_add_f32 v{208 + r}, v{208 + r}, v{80 + 8 * kq + r}")
    for r in range(8):
        a(f"v_mul_f32 v{224 + r}, {f32(-LOG2E)}, v{208 + r}")
    for r in range(8):
        a(f"v_exp_f32 v{224 + r}, v{224 + r}")
    for r in range(8):
        a(f"v_add_f32 v{224 + r}, 1.0, v{224 + r}")
    for r in range(8):
        a(f"v_rcp_f32 v{224 + r}, v{224 + r}")
    for r in range(8):
        a(f"v_mul_f32 v{208 + r}, v{208 + r}, v{224 + r}")
    for kq in range(1, 4):
        for r in range(8):
            a(f"v_add_f32 v{112 + r}, v{112 + r}, v{112 + 8 * kq + r}")
    for r in range(8):
        a(f"v_fmac_f32 v{216 + r}, v{112 + r}, v{208 + r}")
    for r in range(4):
        a(f"v_cvt_pk_bf16_f32 v{200 + r}, v{216 + 2 * r}, v{217 + 2 * r}")
    a(f"buffer_store_dwordx4 v[200:203], v6, {sr(SOUT, 4)}, s12 offen")
    epilogue(a, name)


def main(out):
    a = Asm()
    hdr = open("cdna_kernels/" + NAME + ".s.ref").read().split("; Override launch")[0]
    a.raw(hdr.rstrip())
    a.raw("; @launch kernel=front_kernel grid=(256,1,1) block=(512,1,1) lds=163840")
    a.raw("; @launch kernel=attn_kernel grid=(256,1,1) block=(512,1,1) lds=163840")
    a.raw("; @launch kernel=tail_kernel grid=(256,1,1) block=(512,1,1) lds=163840")
    a.raw('.amdgcn_target "amdgcn-amd-amdhsa--gfx950"\n.text')
    gen_front(a, "front_kernel")
    a.raw(descriptor("front_kernel"))
    gen_attn(a, "attn_kernel")
    a.raw(descriptor("attn_kernel"))
    gen_tail(a, "tail_kernel")
    a.raw(descriptor("tail_kernel"))
    open(out, "w").write(a.text())
    print("written", out, "nop states", a.nops)


if __name__ == "__main__":
    main(sys.argv[1] if len(sys.argv) > 1 else "cdna_kernels/" + NAME + ".s")
```

```python
import struct
import sys
from asmgen import Asm, vr, sr

NAME = "recurrent_scan__grouped_kv_mqa__mixer_channel_mlp__prompt"
KN = NAME + "_kernel"

WS_KF = 0x000000
WS_VF = 0x010000
WS_E = 0x020000
WS_FL1 = 0x021000
WS_FL2 = 0x022000
WS_FL3 = 0x040000
WS_HF = 0x400000
HF_STRIDE = 0x2C000
WS_W2T = 0xA00000
WS_WOT = 0xC00000
WS_OF = 0xD00000
WS_ST = 0xF00000
WS_SIZE = 0x1000000

P_X, P_WQ, P_WK, P_WV, P_WO, P_BX, P_W1, P_B1, P_W2, P_B2, P_OUT, P_DBG, P_WS = range(16, 42, 2)
S_WAVE, S_TG, S_J, S_TAG = 3, 4, 5, 84
SX, SW, SKV, SWS, ST, SB1, SH = 44, 48, 52, 56, 60, 64, 68
SW2, SWO, SO, SOUT, SB2 = 52, 60, 64, 76, 80

L_XC, L_RING, L_WKV, L_QF, L_STATS = 0, 65536, 131072, 147456, 155648
KT = 2064
L_XCH = 133120
L_HI = 32 * KT
SPIN_LIMIT = 200000

LOG2E = 1.4426950408889634
STAMPS = False
_stamp = {"n": 0}


def f32(x):
    return "0x%08x" % struct.unpack("<I", struct.pack("<f", x))[0]


def srd(a, dst, ptr, size, off=None):
    if off is None:
        a(f"s_mov_b32 s{dst}, s{ptr}")
        a(f"s_mov_b32 s{dst + 1}, s{ptr + 1}")
    else:
        a(f"s_add_u32 s{dst}, s{ptr}, {off}")
        a(f"s_addc_u32 s{dst + 1}, s{ptr + 1}, 0")
    a(f"s_mov_b32 s{dst + 2}, {size}")
    a(f"s_mov_b32 s{dst + 3}, 0x00020000")


def csel(a, dst, if_true, if_false):
    a(f"s_mov_b32 s{dst}, {if_false}")
    a(f"s_cselect_b32 s{dst}, {if_true}, s{dst}")


def stamp(a, n=None):
    if not STAMPS:
        return
    if n is None:
        n = _stamp["n"]
        _stamp["n"] += 1
    a("s_memrealtime s[92:93]")
    a("s_memtime s[94:95]")
    a.wait_all(vm=False)
    a(f"v_writelane_b32 v255, s92, {2 * n}")
    a(f"v_writelane_b32 v255, s94, {2 * n + 1}")


def stamp_flush(a):
    if not STAMPS:
        return
    stamp(a)
    a("s_lshl_b32 s92, s2, 3")
    a(f"s_add_u32 s92, s92, s{S_WAVE}")
    a("s_lshl_b32 s92, s92, 8")
    a(f"s_add_u32 s92, s92, {WS_ST}")
    a("v_lshlrev_b32 v254, 2, v0")
    a(f"buffer_store_dword v255, v254, {sr(SWS, 4)}, s92 offen")


def poll_issue(a, base, vt):
    t = None
    a(f"s_mov_b32 s85, {base}")
    for i in range(4):
        t = a(f"buffer_load_dword v{vt + i}, v5, {sr(SWS, 4)}, s85 offen offset:{1024 * i} sc1")
    return t


def poll_check(a, vt, n=4):
    for i in range(n):
        a(f"v_xor_b32 v{vt + i}, s{S_TAG}, v{vt + i}")
    if n == 4:
        a(f"v_or3_b32 v{vt}, v{vt}, v{vt + 1}, v{vt + 2}")
        a(f"v_or_b32 v{vt}, v{vt}, v{vt + 3}")
    a(f"v_cmp_eq_u32 vcc, 0, v{vt}")
    a("s_cmp_eq_u64 vcc, exec")


def spin(a, label, issue, vt, n=4):
    a("s_mov_b32 s86, 0")
    a.settle()
    a.label(label)
    issue()
    a("s_add_u32 s86, s86, 1")
    poll_check(a, vt, n)
    a.settle()
    a(f"s_cbranch_scc1 {label}_ok")
    a(f"s_cmp_lt_u32 s86, {SPIN_LIMIT}")
    a(f"s_cbranch_scc1 {label}")
    a.label(f"{label}_ok")


def flag_store(a, soff, vtmp):
    a(f"v_mov_b32 v{vtmp}, s{S_TAG}")
    a("s_mov_b64 exec, 1")
    a(f"buffer_store_dword v{vtmp}, v5, {sr(SWS, 4)}, {soff} offen sc1")
    a("s_mov_b64 exec, -1")


def gen(a):
    name = KN
    a.raw(f".globl {name}\n.p2align 8\n.type {name},@function\n{name}:")
    a("s_cmp_ge_u32 s2, 256")
    a("s_cbranch_scc1 L_end")
    stamp(a)
    a("s_load_dwordx16 s[16:31], s[0:1], 0")
    a("s_load_dwordx8 s[32:39], s[0:1], 64")
    a("s_load_dwordx2 s[40:41], s[0:1], 96")
    a("v_lshrrev_b32 v1, 6, v0")
    a("v_and_b32 v0, 63, v0")
    a(f"v_readfirstlane_b32 s{S_WAVE}, v1")
    a(f"s_and_b32 s{S_TG}, s2, 7")
    a(f"s_lshl_b32 s{S_TG}, s{S_TG}, 2")
    a("s_bfe_u32 s6, s2, 0x20003")
    a(f"s_add_u32 s{S_TG}, s{S_TG}, s6")
    a(f"s_lshr_b32 s{S_J}, s2, 5")
    front(a)
    attention(a)
    a.label("L_end")
    a("s_endpgm")


def front(a):
    X, ACC = 16, 64
    a("v_lshrrev_b32 v2, 3, v0")
    a("v_and_b32 v3, 7, v0")
    a("v_lshlrev_b32 v4, 10, v2")
    a("v_lshl_add_u32 v4, v3, 4, v4")
    a(f"s_lshl_b32 s6, s{S_TG}, 16")
    a(f"s_lshl_b32 s7, s{S_WAVE}, 13")
    a("s_add_u32 s6, s6, s7")
    a("v_lshlrev_b32 v5, 4, v0")
    a("v_lshrrev_b32 v6, 2, v0")
    a("v_and_b32 v7, 3, v0")
    srd(a, SX, P_X, 2097152)
    for i in range(8):
        a(f"buffer_load_dwordx4 {vr(X + 4 * i, 4)}, v4, {sr(SX, 4)}, s6 offen offset:{128 * i}")
    srd(a, SWS, P_WS, WS_SIZE)
    a(f"s_bitcmp1_b32 s{S_J}, 0")
    a(f"s_cselect_b32 s{SKV}, s{P_WV}, s{P_WK}")
    a(f"s_cselect_b32 s{SKV + 1}, s{P_WV + 1}, s{P_WK + 1}")
    a(f"s_mov_b32 s{SKV + 2}, 16384")
    a(f"s_mov_b32 s{SKV + 3}, 0x00020000")
    a(f"s_mul_i32 s9, s{S_J}, 6")
    a(f"s_add_u32 s9, s9, s{S_WAVE}")
    a("s_sub_u32 s9, s9, 2")
    a("s_max_i32 s9, s9, 0")
    a(f"s_lshl_b32 s10, s{S_J}, 1")
    a(f"s_add_u32 s10, s10, s{S_WAVE}")
    a(f"s_cmp_lt_u32 s{S_WAVE}, 2")
    a(f"s_cselect_b32 s{SW}, s{P_WQ}, s{P_W1}")
    a(f"s_cselect_b32 s{SW + 1}, s{P_WQ + 1}, s{P_W1 + 1}")
    csel(a, SW + 2, 524288, 1409024)
    a(f"s_mov_b32 s{SW + 3}, 0x00020000")
    csel(a, 11, 1024, 2752)
    a("s_cselect_b32 s12, s10, s9")
    a("s_lshl_b32 s12, s12, 6")
    a("s_cmp_lt_u32 s9, 43")
    a(f"s_cselect_b32 s{SW + 2}, s{SW + 2}, 0")
    a("s_lshl_b32 s13, s11, 4")
    a("v_mul_u32_u24 v8, s11, v6")
    a("v_lshl_add_u32 v8, v7, 4, v8")
    a(f"s_lshl_b32 s14, s{S_WAVE}, 13")
    a(f"s_add_u32 s14, s14, {L_RING}")
    a("s_barrier")
    a(f"v_mov_b32 v1, {WS_E}")
    a(f"buffer_load_dword v1, v1, {sr(SWS, 4)}, 0 offen sc1")
    a(f"s_lshl_b32 s7, s{S_WAVE}, 11")
    a(f"s_add_u32 m0, s7, {L_WKV}")
    a(f"buffer_load_dwordx4 v5, {sr(SKV, 4)}, s7 offen lds")
    t_kv = a(f"buffer_load_dwordx4 v5, {sr(SKV, 4)}, s7 offen offset:1024 lds")
    dma = {}

    def issue_w(ks):
        a(f"s_add_u32 m0, s14, {(ks % 8) * 1024}")
        dma[ks] = a(f"buffer_load_dwordx4 v8, {sr(SW, 4)}, s12 offen lds")
        a("s_add_u32 s12, s12, s13")

    for ks in range(8):
        issue_w(ks)
    a("v_lshlrev_b32 v9, 10, v6")
    a("v_lshl_add_u32 v9, v7, 4, v9")
    a(f"s_and_b32 s7, s{S_WAVE}, 3")
    a("s_lshl_b32 s7, s7, 3")
    a("v_add_u32 v10, s7, v2")
    a("v_xor_b32 v11, v10, v3")
    a("v_lshlrev_b32 v11, 4, v11")
    a("v_lshl_add_u32 v11, v3, 9, v11")
    a(f"s_lshr_b32 s7, s{S_WAVE}, 2")
    a("s_lshl_b32 s7, s7, 15")
    a("v_add_u32 v11, s7, v11")
    a(f"s_lshl_b32 s7, s{S_WAVE}, 5")
    a(f"s_add_u32 s7, s7, {L_STATS}")
    a("v_lshl_add_u32 v12, v2, 2, s7")
    a("v_and_b32 v13, 31, v0")
    a("v_lshrrev_b32 v14, 5, v0")
    for c in range(4):
        a(f"v_or_b32 v15, {2 * c}, v14")
        a("v_xor_b32 v15, v15, v13")
        a("v_lshlrev_b32 v15, 4, v15")
        a("v_lshl_add_u32 v15, v14, 9, v15")
        a(f"v_add_u32 v{60 + c}, {1024 * c}, v15")
    a("v_bfe_u32 v52, v0, 2, 2")
    a("v_bfe_u32 v53, v0, 4, 1")
    a("v_lshlrev_b32 v15, 3, v7")
    a("v_lshl_add_u32 v15, v52, 6, v15")
    a("v_lshl_add_u32 v15, v53, 5, v15")
    a("v_add_u32 v15, s14, v15")
    a("v_lshl_add_u32 v7, v14, 8, v15")
    a("v_lshl_add_u32 v6, v14, 9, v15")
    a("s_mov_b32 s72, 0x3f803f80")
    a("s_mov_b32 s73, 0x00003f80")
    a("s_mov_b32 s74, 0x3f800000")
    a(f"v_dot2_f32_bf16 v48, v{X}, s72, 0")
    for r in range(1, 32):
        a(f"v_dot2_f32_bf16 v48, v{X + r}, s72, v48")
    stamp(a)

    def row_reduce(r):
        a(f"v_add_f32_dpp v{r}, v{r}, v{r} quad_perm:[1,0,3,2] row_mask:0xf bank_mask:0xf")
        a(f"v_add_f32_dpp v{r}, v{r}, v{r} quad_perm:[2,3,0,1] row_mask:0xf bank_mask:0xf")
        a(f"v_add_f32_dpp v{r}, v{r}, v{r} row_half_mirror row_mask:0xf bank_mask:0xf")

    row_reduce(48)
    a(f"v_mul_f32 v48, {f32(-1.0 / 512)}, v48")
    for i in range(8):
        for r in range(4):
            a(f"v_dot2_f32_bf16 v{52 + 2 * r}, v{X + 4 * i + r}, s73, v48")
            a(f"v_dot2_f32_bf16 v{53 + 2 * r}, v{X + 4 * i + r}, s74, v48")
        if i > 0:
            for r in range(4):
                src = "0" if (i == 1 and r == 0) else "v49"
                a(f"v_dot2_f32_bf16 v49, v{X + 4 * (i - 1) + r}, v{X + 4 * (i - 1) + r}, {src}")
        for r in range(4):
            a(f"v_cvt_pk_bf16_f32 v{X + 4 * i + r}, v{52 + 2 * r}, v{53 + 2 * r}")
        a(f"ds_write_b128 v11, {vr(X + 4 * i, 4)} offset:{4096 * i}")
    for r in range(4):
        a(f"v_dot2_f32_bf16 v49, v{X + 28 + r}, v{X + 28 + r}, v49")
    row_reduce(49)
    a(f"v_mul_f32 v49, {f32(1.0 / 512)}, v49")
    a(f"v_add_f32 v50, {f32(1e-5)}, v49")
    a("v_rsq_f32 v50, v50")
    a("v_mul_f32 v51, v49, v50")
    a(f"v_fmaak_f32 v51, v51, v50, {f32(1e-5)}")
    a("v_rsq_f32 v51, v51")
    a("v_mul_f32 v51, v51, v50")
    a("ds_write2_b32 v12, v50, v51 offset0:0 offset1:64")
    a(f"v_readfirstlane_b32 s{S_TAG}, v1")
    a(f"s_mul_i32 s{S_TAG}, s{S_TAG}, 0x9e3779b1")
    a(f"s_add_u32 s{S_TAG}, s{S_TAG}, 0x7f4a7c15")
    a.wait_tok(t_kv)
    a.wait_all(vm=False)
    stamp(a)
    a("s_barrier")
    stamp(a)

    a(f"s_cmp_lg_u32 s{S_WAVE}, 0")
    a.settle()
    a("s_cbranch_scc1 L_nokv")
    snap = a.snapshot()
    a("s_setprio 3")
    a("v_and_b32 v128, 15, v0")
    a("v_lshrrev_b32 v129, 4, v0")
    a(f"s_bfe_u32 s7, s{S_J}, 0x10001")
    a("s_lshl_b32 s8, s7, 4")
    a("v_add_u32 v130, s8, v128")
    a(f"s_lshr_b32 s8, s{S_J}, 2")
    a("s_lshl_b32 s15, s8, 15")
    for par in range(2):
        a(f"v_or_b32 v131, {4 * par}, v129")
        a("v_xor_b32 v131, v131, v130")
        a("v_lshlrev_b32 v131, 4, v131")
        a("v_lshl_add_u32 v131, v129, 9, v131")
        a(f"v_add_u32 v{132 + par}, s15, v131")
    a("v_lshlrev_b32 v134, 3, v128")
    a("v_lshl_add_u32 v134, v129, 8, v134")
    a(f"v_add_u32 v134, {L_WKV}, v134")
    a(f"s_lshl_b32 s15, s{S_TG}, 1")
    a("s_add_u32 s15, s15, s8")
    a("s_lshl_b32 s15, s15, 10")
    a(f"s_lshr_b32 s8, s{S_J}, 1")
    a("s_lshl_b32 s8, s8, 6")
    a(f"s_add_u32 s8, s8, {L_STATS}")
    KB = 144
    a(f"s_bitcmp1_b32 s{S_J}, 0")
    a.settle()
    a("s_cbranch_scc1 L_doV")
    snap2 = a.snapshot()
    for isv in (0, 1):
        if isv:
            a.label("L_doV")
            a.restore(snap2)
            a("v_lshl_add_u32 v135, v129, 4, s8")
            a("ds_read_b128 v[140:143], v135")
        else:
            a("v_lshl_add_u32 v135, v128, 2, s8")
            a("ds_read_b32 v140, v135")

        def rd(s):
            b = KB + 8 * (s % 8)
            a(f"ds_read_b128 {vr(b, 4)}, v{132 + (s & 1)} offset:{2048 * s}")
            a(f"ds_read_b64_tr_b16 {vr(b + 4, 2)}, v134 offset:{1024 * s}")
            a(f"ds_read_b64_tr_b16 {vr(b + 6, 2)}, v134 offset:{1024 * s + 128}")

        for s in range(4):
            rd(s)
        for s in range(16):
            if s + 4 < 16:
                rd(s + 4)
            b = KB + 8 * (s % 8)
            opa, opb = (vr(b, 4), vr(b + 4, 4)) if isv else (vr(b + 4, 4), vr(b, 4))
            a(f"v_mfma_f32_16x16x32_bf16 v[136:139], {opa}, {opb}, {'0' if s == 0 else 'v[136:139]'}")
        if isv:
            a("v_lshrrev_b32 v131, 1, v129")
            a("v_lshl_add_u32 v131, v131, 4, v128")
            a("v_lshlrev_b32 v131, 4, v131")
            a("v_and_b32 v135, 1, v129")
            a("v_lshl_add_u32 v131, v135, 3, v131")
            a("s_lshl_b32 s8, s7, 9")
            a("s_add_u32 s15, s15, s8")
            a(f"s_add_u32 s15, s15, {WS_VF}")
            for r in range(4):
                a(f"v_mul_f32 v{136 + r}, v{136 + r}, v{140 + r}")
        else:
            a("v_and_b32 v135, 1, v129")
            a("v_lshl_add_u32 v131, v135, 5, v130")
            a("v_lshlrev_b32 v131, 4, v131")
            a("v_lshrrev_b32 v135, 1, v129")
            a("v_lshl_add_u32 v131, v135, 3, v131")
            a(f"s_add_u32 s15, s15, {WS_KF}")
            for r in range(4):
                a(f"v_mul_f32 v{136 + r}, v{136 + r}, v140")
        a("v_cvt_pk_bf16_f32 v136, v136, v137")
        a("v_cvt_pk_bf16_f32 v137, v138, v139")
        a(f"buffer_store_dwordx2 v[136:137], v131, {sr(SWS, 4)}, s15 offen sc1")
        a.wait_all()
        a.settle()
        if not isv:
            a("s_branch L_kvpub")
    a.label("L_kvpub")
    a("s_lshl_b32 s8, s2, 4")
    a(f"s_add_u32 s8, s8, {WS_FL1}")
    flag_store(a, "s8", 136)
    a("s_setprio 0")
    a.wait_all()
    a.settle()
    a.label("L_nokv")
    a.restore(snap)

    a("s_lshl_b32 s76, s2, 3")
    a(f"s_add_u32 s76, s76, s{S_WAVE}")
    a("s_sub_u32 s77, s76, 1376")
    a("s_cmp_lt_u32 s76, 1376")
    a(f"s_cselect_b32 s{ST}, s{P_W2}, s{P_WO}")
    a(f"s_cselect_b32 s{ST + 1}, s{P_W2 + 1}, s{P_WO + 1}")
    csel(a, ST + 2, 1409024, 524288)
    a(f"s_mov_b32 s{ST + 3}, 0x00020000")
    a("s_cselect_b32 s77, s76, s77")
    csel(a, 78, HF_STRIDE, 65536)
    csel(a, 79, WS_W2T, WS_WOT)
    a("s_lshr_b32 s80, s77, 4")
    a("s_and_b32 s81, s77, 15")
    a("s_lshl_b32 s82, s80, 14")
    a("s_lshl_b32 s83, s81, 6")
    a("s_add_u32 s82, s82, s83")
    a("s_lshr_b32 s83, s81, 1")
    a("s_mul_i32 s83, s83, s78")
    a("s_add_u32 s79, s79, s83")
    a("s_lshl_b32 s83, s80, 11")
    a("s_add_u32 s79, s79, s83")
    a("s_and_b32 s83, s81, 1")
    a("s_lshl_b32 s83, s83, 10")
    a("s_add_u32 s79, s79, s83")
    a("s_cmp_lt_u32 s76, 1888")
    a(f"s_cselect_b32 s79, s79, {WS_SIZE}")
    srd(a, SB1, P_B1, 2752)
    a("s_lshl_b32 s7, s9, 6")
    a("v_lshlrev_b32 v56, 3, v14")
    for q in range(4):
        a(f"buffer_load_dwordx2 {vr(120 + 2 * q, 2)}, v56, {sr(SB1, 4)}, s7 offen offset:{16 * q}")
    a(f"s_mul_i32 s7, s{S_TG}, {HF_STRIDE}")
    a(f"s_add_u32 s7, s7, {WS_HF}")
    srd(a, SH, P_WS, 86 * 2048, "s7")

    def reads(ks):
        ab, bb = 96 + 4 * (ks & 1), 104 + 8 * (ks & 1)
        a.wait_tok(dma[ks])
        a(f"ds_read_b64_tr_b16 {vr(ab, 2)}, v6 offset:{(ks % 8) * 1024}")
        t = a(f"ds_read_b64_tr_b16 {vr(ab + 2, 2)}, v6 offset:{(ks % 8) * 1024 + 256}")
        for tt in range(2):
            a(f"ds_read_b128 {vr(bb + 4 * tt, 4)}, v{60 + (ks & 3)} offset:{tt * 32768 + (ks >> 2) * 4096}")
        return t

    tk = {0: reads(0)}
    t_tr = None
    for ks in range(32):
        if ks + 1 < 32:
            tk[ks + 1] = reads(ks + 1)
        ab, bb = 96 + 4 * (ks & 1), 104 + 8 * (ks & 1)
        for tt in range(2):
            acc = vr(ACC + 16 * tt, 16)
            a(f"v_mfma_f32_32x32x16_bf16 {acc}, {vr(ab, 4)}, {vr(bb + 4 * tt, 4)}, {'0' if ks == 0 else acc}")
            if tt == 0:
                a.wait_tok(tk[ks])
                if ks + 8 < 32:
                    issue_w(ks + 8)
                elif ks == 24:
                    a("s_mov_b32 m0, s14")
                    t_tr = a(f"buffer_load_dwordx4 v9, {sr(ST, 4)}, s82 offen lds")
    stamp(a)
    a.wait_tok(t_tr)
    a("ds_read_b64_tr_b16 v[96:97], v7")
    a("ds_read_b64_tr_b16 v[98:99], v7 offset:512")
    a("v_lshlrev_b32 v57, 2, v13")
    a(f"v_add_u32 v57, {L_STATS}, v57")
    a(f"buffer_store_dwordx4 v[96:99], v5, {sr(SWS, 4)}, s79 offen sc1")
    a(f"s_cmp_lg_u32 s{S_WAVE}, 1")
    a.wait_all(vm=False)
    a.settle()
    a("s_cbranch_scc1 L_nopoll1")
    snap = a.snapshot()
    spin(a, "L_poll1", lambda: poll_issue(a, WS_FL1, 128), 128)
    a("s_cmp_lg_u32 s2, 0")
    a("s_cbranch_scc1 L_nopoll1")
    a(f"s_mov_b32 s8, {WS_E}")
    flag_store(a, "s8", 128)
    a.wait_all()
    a.settle()
    a.label("L_nopoll1")
    a.restore(snap)
    a("s_barrier")
    stamp(a)
    a(f"s_mul_i32 s10, s{S_WAVE}, {KT}")
    a(f"s_lshl_b32 s11, s{S_WAVE}, 10")
    t_chunk0 = None
    for c in range(4):
        for half in range(2):
            kt = 8 * c + 32 * half
            a(f"s_add_u32 m0, s10, {kt * KT}")
            a(f"s_add_u32 s12, s11, {WS_KF + kt * 1024}")
            a(f"buffer_load_dwordx4 v5, {sr(SWS, 4)}, s12 offen sc1 lds")
            a(f"s_add_u32 m0, s10, {kt * KT + 1024}")
            a(f"s_add_u32 s12, s11, {WS_VF + kt * 1024}")
            t = a(f"buffer_load_dwordx4 v5, {sr(SWS, 4)}, s12 offen sc1 lds")
        if c == 0:
            t_chunk0 = t
    a(f"s_cmp_lt_u32 s{S_WAVE}, 2")
    a.settle()
    a("s_cbranch_scc0 L_mlp")
    snap = a.snapshot()
    a("ds_read2_b32 v[58:59], v57 offset0:0 offset1:32")
    a(f"s_lshl_b32 s8, s{S_WAVE}, 12")
    a(f"s_add_u32 s8, s8, {L_QF}")
    a("v_add_u32 v56, s8, v5")
    for r in range(4):
        a(f"v_mov_b32 v{128 + r}, 0x3f803f80")
    a(f"v_mul_u32_u24 v132, {KT}, v0")
    a("ds_write_b128 v132, v[128:131] offset:2048")
    a(f"v_mul_f32 v58, {f32(0.25 * LOG2E)}, v58")
    a(f"v_mul_f32 v59, {f32(0.25 * LOG2E)}, v59")
    for tt in range(2):
        for r in range(16):
            a(f"v_mul_f32 v{ACC + 16 * tt + r}, v{ACC + 16 * tt + r}, v{58 + tt}")
        for ab in range(2):
            d = 104 + 8 * tt + 4 * ab
            for r in range(4):
                s0 = ACC + 16 * tt + 8 * ab + 2 * r
                a(f"v_cvt_pk_bf16_f32 v{d + r}, v{s0}, v{s0 + 1}")
            a(f"ds_write_b128 v56, {vr(d, 4)} offset:{(2 * tt + ab) * 1024}")
    a.wait_tok(t_chunk0)
    a.wait_all(vm=False)
    a.settle()
    a("s_branch L_attn")
    a.label("L_mlp")
    a.restore(snap)
    a("ds_read2_b32 v[58:59], v57 offset0:64 offset1:96")
    a("s_lshl_b32 s7, s9, 12")
    BI = 128
    for q in range(8):
        a(f"v_lshlrev_b32 v{BI + 2 * q}, 16, v{120 + q}")
        a(f"v_and_b32 v{BI + 2 * q + 1}, 0xffff0000, v{120 + q}")
    c0 = -2.0 * 0.7978845608028654 * LOG2E
    a(f"v_mov_b32 v144, {f32(c0)}")
    a(f"v_mov_b32 v146, {f32(c0 * 0.044715)}")
    a("v_mov_b32 v148, 1.0")
    a("v_mov_b32 v150, v59")
    for tt in range(2):
        rs = "v[58:59]" if tt == 0 else "v[150:151]"
        for half in range(2):
            U = ACC + 16 * tt + 8 * half
            T = 152
            for r in range(4):
                a(f"v_pk_fma_f32 {vr(U + 2 * r, 2)}, {vr(U + 2 * r, 2)}, {rs}, {vr(BI + 8 * half + 2 * r, 2)} op_sel_hi:[1,0,1]")
            for r in range(4):
                a(f"v_pk_mul_f32 {vr(T + 2 * r, 2)}, {vr(U + 2 * r, 2)}, {vr(U + 2 * r, 2)}")
            for r in range(4):
                a(f"v_pk_fma_f32 {vr(T + 2 * r, 2)}, {vr(T + 2 * r, 2)}, v[146:147], v[144:145] op_sel_hi:[1,0,0]")
            for r in range(4):
                a(f"v_pk_mul_f32 {vr(T + 2 * r, 2)}, {vr(T + 2 * r, 2)}, {vr(U + 2 * r, 2)}")
            for r in range(8):
                a(f"v_exp_f32 v{T + r}, v{T + r}")
            for r in range(4):
                a(f"v_pk_add_f32 {vr(T + 2 * r, 2)}, {vr(T + 2 * r, 2)}, v[148:149] op_sel_hi:[1,0]")
            for r in range(8):
                a(f"v_rcp_f32 v{T + r}, v{T + r}")
            for r in range(4):
                a(f"v_pk_mul_f32 {vr(U + 2 * r, 2)}, {vr(U + 2 * r, 2)}, {vr(T + 2 * r, 2)}")
            d = 104 + 8 * tt + 4 * half
            for r in range(4):
                a(f"v_cvt_pk_bf16_f32 v{d + r}, v{U + 2 * r}, v{U + 2 * r + 1}")
            a(f"buffer_store_dwordx4 {vr(d, 4)}, v5, {sr(SH, 4)}, s7 offen offset:{half * 2048 + tt * 1024} sc1")
    a.wait_tok(t_chunk0)
    a.wait_all(vm=False)
    a.settle()
    a.label("L_attn")
    a.reset_state()


def attention(a):
    S0, O0, Q0, KR, V0R, V1R, IDX = 16, 48, 80, 88, 92, 96, 100
    M, BUF, DEPTH, WO, XR, B2R = 104, 136, 3, 172, 236, 240
    a(f"s_and_b32 s6, s{S_WAVE}, 3")
    a(f"s_lshr_b32 s7, s{S_WAVE}, 2")
    a(f"s_mul_i32 s13, s7, {L_HI}")
    a("v_add_u32 v1, s13, v5")
    a("v_and_b32 v6, 15, v0")
    a("v_lshrrev_b32 v7, 5, v0")
    a("v_lshlrev_b32 v6, 4, v6")
    a("v_lshl_add_u32 v6, v7, 8, v6")
    a("v_and_b32 v8, 31, v0")
    a("v_add_u32 v2, 1024, v6")
    a("v_add_u32 v3, 1536, v6")
    a("v_mov_b32 v9, 2048")
    a("v_cmp_eq_u32 vcc, 16, v8")
    a("v_cndmask_b32 v2, v2, v9, vcc")
    a("v_cndmask_b32 v3, v3, v9, vcc")
    a("v_mov_b32 v9, 0x40000")
    a("v_cmp_lt_u32 vcc, 16, v8")
    a("v_cndmask_b32 v2, v2, v9, vcc")
    a("v_cndmask_b32 v3, v3, v9, vcc")
    a("v_add_u32 v2, s13, v2")
    a("v_add_u32 v3, s13, v3")
    a("s_lshl_b32 s8, s6, 11")
    a(f"s_add_u32 s8, s8, {L_QF}")
    a("v_add_u32 v4, s8, v5")
    a(f"v_mov_b32 v{IDX}, 0xdddddddd")
    for r in range(32):
        a(f"v_mov_b32 v{O0 + r}, 0")
    stamp(a)
    a("s_barrier")
    stamp(a)

    def rk(it):
        a(f"ds_read_b128 {vr(KR, 4)}, v1 offset:{it * KT}")

    def rv(it, p):
        a(f"ds_read_b128 {vr((V0R, V1R)[p], 4)}, v{2 + p} offset:{it * KT}")

    def mf(t):
        a(f"v_mfma_f32_32x32x16_bf16 {vr(S0 + 16 * (t & 1), 16)}, {vr(KR, 4)}, {vr(Q0 + 4 * (t & 1), 4)}, 0")

    def smf(t, p):
        a(f"v_smfmac_f32_32x32x32_bf16 {vr(O0 + 16 * (t & 1), 16)}, {vr((V0R, V1R)[p], 4)}, "
          f"{vr(S0 + 16 * (t & 1) + 8 * p, 8)}, v{IDX}")

    def ex(t, lo, hi):
        for i in range(lo, hi):
            r = S0 + 16 * (t & 1) + i
            a(f"v_exp_f32 v{r}, v{r}")

    NT = 64
    hooks = {(t, p): [] for t in range(NT) for p in range(4)}

    def at(t, p, fn):
        hooks[(t, p)].append(fn)

    def setup_mlp2():
        a(f"s_mul_i32 s14, s{S_J}, {HF_STRIDE}")
        a(f"s_add_u32 s14, s14, {WS_W2T}")
        srd(a, SW2, P_WS, 86 * 2048, "s14")
        a(f"s_lshl_b32 s14, s{S_J}, 16")
        a(f"s_add_u32 s14, s14, {WS_WOT}")
        srd(a, SWO, P_WS, 65536, "s14")
        a(f"s_lshl_b32 s14, s{S_TG}, 16")
        a(f"s_add_u32 s14, s14, {WS_OF}")
        srd(a, SO, P_WS, 65536, "s14")
        srd(a, SB2, P_B2, 1024)
        srd(a, SOUT, P_OUT, 2097152)

    def setup_offsets():
        a(f"s_and_b32 s72, s{S_WAVE}, 1")
        a(f"s_lshr_b32 s73, s{S_WAVE}, 1")
        a("s_lshl_b32 s8, s73, 11")
        a("s_lshl_b32 s9, s72, 10")
        a("s_add_u32 s9, s9, s8")
        a("s_lshl_b32 s10, s73, 14")
        a("s_lshl_b32 s11, s72, 10")
        a("s_add_u32 s11, s11, s10")
        a(f"s_lshl_b32 s12, s{S_TG}, 16")
        a(f"s_lshl_b32 s13, s{S_WAVE}, 13")
        a("s_add_u32 s12, s12, s13")
        a(f"s_lshl_b32 s13, s{S_J}, 7")
        a("s_add_u32 s12, s12, s13")

    def publish_h():
        a.wait_all(lg=False)
        a("s_barrier")
        a(f"s_cmp_lg_u32 s{S_WAVE}, 0")
        a("s_cbranch_scc1 L_noflag2")
        hist = list(a.hist)
        a("s_lshl_b32 s14, s2, 4")
        a(f"s_add_u32 s14, s14, {WS_FL2}")
        flag_store(a, "s14", 101)
        a.label("L_noflag2")
        a.hist = hist

    def check_h():
        poll_check(a, 244)
        a("s_cbranch_scc0 L_spin2")
        a.label("L_spin2_ret")

    def mlp2_load(i, k):
        b = BUF + 12 * (i % DEPTH)
        if k == 0:
            a(f"buffer_load_dwordx4 {vr(b, 4)}, v5, {sr(SW2, 4)}, s9 offen sc1")
            a("s_add_u32 s9, s9, 8192")
        elif k == 1:
            a(f"buffer_load_dwordx4 {vr(b + 4, 4)}, v5, {sr(SH, 4)}, s8 offen sc1")
        else:
            a(f"buffer_load_dwordx4 {vr(b + 8, 4)}, v5, {sr(SH, 4)}, s8 offen offset:1024 sc1")
            a("s_add_u32 s8, s8, 8192")

    def mlp2_mm(i, u):
        b = BUF + 12 * (i % DEPTH)
        acc = vr(M + 16 * u, 16)
        a(f"v_mfma_f32_32x32x16_bf16 {acc}, {vr(b, 4)}, {vr(b + 4 + 4 * u, 4)}, {'0' if i == 0 else acc}")

    def wo_load(n):
        a(f"buffer_load_dwordx4 {vr(WO + 4 * n, 4)}, v5, {sr(SWO, 4)}, s10 offen offset:{(n & 3) * 1024} sc1")
        if n & 3 == 3:
            a("s_add_u32 s10, s10, 4096")

    def tail_addr():
        a("v_lshrrev_b32 v10, 3, v0")
        a("v_and_b32 v11, 7, v0")
        a("v_lshlrev_b32 v12, 10, v10")
        a("v_lshl_add_u32 v12, v11, 4, v12")
        a("v_lshlrev_b32 v13, 4, v11")
        a(f"buffer_load_dwordx4 {vr(XR, 4)}, v12, {sr(SX, 4)}, s12 offen")
        a(f"buffer_load_dwordx4 {vr(B2R, 4)}, v13, {sr(SB2, 4)}, s13 offen")

    def red_addr():
        a("s_and_b32 s14, s73, 1")
        a("s_lshl_b32 s14, s14, 14")
        a("s_lshr_b32 s15, s73, 1")
        a(f"s_mul_i32 s15, s15, {L_HI}")
        a("s_add_u32 s14, s14, s15")
        a("v_and_b32 v14, 15, v0")
        a("v_xor_b32 v14, v14, v7")
        a("v_lshlrev_b32 v14, 4, v14")
        a("v_lshl_add_u32 v14, v8, 8, v14")
        a("v_add_u32 v14, s14, v14")
        a("s_lshl_b32 s15, s72, 7")
        a("v_xor_b32 v15, s15, v14")
        a("s_lshl_b32 s15, s72, 13")
        a("s_add_u32 s15, s15, 32768")
        a("v_add_u32 v14, s15, v14")

    def red_addr2():
        a(f"s_lshl_b32 s15, s{S_WAVE}, 3")
        a("v_add_u32 v10, s15, v10")
        a("v_and_b32 v248, 15, v10")
        a("v_lshlrev_b32 v11, 1, v11")
        a("v_xor_b32 v248, v248, v11")
        a("v_lshlrev_b32 v248, 4, v248")
        a("v_lshl_add_u32 v248, v10, 8, v248")
        a("v_xor_b32 v249, 16, v248")
        a(f"v_add_u32 v250, {L_HI}, v248")
        a(f"v_add_u32 v251, {L_HI}, v249")

    def m_write(q):
        if q:
            a(f"v_xor_b32 v101, {q << 5}, v15")
        ad = "v101" if q else "v15"
        for u in range(2):
            a(f"ds_write_b128 {ad}, {vr(M + 16 * u + 4 * q, 4)} offset:{u * 8192}")

    at(1, 2, setup_mlp2)
    at(2, 2, setup_offsets)
    at(6, 0, publish_h)
    at(9, 2, lambda: poll_issue(a, WS_FL2, 244))
    at(11, 3, check_h)
    T0 = 12
    for i in range(22):
        at(T0 + 2 * i, 1, lambda i=i: mlp2_load(i, 0))
        at(T0 + 2 * i, 3, lambda i=i: mlp2_load(i, 1))
        at(T0 + 2 * i + 1, 1, lambda i=i: mlp2_load(i, 2))
        at(T0 + 2 * i + 4, 2, lambda i=i: mlp2_mm(i, 0))
        at(T0 + 2 * i + 5, 2, lambda i=i: mlp2_mm(i, 1))
    at(48, 0, lambda: a("s_barrier"))
    at(50, 3, red_addr)
    for n in range(16):
        at(55 + n // 2, (1, 3)[n & 1], lambda n=n: wo_load(n))
    at(52, 3, tail_addr)
    at(53, 3, red_addr2)
    for q in range(4):
        at(60 + q, 3, lambda q=q: m_write(q))

    a(f"ds_read_b128 {vr(Q0, 4)}, v4")
    rk(0)
    a(f"ds_read_b128 {vr(Q0 + 4, 4)}, v4 offset:1024")
    rv(0, 0)
    rv(0, 1)
    mf(0)
    for t in range(NT):
        it = t >> 1
        for fn in hooks[(t, 0)]:
            fn()
        ex(t, 0, 2)
        if t > 0:
            smf(t - 1, 1)
            if t % 2 == 0:
                rv(it, 1)
        ex(t, 2, 5)
        if t + 1 < NT:
            mf(t + 1)
            if t % 2 == 0 and it + 1 < 32:
                rk(it + 1)
        ex(t, 5, 7)
        for fn in hooks[(t, 1)]:
            fn()
        ex(t, 7, 10)
        smf(t, 0)
        if t % 2 == 1 and it + 1 < 32:
            rv(it + 1, 0)
        ex(t, 10, 13)
        for fn in hooks[(t, 2)]:
            fn()
        ex(t, 13, 15)
        for fn in hooks[(t, 3)]:
            fn()
        ex(t, 15, 16)
    smf(NT - 1, 1)
    stamp(a)

    a(f"s_mul_i32 s14, s{S_WAVE}, 2304")
    a(f"s_add_u32 s14, s14, {L_XCH}")
    a(f"s_xor_b32 s15, s{S_WAVE}, 4")
    a("s_mul_i32 s15, s15, 2304")
    a(f"s_add_u32 s15, s15, {L_XCH}")
    a("v_add_u32 v1, s14, v5")
    a("v_lshl_add_u32 v2, v0, 2, s14")
    a("v_add_u32 v3, s15, v5")
    a("v_lshl_add_u32 v4, v0, 2, s15")
    a("s_cmp_eq_u32 s7, 0")
    a.settle()
    a("s_cbranch_scc1 L_lo")
    snap = a.snapshot()
    for kh in (1, 0):
        if kh == 0:
            a.label("L_lo")
            a.restore(snap)
        give, keep = O0 + 16 * (1 - kh), O0 + 16 * kh
        a(f"ds_write_b128 v1, {vr(give, 4)}")
        a(f"ds_write_b128 v1, {vr(give + 4, 4)} offset:1024")
        a(f"ds_write_b32 v2, v{give + 8} offset:2048")
        for r in range(9):
            a(f"v_mov_b32 v{S0 + r}, v{keep + r}")
        for r in range(4):
            a(f"v_mov_b32 v{S0 + 28 + r}, v{Q0 + 4 * kh + r}")
        a.wait_all(vm=False)
        a.settle()
        if kh == 1:
            a("s_branch L_join")
    a.label("L_join")
    a("s_barrier")
    stamp(a)
    a(f"ds_read_b128 {vr(O0, 4)}, v3")
    a(f"ds_read_b128 {vr(O0 + 4, 4)}, v3 offset:1024")
    a(f"ds_read_b32 v{O0 + 8}, v4 offset:2048")
    a(f"s_lshl_b32 s14, s{S_J}, 2")
    a("s_and_b32 s15, s6, 2")
    a("s_add_u32 s14, s14, s15")
    a("s_add_u32 s14, s14, s7")
    a("s_and_b32 s15, s6, 1")
    a("s_lshl_b32 s8, s14, 11")
    a("s_lshl_b32 s9, s15, 10")
    a("s_add_u32 s8, s8, s9")
    a(f"s_lshl_b32 s9, s{S_TG}, 1")
    a("s_add_u32 s9, s9, s15")
    a("s_lshl_b32 s9, s9, 5")
    a("s_add_u32 s9, s9, s14")
    a("s_lshl_b32 s9, s9, 6")
    a(f"s_add_u32 s9, s9, {WS_FL3}")
    for r in range(9):
        a(f"v_add_f32 v{O0 + r}, v{O0 + r}, v{S0 + r}")
    a(f"v_mov_b32 v101, v{O0 + 8}")
    a(f"v_permlane32_swap_b32 v{O0 + 8}, v101")
    a(f"v_max3_f32 v102, |v{O0}|, |v{O0 + 1}|, |v{O0 + 2}|")
    a(f"v_max3_f32 v102, |v{O0 + 3}|, |v{O0 + 4}|, v102")
    a(f"v_max3_f32 v102, |v{O0 + 5}|, |v{O0 + 6}|, v102")
    a(f"v_max3_f32 v102, |v{O0 + 7}|, v{O0 + 8}, v102")
    a(f"v_cmp_gt_f32 vcc, {f32(2.0 ** 100)}, v102")
    a(f"s_mov_b32 s74, {f32(2.0 ** -60)}")
    a(f"v_cmp_lt_f32 s[14:15], s74, v{O0 + 8}")
    a("s_and_b64 vcc, vcc, s[14:15]")
    a("s_cmp_eq_u64 vcc, exec")
    a.settle()
    a("s_cbranch_scc0 L_slow")
    a.label("L_fin")
    a(f"v_rcp_f32 v101, v{O0 + 8}")
    for r in range(8):
        a(f"v_mul_f32 v{O0 + r}, v{O0 + r}, v101")
    for r in range(4):
        a(f"v_cvt_pk_bf16_f32 v{S0 + r}, v{O0 + 2 * r}, v{O0 + 2 * r + 1}")
    t_o = a(f"buffer_store_dwordx4 {vr(S0, 4)}, v5, {sr(SO, 4)}, s8 offen sc1")
    R = 104
    for kq in range(4):
        for i in range(2):
            a(f"ds_read_b128 {vr(R + 8 * kq + 4 * i, 4)}, v{248 + i + 2 * (kq >> 1)} offset:{(kq & 1) * 16384}")
    G, XF, T = 80, 88, 24
    for r in range(4):
        a(f"v_lshlrev_b32 v{G + 2 * r}, 16, v{B2R + r}")
        a(f"v_and_b32 v{G + 2 * r + 1}, 0xffff0000, v{B2R + r}")
    a.wait_tok(t_o)
    flag_store(a, "s9", 101)
    a(f"s_lshl_b32 s14, s{S_TG}, 1")
    a("s_add_u32 s14, s14, s72")
    a("s_lshl_b32 s14, s14, 5")
    a("s_lshl_b32 s15, s73, 3")
    a("s_add_u32 s14, s14, s15")
    a("s_lshl_b32 s14, s14, 6")
    a(f"s_add_u32 s14, s14, {WS_FL3}")
    a("v_and_b32 v102, 7, v0")
    a("v_lshlrev_b32 v102, 6, v102")
    for r in range(4):
        a(f"v_lshlrev_b32 v{XF + 2 * r}, 16, v{XR + r}")
        a(f"v_and_b32 v{XF + 2 * r + 1}, 0xffff0000, v{XR + r}")
    for kq in range(4):
        for r in range(8):
            a(f"v_add_f32 v{G + r}, v{G + r}, v{R + 8 * kq + r}")
    for r in range(8):
        a(f"v_mul_f32 v{T + r}, {f32(-LOG2E)}, v{G + r}")
    for r in range(8):
        a(f"v_exp_f32 v{T + r}, v{T + r}")
    for r in range(8):
        a(f"v_add_f32 v{T + r}, 1.0, v{T + r}")
    for r in range(8):
        a(f"v_rcp_f32 v{T + r}, v{T + r}")
    for r in range(8):
        a(f"v_mul_f32 v{G + r}, v{G + r}, v{T + r}")
    stamp(a)
    spin(a, "L_poll3", lambda: a(f"buffer_load_dword v103, v102, {sr(SWS, 4)}, s14 offen sc1"), 103, n=1)
    stamp(a)
    OF, SA = 136, 16
    for i in range(8):
        a(f"buffer_load_dwordx4 {vr(OF + 4 * i, 4)}, v5, {sr(SO, 4)}, s11 offen offset:{(i & 1) * 2048} sc1")
        if i & 1:
            a("s_add_u32 s11, s11, 4096")
    for i in range(8):
        for u in range(2):
            acc = vr(SA + 16 * u, 16)
            a(f"v_mfma_f32_32x32x16_bf16 {acc}, {vr(WO + 8 * i + 4 * u, 4)}, {vr(OF + 4 * i, 4)}, {'0' if i == 0 else acc}")
    for u in range(2):
        for q in range(4):
            x = (u << 7) | (q << 5)
            if x:
                a(f"v_xor_b32 v{104 + 4 * u + q}, {x}, v14")
    for u in range(2):
        for q in range(4):
            ad = f"v{104 + 4 * u + q}" if (u or q) else "v14"
            a(f"ds_write_b128 {ad}, {vr(SA + 16 * u + 4 * q, 4)}")
    a.wait_all(vm=False)
    stamp(a)
    a("s_barrier")
    for kq in range(4):
        for i in range(2):
            a(f"ds_read_b128 {vr(R + 8 * kq + 4 * i, 4)}, v{248 + i + 2 * (kq >> 1)} offset:{32768 + (kq & 1) * 16384}")
    for kq in range(1, 4):
        for r in range(8):
            a(f"v_add_f32 v{R + r}, v{R + r}, v{R + 8 * kq + r}")
    for r in range(8):
        a(f"v_fmac_f32 v{XF + r}, v{R + r}, v{G + r}")
    for r in range(4):
        a(f"v_cvt_pk_bf16_f32 v{XR + r}, v{XF + 2 * r}, v{XF + 2 * r + 1}")
    a(f"buffer_store_dwordx4 {vr(XR, 4)}, v12, {sr(SOUT, 4)}, s12 offen")
    if STAMPS:
        a.wait_all()
        stamp_flush(a)
    a("s_endpgm")

    a.label("L_spin2")
    a.reset_state()
    spin(a, "L_poll2", lambda: poll_issue(a, WS_FL2, 244), 244)
    a("s_branch L_spin2_ret")

    a.label("L_slow")
    a.reset_state()
    QS, C0 = S0 + 28, 64
    a("v_mov_b32 v101, 0xff800000")
    a("s_mov_b32 s74, 0")
    a.settle()
    a.label("L_p1")
    a(f"s_add_u32 s75, s74, {WS_KF}")
    a(f"buffer_load_dwordx4 {vr(KR, 4)}, v5, {sr(SWS, 4)}, s75 offen sc1")
    a(f"v_mfma_f32_32x32x16_bf16 {vr(S0, 16)}, {vr(KR, 4)}, {vr(QS, 4)}, 0")
    for r in range(8):
        a(f"v_max3_f32 v101, v{S0 + 2 * r}, v{S0 + 2 * r + 1}, v101")
    a("s_add_u32 s74, s74, 1024")
    a("s_cmp_lt_u32 s74, 65536")
    a.settle()
    a("s_cbranch_scc1 L_p1")
    a("v_mov_b32 v102, v101")
    a("v_permlane32_swap_b32 v101, v102")
    a("v_max_f32 v101, v101, v102")
    for r in range(16):
        a(f"v_sub_f32 v{C0 + r}, 0, v101")
        a(f"v_mov_b32 v{O0 + r}, 0")
    for r in range(8):
        a(f"v_mov_b32 v{V0R + r}, 0x3f803f80")
    a("s_mov_b32 s74, 0")
    a("s_mov_b32 s14, 0x0000ffff")
    a("s_mov_b32 s15, 0x0000ffff")
    a.settle()
    a.label("L_p2")
    a(f"s_add_u32 s75, s74, {WS_KF}")
    a(f"buffer_load_dwordx4 {vr(KR, 4)}, v5, {sr(SWS, 4)}, s75 offen sc1")
    a(f"s_add_u32 s75, s74, {WS_VF}")
    a("s_mov_b64 exec, s[14:15]")
    a(f"buffer_load_dwordx4 {vr(V0R, 4)}, v6, {sr(SWS, 4)}, s75 offen sc1")
    a(f"buffer_load_dwordx4 {vr(V1R, 4)}, v6, {sr(SWS, 4)}, s75 offen offset:512 sc1")
    a("s_mov_b64 exec, -1")
    a(f"v_mfma_f32_32x32x16_bf16 {vr(S0, 16)}, {vr(KR, 4)}, {vr(QS, 4)}, {vr(C0, 16)}")
    ex(0, 0, 16)
    smf(0, 0)
    smf(0, 1)
    a("s_add_u32 s74, s74, 1024")
    a("s_cmp_lt_u32 s74, 65536")
    a.wait_all()
    a.settle()
    a("s_cbranch_scc1 L_p2")
    a("s_branch L_fin")


def descriptor(name):
    return f""".section .rodata,"a"
.p2align 6
.amdhsa_kernel {name}
  .amdhsa_next_free_vgpr 256
  .amdhsa_next_free_sgpr 96
  .amdhsa_accum_offset 256
  .amdhsa_group_segment_fixed_size 0
  .amdhsa_kernarg_size 104
  .amdhsa_user_sgpr_count 2
  .amdhsa_user_sgpr_kernarg_segment_ptr 1
  .amdhsa_system_sgpr_workgroup_id_x 1
  .amdhsa_float_denorm_mode_32 3
.end_amdhsa_kernel
"""


def main(out):
    a = Asm()
    hdr = open("cdna_kernels/" + NAME + ".s.ref").read().split("; Override launch")[0]
    a.raw(hdr.rstrip())
    a.raw("; @launch grid=(256,1,1) block=(512,1,1) lds=163840")
    a.raw('.amdgcn_target "amdgcn-amd-amdhsa--gfx950"\n.text')
    gen(a)
    a.raw(descriptor(KN))
    open(out, "w").write(a.text())
    print("written", out, "nop states", a.nops, "stamps", _stamp["n"])


if __name__ == "__main__":
    STAMPS = len(sys.argv) > 2
    main(sys.argv[1])
```

```python
import struct
import sys
from asmgen import Asm, vr, sr

NAME = "recurrent_scan__grouped_kv_mqa__mixer_channel_mlp__prompt"
KN = NAME + "_kernel"

WS_KF = 0x000000
WS_VF = 0x010000
WS_E = 0x020000
WS_FL1 = 0x021000
WS_FL2 = 0x028000
WS_FL3 = 0x040000
WS_HF = 0x400000
HF_STRIDE = 0x2C000
WS_W2T = 0xA00000
WS_WOT = 0xC00000
WS_OF = 0xD00000
WS_ST = 0xF00000
WS_SIZE = 0x1000000

P_X, P_WQ, P_WK, P_WV, P_WO, P_BX, P_W1, P_B1, P_W2, P_B2, P_OUT, P_DBG, P_WS = range(16, 42, 2)
S_WAVE, S_TG, S_J, S_TAG, S_ROLE, S_ROT, S_KROT, S_KIND = 3, 4, 5, 84, 42, 43, 75, 88
S_OOFF = 89
SX, SW, SKV, SWS, ST, SB1, SH = 44, 48, 52, 56, 60, 64, 68
SW2, SWO, SO, SOUT, SB2 = 52, 60, 64, 76, 80

KT = 2064
L_XC, L_RING, L_QF, L_STATS, L_CS = 0, 32 * KT, 147968, 156160, 157184
L_CNT = 158208
L_XCH = 131584
L_MP = L_RING
SPIN_LIMIT = 200000

LOG2E = 1.4426950408889634
STAMPS = False
OPT = {}
_stamp = {"n": 0}


def f32(x):
    return "0x%08x" % struct.unpack("<I", struct.pack("<f", x))[0]


def srd(a, dst, ptr, size, off=None):
    if off is None:
        a(f"s_mov_b32 s{dst}, s{ptr}")
        a(f"s_mov_b32 s{dst + 1}, s{ptr + 1}")
    else:
        a(f"s_add_u32 s{dst}, s{ptr}, {off}")
        a(f"s_addc_u32 s{dst + 1}, s{ptr + 1}, 0")
    a(f"s_mov_b32 s{dst + 2}, {size}")
    a(f"s_mov_b32 s{dst + 3}, 0x00020000")


def csel(a, dst, if_true, if_false):
    a(f"s_mov_b32 s{dst}, {if_false}")
    a(f"s_cselect_b32 s{dst}, {if_true}, s{dst}")


def stamp(a, n=None):
    if not STAMPS:
        return
    if n is None:
        n = _stamp["n"]
        _stamp["n"] += 1
    a("s_memrealtime s[92:93]")
    a("s_memtime s[94:95]")
    a.wait_all(vm=False)
    a(f"v_writelane_b32 v255, s92, {2 * n}")
    a(f"v_writelane_b32 v255, s94, {2 * n + 1}")


def stamp_flush(a):
    if not STAMPS:
        return
    stamp(a)
    a("s_lshl_b32 s92, s2, 3")
    a(f"s_add_u32 s92, s92, s{S_WAVE}")
    a("s_lshl_b32 s92, s92, 8")
    a(f"s_add_u32 s92, s92, {WS_ST}")
    a("v_lshlrev_b32 v254, 2, v0")
    a(f"buffer_store_dword v255, v254, {sr(SWS, 4)}, s92 offen")


def poll_issue(a, base, vt):
    t = None
    a(f"s_mov_b32 s85, {base}")
    for i in range(4):
        t = a(f"buffer_load_dword v{vt + i}, v5, {sr(SWS, 4)}, s85 offen offset:{1024 * i} sc1")
    return t


def poll_check(a, vt, n=4):
    for i in range(n):
        a(f"v_xor_b32 v{vt + i}, s{S_TAG}, v{vt + i}")
    if n == 2:
        a(f"v_or_b32 v{vt}, v{vt}, v{vt + 1}")
    if n == 4:
        a(f"v_or3_b32 v{vt}, v{vt}, v{vt + 1}, v{vt + 2}")
        a(f"v_or_b32 v{vt}, v{vt}, v{vt + 3}")
    a(f"v_cmp_eq_u32 vcc, 0, v{vt}")
    a("s_cmp_eq_u64 vcc, exec")


def spin(a, label, issue, vt, n=4):
    a("s_mov_b32 s86, 0")
    a.settle()
    a.label(label)
    issue()
    a("s_add_u32 s86, s86, 1")
    poll_check(a, vt, n)
    a.settle()
    a(f"s_cbranch_scc1 {label}_ok")
    a("s_sleep 4")
    a(f"s_cmp_lt_u32 s86, {SPIN_LIMIT}")
    a(f"s_cbranch_scc1 {label}")
    a.label(f"{label}_ok")


def flag_store(a, soff, vtmp):
    a(f"v_mov_b32 v{vtmp}, s{S_TAG}")
    a("s_mov_b64 exec, 1")
    a(f"buffer_store_dword v{vtmp}, v5, {sr(SWS, 4)}, {soff} offen sc1")
    a("s_mov_b64 exec, -1")


def gen(a):
    name = KN
    a.raw(f".globl {name}\n.p2align 8\n.type {name},@function\n{name}:")
    a("s_cmp_ge_u32 s2, 256")
    a("s_cbranch_scc1 L_end")
    stamp(a)
    a("s_load_dwordx16 s[16:31], s[0:1], 0")
    a("s_load_dwordx8 s[32:39], s[0:1], 64")
    a("s_load_dwordx2 s[40:41], s[0:1], 96")
    a("v_lshrrev_b32 v1, 6, v0")
    a("v_and_b32 v0, 63, v0")
    a(f"v_readfirstlane_b32 s{S_WAVE}, v1")
    if OPT.get("map", 0) == 0:
        a(f"s_and_b32 s{S_TG}, s2, 7")
        a(f"s_lshl_b32 s{S_TG}, s{S_TG}, 2")
        a("s_bfe_u32 s6, s2, 0x20003")
        a(f"s_add_u32 s{S_TG}, s{S_TG}, s6")
        a(f"s_lshr_b32 s{S_J}, s2, 5")
        a("s_lshl_b32 s6, s6, 1")
        a(f"s_add_u32 s{S_ROT}, s6, s{S_J}")
    else:
        a(f"s_bfe_u32 s{S_TG}, s2, 0x20001")
        a(f"s_lshl_b32 s{S_TG}, s{S_TG}, 3")
        a("s_bfe_u32 s6, s2, 0x30003")
        a(f"s_add_u32 s{S_TG}, s{S_TG}, s6")
        a(f"s_and_b32 s{S_J}, s2, 1")
        a(f"s_lshl_b32 s{S_J}, s{S_J}, 2")
        a("s_lshr_b32 s7, s2, 6")
        a(f"s_add_u32 s{S_J}, s{S_J}, s7")
        a("s_lshl_b32 s7, s7, 1")
        a(f"s_add_u32 s{S_ROT}, s6, s7")
    a(f"s_and_b32 s{S_ROT}, s{S_ROT}, {7 if OPT.get('rot', 1) else 0}")
    a(f"s_lshr_b32 s{S_KROT}, s2, 3")
    a(f"s_and_b32 s{S_KROT}, s{S_KROT}, {31 if OPT.get('krot', 1) else 0}")
    a(f"s_cmp_eq_u32 s{S_J}, 7")
    a("s_cselect_b32 s6, 4, 0")
    a(f"s_xor_b32 s{S_ROLE}, s{S_WAVE}, s6")
    front(a)
    attention(a)
    a.label("L_end")
    a("s_endpgm")


def front(a):
    ACC, X = 64, 16
    RS = 10
    PRE = OPT.get('pre', 4)
    a("v_lshrrev_b32 v2, 3, v0")
    a("v_and_b32 v3, 7, v0")
    a(f"s_and_b32 s7, s{S_WAVE}, 1")
    a("s_lshl_b32 s7, s7, 2")
    a("v_lshrrev_b32 v4, 4, v0")
    a("v_or_b32 v4, s7, v4")
    a("v_xor_b32 v4, v4, v3")
    a("v_lshlrev_b32 v4, 4, v4")
    a("v_lshl_add_u32 v4, v2, 10, v4")
    a(f"s_lshl_b32 s6, s{S_TG}, 16")
    a(f"s_lshl_b32 s7, s{S_WAVE}, 13")
    a("s_add_u32 s6, s6, s7")
    a("v_lshlrev_b32 v5, 4, v0")
    a("v_lshrrev_b32 v6, 2, v0")
    a("v_and_b32 v7, 3, v0")
    srd(a, SX, P_X, 2097152)
    t_x = []
    for i in range(8):
        a(f"s_add_u32 s8, s{S_ROT}, {i}")
        a("s_and_b32 s8, s8, 7")
        a("s_lshl_b32 s8, s8, 7")
        a("s_add_u32 s8, s8, s6")
        a(f"s_add_u32 m0, s7, {1024 * i}")
        t_x.append(a(f"buffer_load_dwordx4 v4, {sr(SX, 4)}, s8 offen lds"))
    srd(a, SWS, P_WS, WS_SIZE)
    a(f"s_mul_i32 s9, s{S_J}, 6")
    a(f"s_add_u32 s9, s9, s{S_ROLE}")
    a(f"s_cmp_gt_u32 s{S_J}, 3")
    a("s_cselect_b32 s10, 3, 2")
    a("s_sub_u32 s9, s9, s10")
    a("s_max_i32 s9, s9, 0")
    a("s_cmp_lt_u32 s9, 43")
    a(f"s_cselect_b32 s{S_KIND}, 0, 1")
    a(f"s_lshl_b32 s10, s{S_J}, 3")
    a(f"s_add_u32 s10, s10, s{S_ROLE}")
    a("s_cmp_eq_u32 s10, 31")
    a(f"s_cselect_b32 s{S_KIND}, 2, s{S_KIND}")
    a(f"s_lshl_b32 s10, s{S_J}, 1")
    a(f"s_add_u32 s10, s10, s{S_ROLE}")
    a(f"s_cmp_lt_u32 s{S_ROLE}, 2")
    a(f"s_cselect_b32 s{SW}, s{P_WQ}, s{P_W1}")
    a(f"s_cselect_b32 s{SW + 1}, s{P_WQ + 1}, s{P_W1 + 1}")
    csel(a, SW + 2, 524288, 1409024)
    a(f"s_mov_b32 s{SW + 3}, 0x00020000")
    csel(a, 11, 1024, 2752)
    a("s_cselect_b32 s15, s10, s9")
    a("s_lshl_b32 s15, s15, 6")
    a("s_lshl_b32 s13, s11, 4")
    a(f"s_lshl_b32 s12, s{S_ROT}, 2")
    a("s_mov_b32 s73, 31")
    a("v_mul_u32_u24 v8, s11, v6")
    a("v_lshl_add_u32 v8, v7, 4, v8")
    a(f"s_cmp_eq_u32 s{S_KIND}, 0")
    a("s_cbranch_scc1 L_stdw")
    a(f"s_cmp_lt_u32 s{S_ROLE}, 6")
    a(f"s_cselect_b32 s{SW}, s{P_WK}, s{P_WV}")
    a(f"s_cselect_b32 s{SW + 1}, s{P_WK + 1}, s{P_WV + 1}")
    a(f"s_cmp_eq_u32 s{S_KIND}, 2")
    a(f"s_cselect_b32 s{SW + 2}, 0, 16384")
    a(f"s_and_b32 s12, s{S_ROLE}, 1")
    a("s_lshl_b32 s12, s12, 2")
    a(f"s_add_u32 s12, s12, s{S_ROT}")
    a("s_lshl_b32 s12, s12, 1")
    a("s_mov_b32 s73, 15")
    a("s_mov_b32 s15, 0")
    a("s_mov_b32 s13, 1024")
    a("v_mov_b32 v8, v5")
    a.label("L_stdw")
    a(f"s_mul_i32 s14, s{S_WAVE}, {RS * 1024}")
    a(f"s_add_u32 s14, s14, {L_RING}")
    a("s_barrier")
    a(f"v_mov_b32 v1, {WS_E}")
    a(f"buffer_load_dword v1, v1, {sr(SWS, 4)}, 0 offen sc1")
    dma = {}

    def issue_w(ks):
        a("s_and_b32 s74, s12, s73")
        a("s_mul_i32 s74, s74, s13")
        a("s_add_u32 s74, s74, s15")
        a(f"s_add_u32 m0, s14, {(ks % RS) * 1024}")
        a("s_add_u32 s12, s12, 1")
        dma[ks] = a(f"buffer_load_dwordx4 v8, {sr(SW, 4)}, s74 offen lds")

    for ks in range(PRE):
        issue_w(ks)
    if OPT.get("pf", 0):
        a(f"s_lshl_b32 s8, s{S_J}, 3")
        a(f"s_add_u32 s8, s8, s{S_ROLE}")
        a("s_sub_u32 s8, s8, 56")
        a("s_cmp_ge_u32 s8, 2")
        a("s_cbranch_scc1 L_nopf")
        st_ = a.snapshot()
        a(f"s_and_b32 s10, s{S_TG}, 3")
        a("s_lshl_b32 s10, s10, 1")
        a("s_add_u32 s8, s8, s10")
        a("s_lshl_b32 s8, s8, 16")
        a("s_add_u32 s8, s8, 384")
        a("v_lshlrev_b32 v209, 10, v0")
        a(f"buffer_load_dword v209, v209, {sr(SW, 4)}, s8 offen")
        a.label("L_nopf")
        a.restore(st_)
    a("v_lshlrev_b32 v9, 10, v6")
    a("v_lshl_add_u32 v9, v7, 4, v9")
    a(f"s_lshl_b32 s76, s{S_TG}, 3")
    a(f"s_add_u32 s76, s76, s{S_WAVE}")
    a("s_sub_u32 s77, s76, 172")
    a("s_cmp_lt_u32 s76, 172")
    a(f"s_cselect_b32 s{ST}, s{P_W2}, s{P_WO}")
    a(f"s_cselect_b32 s{ST + 1}, s{P_W2 + 1}, s{P_WO + 1}")
    csel(a, ST + 2, 1409024, 524288)
    a(f"s_mov_b32 s{ST + 3}, 0x00020000")
    a("s_cselect_b32 s77, s76, s77")
    csel(a, 78, HF_STRIDE, 65536)
    csel(a, 79, WS_W2T, WS_WOT)
    a("s_lshr_b32 s80, s77, 1")
    a("s_and_b32 s81, s77, 1")
    a("s_lshl_b32 s82, s80, 14")
    a("s_lshl_b32 s83, s81, 6")
    a("s_add_u32 s82, s82, s83")
    a(f"s_lshl_b32 s83, s{S_J}, 7")
    a("s_add_u32 s82, s82, s83")
    a(f"s_mul_i32 s83, s{S_J}, s78")
    a("s_add_u32 s79, s79, s83")
    a("s_lshl_b32 s83, s77, 10")
    a("s_add_u32 s79, s79, s83")
    a("s_cmp_lt_u32 s76, 236")
    a(f"s_cselect_b32 s79, s79, {WS_SIZE}")
    a("v_add_u32 v11, s7, v5")
    a(f"s_lshl_b32 s8, s{S_WAVE}, 5")
    a(f"s_add_u32 s8, s8, {L_STATS}")
    a("v_lshl_add_u32 v12, v2, 2, s8")
    a("v_and_b32 v13, 31, v0")
    a("v_lshrrev_b32 v14, 5, v0")
    a("v_bfe_u32 v52, v0, 1, 3")
    a("v_xor_b32 v52, v52, v14")
    a("v_bfe_u32 v53, v0, 3, 2")
    a("v_lshlrev_b32 v53, 13, v53")
    a("v_lshl_add_u32 v53, v3, 7, v53")
    for c in range(4):
        a(f"v_xor_b32 v15, {2 * c}, v52")
        a(f"v_lshl_add_u32 v{60 + c}, v15, 4, v53")
    a("v_bfe_u32 v52, v0, 2, 2")
    a("v_bfe_u32 v53, v0, 4, 1")
    a("v_lshlrev_b32 v15, 3, v7")
    a("v_lshl_add_u32 v15, v52, 6, v15")
    a("v_lshl_add_u32 v15, v53, 5, v15")
    a("v_add_u32 v15, s14, v15")
    a("v_lshl_add_u32 v7, v14, 8, v15")
    a("v_lshl_add_u32 v6, v14, 9, v15")
    a("v_lshlrev_b32 v57, 2, v13")
    a(f"v_add_u32 v57, {L_STATS}, v57")
    a(f"s_lshl_b32 s8, s{S_WAVE}, 7")
    a(f"s_add_u32 s8, s8, {L_CS}")
    a("v_and_b32 v52, 15, v0")
    a("v_lshrrev_b32 v53, 4, v0")
    a("v_lshlrev_b32 v54, 6, v52")
    a("v_lshl_add_u32 v54, v53, 4, v54")
    a("v_add_u32 v54, s8, v54")
    a("v_mov_b32 v15, 0x40000")
    a("v_cmp_gt_u32 vcc, 2, v52")
    a("v_cndmask_b32 v54, v15, v54, vcc")
    a("v_and_b32 v53, 1, v53")
    a("v_cmp_eq_u32 vcc, v53, v52")
    a("v_mov_b32 v15, 0x3f803f80")
    for r in range(4):
        a(f"v_cndmask_b32 v{200 + r}, 0, v15, vcc")
    a("v_lshl_add_u32 v55, v14, 4, s8")
    a("v_lshlrev_b32 v10, 7, v13")
    a(f"v_mov_b32 v15, {L_CNT}")
    a("v_mov_b32 v52, 0")
    a("ds_write2_b32 v15, v52, v52 offset0:0 offset1:1")
    a("s_mov_b32 s72, 0x3f803f80")
    srd(a, SB1, P_B1, 2752)
    a(f"s_mul_i32 s8, s{S_TG}, {HF_STRIDE}")
    a(f"s_add_u32 s8, s8, {WS_HF}")
    srd(a, SH, P_WS, 86 * 2048, "s8")
    for i in range(8):
        a.wait_tok(t_x[i])
        a(f"ds_read_b128 {vr(X + 4 * i, 4)}, v11 offset:{1024 * i}")
    stamp(a)
    nxt = PRE
    for r in range(32):
        a(f"v_dot2_f32_bf16 v48, v{X + r}, s72, {'v48' if r else '0'}")
        a(f"v_dot2_f32_bf16 v49, v{X + r}, v{X + r}, {'v49' if r else '0'}")
        if r % 4 == 3 and nxt < RS and OPT.get("late", 0) == 0:
            issue_w(nxt)
            nxt += 1
    for mod in ("quad_perm:[1,0,3,2]", "quad_perm:[2,3,0,1]", "row_half_mirror"):
        for r in (48, 49):
            a(f"v_add_f32_dpp v{r}, v{r}, v{r} {mod} row_mask:0xf bank_mask:0xf")
    a(f"v_mul_f32 v48, {f32(-1.0 / 512)}, v48")
    a(f"v_mul_f32 v49, {f32(1.0 / 512)}, v49")
    a("v_fma_f32 v49, -v48, v48, v49")
    a("v_max_f32 v49, 0, v49")
    a(f"v_add_f32 v50, {f32(1e-5)}, v49")
    a("v_rsq_f32 v50, v50")
    a("v_mul_f32 v51, v49, v50")
    a(f"v_fmaak_f32 v51, v51, v50, {f32(1e-5)}")
    a("v_rsq_f32 v51, v51")
    a("v_mul_f32 v51, v51, v50")
    a("ds_write2_b32 v12, v50, v51 offset0:0 offset1:64")
    a("ds_write_b32 v12, v48 offset:512")
    for ks in range(nxt, RS):
        issue_w(ks)
    a(f"v_readfirstlane_b32 s{S_TAG}, v1")
    a(f"s_mul_i32 s{S_TAG}, s{S_TAG}, 0x9e3779b1")
    a(f"s_add_u32 s{S_TAG}, s{S_TAG}, 0x7f4a7c15")
    a(f"s_cmp_lg_u32 s{S_KIND}, 1")
    a("s_cbranch_scc1 L_nokvw")
    a.raw("    s_waitcnt vmcnt(2)")
    a.label("L_nokvw")
    a.wait_all(vm=False)
    stamp(a)
    a("s_barrier")
    stamp(a)

    def t_issue():
        a(f"s_add_u32 m0, s14, {(RS - 1) * 1024}")
        return a(f"buffer_load_dwordx4 v9, {sr(ST, 4)}, s82 offen lds")

    def t_task(t_tr):
        a.wait_tok(t_tr)
        a(f"ds_read_b64_tr_b16 v[128:129], v7 offset:{(RS - 1) * 1024}")
        a(f"ds_read_b64_tr_b16 v[130:131], v7 offset:{(RS - 1) * 1024 + 512}")
        a(f"buffer_store_dwordx4 v[128:131], v5, {sr(SWS, 4)}, s79 offen sc1")

    def poll1_issue():
        a(f"s_mov_b32 s85, {WS_FL1}")
        a(f"buffer_load_dword v132, v10, {sr(SWS, 4)}, s85 offen sc1")

    def colsum_finish():
        a("ds_write_b128 v54, v[204:207]")

    def colsum_spread(dst, n):
        for q in range(n):
            a(f"ds_read_b128 {vr(dst + 4 * q, 4)}, v55 offset:{32 * q}")

    def kv_dma():
        a(f"s_and_b32 s10, s{S_WAVE}, 1")
        a("s_lshl_b32 s10, s10, 15")
        a(f"s_lshr_b32 s12, s{S_WAVE}, 1")
        a("s_lshl_b32 s12, s12, 2")
        a(f"s_add_u32 s12, s12, s{S_KROT}")
        t = None
        for s in range(4):
            a(f"s_add_u32 s11, s12, {s}")
            a("s_and_b32 s11, s11, 31")
            a("s_lshl_b32 s11, s11, 10")
            a("s_add_u32 s11, s11, s10")
            a(f"s_add_u32 m0, s14, {s * KT}")
            a(f"s_add_u32 s13, s11, {WS_VF}")
            a(f"buffer_load_dwordx4 v5, {sr(SWS, 4)}, s11 offen sc1 lds")
            a(f"s_add_u32 m0, s14, {s * KT + 1024}")
            t = a(f"buffer_load_dwordx4 v5, {sr(SWS, 4)}, s13 offen sc1 lds")
        for r in range(4):
            a(f"v_mov_b32 v{136 + r}, 0x3f803f80")
        a("v_and_b32 v140, 3, v0")
        a(f"v_mul_u32_u24 v140, {KT}, v140")
        a("v_add_u32 v140, s14, v140")
        a("ds_write_b128 v140, v[136:139] offset:2048")
        return t

    def gelu(packed):
        a("ds_read2_b32 v[58:59], v57 offset0:64 offset1:96")
        a("ds_read2_b32 v[160:161], v57 offset0:128 offset1:160")
        a("s_lshl_b32 s7, s9, 12")
        BI = 176
        for q in range(8):
            a(f"v_lshlrev_b32 v{BI + 2 * q}, 16, v{120 + q}")
            a(f"v_and_b32 v{BI + 2 * q + 1}, 0xffff0000, v{120 + q}")
        c0 = -2.0 * 0.7978845608028654 * LOG2E
        a(f"v_mov_b32 v168, {f32(c0 * 0.044715)}")
        if packed:
            a(f"v_mov_b32 v170, {f32(c0)}")
            a("v_mov_b32 v172, 1.0")
            a("v_mov_b32 v162, v59")
            a("v_mov_b32 v164, v161")
        for tt in range(2):
            for half in range(2):
                U = ACC + 16 * tt + 8 * half
                T = 192
                if (tt, half) == (1, 0):
                    t_task(t_tr)
                if packed:
                    rs, nm = ("v[58:59]", "v[160:161]") if tt == 0 else ("v[162:163]", "v[164:165]")
                    P = lambda b, r: vr(b + 2 * r, 2)
                    for r in range(4):
                        a(f"v_pk_fma_f32 {P(U, r)}, {P(144 + 8 * half, r)}, {nm}, {P(U, r)} op_sel_hi:[1,0,1]")
                    for r in range(4):
                        a(f"v_pk_fma_f32 {P(U, r)}, {P(U, r)}, {rs}, {P(BI + 8 * half, r)} op_sel_hi:[1,0,1]")
                    for r in range(4):
                        a(f"v_pk_mul_f32 {P(T, r)}, {P(U, r)}, {P(U, r)}")
                    for r in range(4):
                        a(f"v_pk_fma_f32 {P(T, r)}, {P(T, r)}, v[168:169], v[170:171] op_sel_hi:[1,0,0]")
                    for r in range(4):
                        a(f"v_pk_mul_f32 {P(T, r)}, {P(T, r)}, {P(U, r)}")
                    for r in range(8):
                        a(f"v_exp_f32 v{T + r}, v{T + r}")
                    for r in range(4):
                        a(f"v_pk_add_f32 {P(T, r)}, {P(T, r)}, v[172:173] op_sel_hi:[1,0]")
                    for r in range(8):
                        a(f"v_rcp_f32 v{T + r}, v{T + r}")
                    for r in range(4):
                        a(f"v_pk_mul_f32 {P(U, r)}, {P(U, r)}, {P(T, r)}")
                    d = 104 + 8 * tt + 4 * half
                    for r in range(4):
                        a(f"v_cvt_pk_bf16_f32 v{d + r}, v{U + 2 * r}, v{U + 2 * r + 1}")
                    a(f"buffer_store_dwordx4 {vr(d, 4)}, v5, {sr(SH, 4)}, s7 offen offset:{half * 2048 + tt * 1024} sc1")
                    continue
                for r in range(8):
                    a(f"v_fmac_f32 v{U + r}, v{144 + 8 * half + r}, v{160 + tt}")
                for r in range(8):
                    a(f"v_fma_f32 v{U + r}, v{U + r}, v{58 + tt}, v{BI + 8 * half + r}")
                for r in range(8):
                    a(f"v_mul_f32 v{T + r}, v{U + r}, v{U + r}")
                for r in range(8):
                    a(f"v_fmaak_f32 v{T + r}, v{T + r}, v168, {f32(c0)}")
                for r in range(8):
                    a(f"v_mul_f32 v{T + r}, v{T + r}, v{U + r}")
                for r in range(8):
                    a(f"v_exp_f32 v{T + r}, v{T + r}")
                for r in range(8):
                    a(f"v_add_f32 v{T + r}, 1.0, v{T + r}")
                for r in range(8):
                    a(f"v_rcp_f32 v{T + r}, v{T + r}")
                for r in range(8):
                    a(f"v_mul_f32 v{U + r}, v{U + r}, v{T + r}")
                d = 104 + 8 * tt + 4 * half
                for r in range(4):
                    a(f"v_cvt_pk_bf16_f32 v{d + r}, v{U + 2 * r}, v{U + 2 * r + 1}")
                a(f"buffer_store_dwordx4 {vr(d, 4)}, v5, {sr(SH, 4)}, s7 offen offset:{half * 2048 + tt * 1024} sc1")

    a(f"s_cmp_eq_u32 s{S_KIND}, 0")
    a.settle()
    a("s_cbranch_scc0 L_spare")
    snap0 = a.snapshot()

    def reads(ks):
        ab, bb = 96 + 4 * (ks & 1), 104 + 8 * (ks & 1)
        a.wait_tok(dma[ks])
        a(f"ds_read_b64_tr_b16 {vr(ab, 2)}, v6 offset:{(ks % RS) * 1024}")
        t = a(f"ds_read_b64_tr_b16 {vr(ab + 2, 2)}, v6 offset:{(ks % RS) * 1024 + 256}")
        for tt in range(2):
            a(f"ds_read_b128 {vr(bb + 4 * tt, 4)}, v{60 + (ks & 3)} offset:{tt * 32768 + (ks >> 2) * 1024}")
        return t

    a(f"s_cmp_lg_u32 s{S_J}, 7")
    a("s_cbranch_scc1 L_nohold")
    a("s_barrier")
    a.label("L_nohold")
    tk = {0: reads(0)}
    LOCK = OPT.get("lock", 0)
    nlock = 0
    for ks in range(32):
        if LOCK and ks % LOCK == 0 and 0 < ks < 24:
            a("s_barrier")
            nlock += 1
        if ks + 1 < 32:
            tk[ks + 1] = reads(ks + 1)
        ab, bb = 96 + 4 * (ks & 1), 104 + 8 * (ks & 1)
        a(f"v_mfma_f32_16x16x32_bf16 v[204:207], {vr(ab, 4)}, v[200:203], {'0' if ks == 0 else 'v[204:207]'}")
        for tt in range(2):
            acc = vr(ACC + 16 * tt, 16)
            a(f"v_mfma_f32_32x32x16_bf16 {acc}, {vr(ab, 4)}, {vr(bb + 4 * tt, 4)}, {'0' if ks == 0 else acc}")
            if tt == 0:
                a.wait_tok(tk[ks])
                if ks + RS < 32:
                    issue_w(ks + RS)
                elif ks + RS == 32:
                    a("s_lshl_b32 s7, s9, 6")
                    a("v_lshlrev_b32 v56, 3, v14")
                    for q in range(4):
                        a(f"buffer_load_dwordx2 {vr(120 + 2 * q, 2)}, v56, {sr(SB1, 4)}, s7 offen offset:{16 * q}")
                elif ks == OPT.get("pollks", 27):
                    a(f"s_cmp_ge_u32 s{S_WAVE}, 2")
                    a("s_cbranch_scc1 L_nopre")
                    st_ = a.snapshot()
                    poll1_issue()
                    a.label("L_nopre")
                    a.restore(st_)
                elif ks == 29:
                    t_tr = t_issue()
    stamp(a, 4)
    a("s_mov_b32 s73, 0")
    a(f"s_cmp_ge_u32 s{S_WAVE}, 2")
    a.settle()
    a("s_cbranch_scc1 L_noearly")
    st_ = a.snapshot()
    a.raw("    s_waitcnt vmcnt(1)")
    poll_check(a, 132, 1)
    a.settle()
    a("s_cbranch_scc0 L_noearly")
    stamp(a, 21)
    a("s_mov_b32 s73, 1")
    kv_dma()
    a.settle()
    a.label("L_noearly")
    a.restore(st_)
    colsum_finish()
    colsum_spread(144, 4)
    a(f"s_cmp_lt_u32 s{S_ROLE}, 2")
    a.settle()
    a("s_cbranch_scc0 L_mlp")
    snap = a.snapshot()
    a("ds_read2_b32 v[58:59], v57 offset0:0 offset1:32")
    a("ds_read2_b32 v[160:161], v57 offset0:128 offset1:160")
    a(f"s_lshl_b32 s8, s{S_ROLE}, 12")
    a(f"s_add_u32 s8, s8, {L_QF}")
    a("v_add_u32 v56, s8, v5")
    a(f"v_mul_f32 v58, {f32(0.25 * LOG2E)}, v58")
    a(f"v_mul_f32 v59, {f32(0.25 * LOG2E)}, v59")
    for tt in range(2):
        for r in range(16):
            a(f"v_fmac_f32 v{ACC + 16 * tt + r}, v{144 + r}, v{160 + tt}")
        for r in range(16):
            a(f"v_mul_f32 v{ACC + 16 * tt + r}, v{ACC + 16 * tt + r}, v{58 + tt}")
        for ab in range(2):
            d = 104 + 8 * tt + 4 * ab
            for r in range(4):
                s0 = ACC + 16 * tt + 8 * ab + 2 * r
                a(f"v_cvt_pk_bf16_f32 v{d + r}, v{s0}, v{s0 + 1}")
            a(f"ds_write_b128 v56, {vr(d, 4)} offset:{(2 * tt + ab) * 1024}")
    t_task(t_tr)
    a.settle()
    a("s_branch L_done")

    a.label("L_mlp")
    a.restore(snap)
    a(f"s_cmp_ge_u32 s{S_WAVE}, 4")
    a("s_cbranch_scc1 L_young")
    gelu(bool(LOCK))
    a.settle()
    a("s_branch L_done")
    a.label("L_young")
    a.restore(snap)
    gelu(True)
    a.settle()
    a("s_branch L_done")

    a.label("L_spare")
    a.restore(snap0)
    a(f"s_cmp_eq_u32 s{S_KIND}, 2")
    a("s_cbranch_scc1 L_spare_wait")
    a("v_and_b32 v128, 15, v0")
    a("v_lshrrev_b32 v129, 4, v0")
    a(f"s_and_b32 s8, s{S_WAVE}, 1")
    a("s_lshl_b32 s7, s8, 15")
    a("v_lshrrev_b32 v130, 1, v128")
    a("v_xor_b32 v130, v130, v129")
    a("v_lshrrev_b32 v131, 3, v128")
    a("v_lshlrev_b32 v131, 13, v131")
    a("v_lshl_add_u32 v131, v3, 7, v131")
    a("v_add_u32 v131, s7, v131")
    a("v_lshl_add_u32 v60, v130, 4, v131")
    a("v_xor_b32 v61, 64, v60")
    a(f"s_and_b32 s7, s{S_WAVE}, 6")
    a(f"s_mul_i32 s7, s7, {RS * 1024}")
    a(f"s_add_u32 s7, s7, {L_RING}")
    a("v_lshlrev_b32 v6, 3, v128")
    a("v_lshl_add_u32 v6, v129, 8, v6")
    a("v_add_u32 v6, s7, v6")
    for r in range(4):
        a(f"v_mov_b32 v{200 + r}, 0x3f803f80")
    a(f"s_lshl_b32 s10, s{S_TG}, 1")
    a("s_add_u32 s10, s10, s8")
    a("s_lshl_b32 s10, s10, 10")
    a("s_lshl_b32 s7, s8, 7")
    a(f"s_add_u32 s7, s7, {L_STATS}")
    a(f"s_cmp_lt_u32 s{S_ROLE}, 6")
    a.settle()
    a("s_cbranch_scc0 L_doV")
    snap2 = a.snapshot()
    for isv in (0, 1):
        if isv:
            a.label("L_doV")
            a.restore(snap2)
        KB, ND = 144, 4

        def reads_kv(s_):
            b = KB + 12 * (s_ % ND)
            o = (s_ >> 3) * RS * 1024 + (s_ & 7) * 1024
            a(f"ds_read_b64_tr_b16 {vr(b, 2)}, v6 offset:{o}")
            a(f"ds_read_b64_tr_b16 {vr(b + 2, 2)}, v6 offset:{o + 128}")
            for u in range(2):
                a(f"ds_read_b128 {vr(b + 4 + 4 * u, 4)}, v{60 + (s_ & 1)} offset:{16384 * u + 1024 * (s_ >> 1)}")

        for s_ in range(ND - 1):
            reads_kv(s_)
        for s_ in range(16):
            if s_ + ND - 1 < 16:
                reads_kv(s_ + ND - 1)
            b = KB + 12 * (s_ % ND)
            for u, other in ((2, "v[200:203]"), (0, vr(b + 4, 4)), (1, vr(b + 8, 4))):
                acc = vr(ACC + 4 * u, 4)
                opa, opb = (other, vr(b, 4)) if isv else (vr(b, 4), other)
                a(f"v_mfma_f32_16x16x32_bf16 {acc}, {opa}, {opb}, {'0' if s_ == 0 else acc}")
            if s_ == 13:
                if isv:
                    a("v_lshl_add_u32 v57, v129, 4, s7")
                    for u in range(2):
                        a(f"ds_read_b128 {vr(96 + 4 * u, 4)}, v57 offset:{64 * u}")
                        a(f"ds_read_b128 {vr(104 + 4 * u, 4)}, v57 offset:{512 + 64 * u}")
                    a("v_lshrrev_b32 v130, 1, v129")
                    a("v_lshl_add_u32 v130, v130, 4, v128")
                    a("v_lshlrev_b32 v130, 4, v130")
                    a("v_and_b32 v131, 1, v129")
                    a("v_lshl_add_u32 v56, v131, 3, v130")
                    a(f"s_add_u32 s10, s10, {WS_VF}")
                else:
                    a("v_lshl_add_u32 v57, v128, 2, s7")
                    a("ds_read2_b32 v[96:97], v57 offset0:0 offset1:16")
                    a("ds_read2_b32 v[104:105], v57 offset0:128 offset1:144")
                    a("v_and_b32 v131, 1, v129")
                    a("v_lshl_add_u32 v130, v131, 5, v128")
                    a("v_lshlrev_b32 v130, 4, v130")
                    a("v_lshrrev_b32 v131, 1, v129")
                    a("v_lshl_add_u32 v56, v131, 3, v130")
        stamp(a, 13)
        for u in range(2):
            for r in range(4):
                nm = 104 + 4 * u + r if isv else 104 + u
                a(f"v_fmac_f32 v{ACC + 4 * u + r}, v{ACC + 8 + r}, v{nm}")
            for r in range(4):
                rs = 96 + 4 * u + r if isv else 96 + u
                a(f"v_mul_f32 v{ACC + 4 * u + r}, v{ACC + 4 * u + r}, v{rs}")
            a(f"v_cvt_pk_bf16_f32 v{112 + 2 * u}, v{ACC + 4 * u}, v{ACC + 4 * u + 1}")
            a(f"v_cvt_pk_bf16_f32 v{113 + 2 * u}, v{ACC + 4 * u + 2}, v{ACC + 4 * u + 3}")
            a(f"buffer_store_dwordx2 {vr(112 + 2 * u, 2)}, v56, {sr(SWS, 4)}, s10 offen offset:{(512 if isv else 256) * u} sc1")
        a.wait_all()
        a.settle()
        if not isv:
            a("s_branch L_kvpub")
    a.label("L_kvpub")
    stamp(a, 14)
    a(f"v_mov_b32 v15, {L_CNT}")
    a("v_mov_b32 v52, 1")
    a("s_mov_b64 exec, 1")
    a("ds_add_rtn_u32 v53, v15, v52")
    a("s_mov_b64 exec, -1")
    a(f"s_lshl_b32 s8, s{S_TG}, 7")
    a(f"s_add_u32 s8, s8, {WS_FL1}")
    a("v_readfirstlane_b32 s7, v53")
    a("s_cmp_lg_u32 s7, 3")
    a.settle()
    a("s_cbranch_scc1 L_noflag1")
    flag_store(a, "s8", 136)
    a.settle()
    a.label("L_noflag1")
    a("s_barrier")
    a.label("L_spare_wait")
    a.reset_state()
    a.wait_all()
    a("s_mov_b32 s73, 0")
    t_task(t_issue())
    for _ in range(nlock):
        a("s_barrier")
    a.settle()

    a.label("L_done")
    a.reset_state()
    stamp(a, 19)
    a(f"s_cmp_ge_u32 s{S_WAVE}, 2")
    a("s_cbranch_scc1 L_late")
    a("s_cmp_eq_u32 s73, 1")
    a("s_cbranch_scc1 L_kvdone")
    spin(a, "L_poll1", poll1_issue, 132, 1)
    a.reset_state()
    stamp(a, 21)
    kv_dma()
    a.wait_all()
    a.settle()
    a.label("L_kvdone")
    a.raw("    s_waitcnt vmcnt(1) lgkmcnt(0)")
    stamp(a, 5)
    a("s_barrier")
    stamp(a, 6)
    a.settle()
    a("s_branch L_attn")
    a.label("L_late")
    a.reset_state()
    a.wait_all(vm=False)
    stamp(a, 5)
    a("s_barrier")
    stamp(a, 6)
    kv_dma()
    a.settle()
    a.label("L_attn")
    a.reset_state()
    _stamp["n"] = 7


def attention(a):
    S0, O0, Q0, KR, V0R, V1R, IDX = 16, 48, 80, 88, 92, 96, 100
    M, BUF, DEPTH, WO, XR, B2R = 104, 136, 3, 172, 236, 240
    a(f"s_and_b32 s6, s{S_WAVE}, 3")
    a(f"s_lshr_b32 s7, s{S_WAVE}, 2")
    a("s_mul_i32 s13, s7, 10240")
    a(f"s_add_u32 s13, s13, {L_RING}")
    a("v_add_u32 v1, s13, v5")
    a("v_and_b32 v6, 15, v0")
    a("v_lshrrev_b32 v7, 5, v0")
    a("v_lshlrev_b32 v6, 4, v6")
    a("v_lshl_add_u32 v6, v7, 8, v6")
    a("v_and_b32 v8, 31, v0")
    a("v_add_u32 v2, 1024, v6")
    a("v_add_u32 v3, 1536, v6")
    a("v_mov_b32 v9, 2048")
    a("v_cmp_eq_u32 vcc, 16, v8")
    a("v_cndmask_b32 v2, v2, v9, vcc")
    a("v_cndmask_b32 v3, v3, v9, vcc")
    a("v_mov_b32 v9, 0x40000")
    a("v_cmp_lt_u32 vcc, 16, v8")
    a("v_cndmask_b32 v2, v2, v9, vcc")
    a("v_cndmask_b32 v3, v3, v9, vcc")
    a("v_add_u32 v2, s13, v2")
    a("v_add_u32 v3, s13, v3")
    a("s_lshl_b32 s8, s6, 11")
    a(f"s_add_u32 s8, s8, {L_QF}")
    a("v_add_u32 v4, s8, v5")
    a(f"v_mov_b32 v{IDX}, 0xdddddddd")
    for r in range(32):
        a(f"v_mov_b32 v{O0 + r}, 0")

    def kvoff(it):
        return ((it >> 2) & 1) * 20480 + (it & 3) * KT if it < 16 else (it - 16) * KT

    def rebase(it, r):
        if it == 8:
            a(f"v_add_u32 v{r}, 40960, v{r}")
        if it == 16:
            a(f"v_subrev_u32 v{r}, s87, v{r}")

    def rk(it):
        rebase(it, 1)
        a(f"ds_read_b128 {vr(KR, 4)}, v1 offset:{kvoff(it)}")

    def rv(it, p):
        rebase(it, 2 + p)
        a(f"ds_read_b128 {vr((V0R, V1R)[p], 4)}, v{2 + p} offset:{kvoff(it)}")

    def kv_dma2(n):
        s_, isv = n >> 1, n & 1
        if n == 0:
            a(f"s_mul_i32 s87, s7, {(10240 - 16 * KT) & 0xffffffff}")
            a(f"s_add_u32 s87, s87, {L_RING + 40960}")
            a("s_lshl_b32 s10, s7, 4")
            a("s_add_u32 s10, s10, s6")
            a(f"s_mul_i32 s14, s10, {KT}")
            a("s_lshl_b32 s10, s7, 15")
            a(f"s_add_u32 s12, s6, s{S_KROT}")
        if isv:
            a(f"s_add_u32 s11, s11, {WS_VF}")
        else:
            a(f"s_add_u32 s11, s12, {16 + 4 * s_}")
            a("s_and_b32 s11, s11, 31")
            a("s_lshl_b32 s11, s11, 10")
            a("s_add_u32 s11, s11, s10")
        a(f"s_add_u32 m0, s14, {4 * s_ * KT + 1024 * isv}")
        a(f"buffer_load_dwordx4 v5, {sr(SWS, 4)}, s11 offen sc1 lds")
        if n == 7:
            a("v_and_b32 v101, 3, v0")
            a(f"v_mul_u32_u24 v101, {4 * KT}, v101")
            a("v_add_u32 v101, s14, v101")
            a("ds_write_b128 v101, v[136:139] offset:2048")

    def mf(t):
        a(f"v_mfma_f32_32x32x16_bf16 {vr(S0 + 16 * (t & 1), 16)}, {vr(KR, 4)}, {vr(Q0 + 4 * (t & 1), 4)}, 0")

    def smf(t, p):
        a(f"v_smfmac_f32_32x32x32_bf16 {vr(O0 + 16 * (t & 1), 16)}, {vr((V0R, V1R)[p], 4)}, "
          f"{vr(S0 + 16 * (t & 1) + 8 * p, 8)}, v{IDX}")

    def ex(t, lo, hi):
        for i in range(lo, hi):
            r = S0 + 16 * (t & 1) + i
            a(f"v_exp_f32 v{r}, v{r}")

    NT = 64
    hooks = {(t, p): [] for t in range(NT) for p in range(4)}

    def at(t, p, fn):
        hooks[(t, p)].append(fn)

    def setup_mlp2():
        a(f"s_mul_i32 s14, s{S_J}, {HF_STRIDE}")
        a(f"s_add_u32 s14, s14, {WS_W2T}")
        srd(a, SW2, P_WS, 86 * 2048, "s14")
        a(f"s_lshl_b32 s14, s{S_J}, 16")
        a(f"s_add_u32 s14, s14, {WS_WOT}")
        srd(a, SWO, P_WS, 65536, "s14")
        a(f"s_lshl_b32 s14, s{S_TG}, 16")
        a(f"s_add_u32 s14, s14, {WS_OF}")
        srd(a, SO, P_WS, 65536, "s14")
        srd(a, SB2, P_B2, 1024)
        srd(a, SOUT, P_OUT, 2097152)

    def setup_offsets():
        a(f"s_and_b32 s72, s{S_WAVE}, 1")
        a(f"s_lshr_b32 s73, s{S_WAVE}, 1")
        a("s_lshl_b32 s8, s73, 11")
        a("s_lshl_b32 s9, s72, 10")
        a("s_add_u32 s9, s9, s8")
        a("s_lshl_b32 s10, s73, 14")
        a("s_lshl_b32 s11, s72, 10")
        a("s_add_u32 s11, s11, s10")
        a(f"s_lshl_b32 s12, s{S_TG}, 16")
        a(f"s_lshl_b32 s13, s{S_WAVE}, 13")
        a("s_add_u32 s12, s12, s13")
        a(f"s_lshl_b32 s13, s{S_J}, 7")
        a("s_add_u32 s12, s12, s13")

    def publish_h():
        a.wait_all()
        a("s_barrier")
        stamp(a, 17)
        a(f"s_cmp_lg_u32 s{S_WAVE}, 0")
        a("s_cbranch_scc1 L_noflag2")
        hist = list(a.hist)
        a(f"s_lshl_b32 s14, s{S_TG}, 3")
        a(f"s_add_u32 s14, s14, s{S_J}")
        a("s_lshl_b32 s14, s14, 7")
        a(f"s_add_u32 s14, s14, {WS_FL2}")
        flag_store(a, "s14", 101)
        a.label("L_noflag2")
        a.hist = hist

    def poll2_addr():
        a(f"v_lshl_add_u32 v245, v8, 3, s{S_J}")
        a(f"s_lshl_b32 s14, s{S_TG}, 3")
        a("v_and_b32 v246, 7, v0")
        a("v_add_u32 v246, s14, v246")
        a("v_cmp_eq_u32 vcc, 0, v7")
        a("v_cndmask_b32 v245, v246, v245, vcc")
        a("v_lshlrev_b32 v245, 7, v245")

    def poll2_issue():
        a(f"s_mov_b32 s85, {WS_FL2}")
        a(f"buffer_load_dword v244, v245, {sr(SWS, 4)}, s85 offen sc1")

    def check_h():
        poll_check(a, 244, 1)
        a("s_cbranch_scc0 L_spin2")
        a.label("L_spin2_ret")
        stamp(a, 16)

    def mlp2_load(i, k):
        b = BUF + 12 * (i % DEPTH)
        if k == 0:
            a(f"buffer_load_dwordx4 {vr(b, 4)}, v5, {sr(SW2, 4)}, s9 offen sc1")
            a("s_add_u32 s9, s9, 8192")
        elif k == 1:
            a(f"buffer_load_dwordx4 {vr(b + 4, 4)}, v5, {sr(SH, 4)}, s8 offen sc1")
        else:
            a(f"buffer_load_dwordx4 {vr(b + 8, 4)}, v5, {sr(SH, 4)}, s8 offen offset:1024 sc1")
            a("s_add_u32 s8, s8, 8192")

    def mlp2_mm(i, u):
        b = BUF + 12 * (i % DEPTH)
        acc = vr(M + 16 * u, 16)
        a(f"v_mfma_f32_32x32x16_bf16 {acc}, {vr(b, 4)}, {vr(b + 4 + 4 * u, 4)}, {'0' if i == 0 else acc}")

    def wo_load(n):
        a(f"buffer_load_dwordx4 {vr(WO + 4 * n, 4)}, v5, {sr(SWO, 4)}, s10 offen offset:{(n & 3) * 1024} sc1")
        if n & 3 == 3:
            a("s_add_u32 s10, s10, 4096")

    def tail_addr():
        a("v_lshrrev_b32 v10, 3, v0")
        a("v_and_b32 v11, 7, v0")
        a("v_lshlrev_b32 v12, 10, v10")
        a("v_lshl_add_u32 v12, v11, 4, v12")
        a("v_lshlrev_b32 v13, 4, v11")
        a(f"buffer_load_dwordx4 {vr(XR, 4)}, v12, {sr(SX, 4)}, s12 offen")
        a(f"buffer_load_dwordx4 {vr(B2R, 4)}, v13, {sr(SB2, 4)}, s13 offen")

    def red_addr():
        a("s_lshl_b32 s14, s73, 14")
        a("v_and_b32 v14, 15, v0")
        a("v_xor_b32 v14, v14, v7")
        a("v_lshlrev_b32 v14, 4, v14")
        a("v_lshl_add_u32 v14, v8, 8, v14")
        a("v_add_u32 v14, s14, v14")
        a("s_lshl_b32 s15, s72, 7")
        a("v_xor_b32 v15, s15, v14")
        a(f"v_add_u32 v15, {L_MP}, v15")
        a("s_lshl_b32 s15, s72, 13")
        a("v_add_u32 v14, s15, v14")

    def red_addr2():
        a(f"s_lshl_b32 s15, s{S_WAVE}, 3")
        a("v_add_u32 v10, s15, v10")
        a("v_and_b32 v248, 15, v10")
        a("v_lshlrev_b32 v11, 1, v11")
        a("v_xor_b32 v248, v248, v11")
        a("v_lshlrev_b32 v248, 4, v248")
        a("v_lshl_add_u32 v248, v10, 8, v248")
        a("v_xor_b32 v249, 16, v248")
        a(f"v_add_u32 v250, {L_MP}, v248")
        a(f"v_add_u32 v251, {L_MP}, v249")

    def m_write(q):
        if q:
            a(f"v_xor_b32 v101, {q << 5}, v15")
        ad = "v101" if q else "v15"
        for u in range(2):
            a(f"ds_write_b128 {ad}, {vr(M + 16 * u + 4 * q, 4)} offset:{u * 8192}")

    TP = OPT.get("tp", 5)
    T0 = OPT.get("t0", 14)
    at(TP, 0, publish_h)
    for n in range(8):
        at(TP + n // 2, (1, 3)[n & 1], lambda n=n: kv_dma2(n))
    at(TP + 4, 2, setup_mlp2)
    at(TP + 5, 2, setup_offsets)
    at(1, 2, poll2_addr)
    at(T0 - 3, 2, poll2_issue)
    at(T0 - 1, 3, check_h)
    at(28, 0, lambda: a("s_barrier"))
    for i in range(22):
        at(T0 + 2 * i, 1, lambda i=i: mlp2_load(i, 0))
        at(T0 + 2 * i, 3, lambda i=i: mlp2_load(i, 1))
        at(T0 + 2 * i + 1, 1, lambda i=i: mlp2_load(i, 2))
        at(T0 + 2 * i + 3, 2, lambda i=i: mlp2_mm(i, 0))
        at(T0 + 2 * i + 4, 2, lambda i=i: mlp2_mm(i, 1))
    at(48, 0, lambda: a("s_barrier"))
    at(48, 0, lambda: stamp(a, 18))
    at(50, 3, red_addr)
    for n in range(16):
        at(56 + n // 2, (0, 2)[n & 1], lambda n=n: wo_load(n))
    at(52, 3, tail_addr)
    at(53, 3, red_addr2)
    for q in range(4):
        at(62 + (q >> 1), (1, 3)[q & 1], lambda q=q: m_write(q))

    a(f"ds_read_b128 {vr(Q0, 4)}, v4")
    rk(0)
    a(f"ds_read_b128 {vr(Q0 + 4, 4)}, v4 offset:1024")
    rv(0, 0)
    rv(0, 1)
    mf(0)
    for t in range(NT):
        it = t >> 1
        for fn in hooks[(t, 0)]:
            fn()
        ex(t, 0, 2)
        if t > 0:
            smf(t - 1, 1)
            if t % 2 == 0:
                rv(it, 1)
        ex(t, 2, 5)
        if t + 1 < NT:
            mf(t + 1)
            if t % 2 == 0 and it + 1 < 32:
                rk(it + 1)
        ex(t, 5, 7)
        for fn in hooks[(t, 1)]:
            fn()
        ex(t, 7, 10)
        smf(t, 0)
        if t % 2 == 1 and it + 1 < 32:
            rv(it + 1, 0)
        ex(t, 10, 13)
        for fn in hooks[(t, 2)]:
            fn()
        ex(t, 13, 15)
        for fn in hooks[(t, 3)]:
            fn()
        ex(t, 15, 16)
    smf(NT - 1, 1)
    stamp(a)

    a(f"s_mul_i32 s14, s{S_WAVE}, 2304")
    a(f"s_add_u32 s14, s14, {L_XCH}")
    a(f"s_xor_b32 s15, s{S_WAVE}, 4")
    a("s_mul_i32 s15, s15, 2304")
    a(f"s_add_u32 s15, s15, {L_XCH}")
    a("v_add_u32 v1, s14, v5")
    a("v_lshl_add_u32 v2, v0, 2, s14")
    a("v_add_u32 v3, s15, v5")
    a("v_lshl_add_u32 v4, v0, 2, s15")
    a("s_cmp_eq_u32 s7, 0")
    a.settle()
    a("s_cbranch_scc1 L_lo")
    snap = a.snapshot()
    for kh in (1, 0):
        if kh == 0:
            a.label("L_lo")
            a.restore(snap)
        give, keep = O0 + 16 * (1 - kh), O0 + 16 * kh
        a(f"ds_write_b128 v1, {vr(give, 4)}")
        a(f"ds_write_b128 v1, {vr(give + 4, 4)} offset:1024")
        a(f"ds_write_b32 v2, v{give + 8} offset:2048")
        for r in range(9):
            a(f"v_mov_b32 v{S0 + r}, v{keep + r}")
        for r in range(4):
            a(f"v_mov_b32 v{S0 + 28 + r}, v{Q0 + 4 * kh + r}")
        a.wait_all(vm=False)
        a.settle()
        if kh == 1:
            a("s_branch L_join")
    a.label("L_join")
    a("s_barrier")
    stamp(a)
    a(f"ds_read_b128 {vr(O0, 4)}, v3")
    a(f"ds_read_b128 {vr(O0 + 4, 4)}, v3 offset:1024")
    a(f"ds_read_b32 v{O0 + 8}, v4 offset:2048")
    a(f"s_lshl_b32 s14, s{S_J}, 2")
    a("s_and_b32 s15, s6, 2")
    a("s_add_u32 s14, s14, s15")
    a("s_add_u32 s14, s14, s7")
    a("s_and_b32 s15, s6, 1")
    a("s_lshl_b32 s8, s14, 11")
    a("s_lshl_b32 s9, s15, 10")
    a("s_add_u32 s8, s8, s9")
    a(f"s_lshl_b32 s9, s{S_TG}, 1")
    a("s_add_u32 s9, s9, s15")
    a("s_lshl_b32 s9, s9, 5")
    a("s_add_u32 s9, s9, s14")
    a("s_lshl_b32 s9, s9, 7")
    a(f"s_add_u32 s9, s9, {WS_FL3}")
    for r in range(9):
        a(f"v_add_f32 v{O0 + r}, v{O0 + r}, v{S0 + r}")
    a(f"v_mov_b32 v101, v{O0 + 8}")
    a(f"v_permlane32_swap_b32 v{O0 + 8}, v101")
    a(f"v_max3_f32 v102, |v{O0}|, |v{O0 + 1}|, |v{O0 + 2}|")
    a(f"v_max3_f32 v102, |v{O0 + 3}|, |v{O0 + 4}|, v102")
    a(f"v_max3_f32 v102, |v{O0 + 5}|, |v{O0 + 6}|, v102")
    a(f"v_max3_f32 v102, |v{O0 + 7}|, v{O0 + 8}, v102")
    a(f"v_cmp_gt_f32 vcc, {f32(2.0 ** 100)}, v102")
    a(f"s_mov_b32 s74, {f32(2.0 ** -60)}")
    a(f"v_cmp_lt_f32 s[14:15], s74, v{O0 + 8}")
    a("s_and_b64 vcc, vcc, s[14:15]")
    a("s_cmp_eq_u64 vcc, exec")
    a.settle()
    a("s_cbranch_scc0 L_slow")
    a.label("L_fin")
    a(f"v_rcp_f32 v101, v{O0 + 8}")
    for r in range(8):
        a(f"v_mul_f32 v{O0 + r}, v{O0 + r}, v101")
    for r in range(4):
        a(f"v_cvt_pk_bf16_f32 v{S0 + r}, v{O0 + 2 * r}, v{O0 + 2 * r + 1}")
    t_o = a(f"buffer_store_dwordx4 {vr(S0, 4)}, v5, {sr(SO, 4)}, s8 offen sc1")
    R = 104
    for kq in range(4):
        for i in range(2):
            a(f"ds_read_b128 {vr(R + 8 * kq + 4 * i, 4)}, v{250 + i} offset:{kq * 16384}")
    G, XF, T = 80, 88, 24
    for r in range(4):
        a(f"v_lshlrev_b32 v{G + 2 * r}, 16, v{B2R + r}")
        a(f"v_and_b32 v{G + 2 * r + 1}, 0xffff0000, v{B2R + r}")
    a.wait_tok(t_o)
    flag_store(a, "s9", 101)
    a(f"s_lshl_b32 s14, s{S_TG}, 1")
    a("s_add_u32 s14, s14, s72")
    a("s_lshl_b32 s14, s14, 5")
    a("s_lshl_b32 s15, s73, 3")
    a("s_add_u32 s14, s14, s15")
    a("s_lshl_b32 s14, s14, 7")
    a(f"s_add_u32 s14, s14, {WS_FL3}")
    a("v_and_b32 v102, 7, v0")
    a("v_lshlrev_b32 v102, 7, v102")
    for r in range(4):
        a(f"v_lshlrev_b32 v{XF + 2 * r}, 16, v{XR + r}")
        a(f"v_and_b32 v{XF + 2 * r + 1}, 0xffff0000, v{XR + r}")
    for kq in range(4):
        for r in range(8):
            a(f"v_add_f32 v{G + r}, v{G + r}, v{R + 8 * kq + r}")
    for r in range(8):
        a(f"v_mul_f32 v{T + r}, {f32(-LOG2E)}, v{G + r}")
    for r in range(8):
        a(f"v_exp_f32 v{T + r}, v{T + r}")
    for r in range(8):
        a(f"v_add_f32 v{T + r}, 1.0, v{T + r}")
    for r in range(8):
        a(f"v_rcp_f32 v{T + r}, v{T + r}")
    for r in range(8):
        a(f"v_mul_f32 v{G + r}, v{G + r}, v{T + r}")
    stamp(a)
    spin(a, "L_poll3", lambda: a(f"buffer_load_dword v103, v102, {sr(SWS, 4)}, s14 offen sc1"), 103, n=1)
    stamp(a)
    OF, SA = 136, 16
    for i in range(8):
        a(f"buffer_load_dwordx4 {vr(OF + 4 * i, 4)}, v5, {sr(SO, 4)}, s11 offen offset:{(i & 1) * 2048} sc1")
        if i & 1:
            a("s_add_u32 s11, s11, 4096")
    for i in range(8):
        for u in range(2):
            acc = vr(SA + 16 * u, 16)
            a(f"v_mfma_f32_32x32x16_bf16 {acc}, {vr(WO + 8 * i + 4 * u, 4)}, {vr(OF + 4 * i, 4)}, {'0' if i == 0 else acc}")
    for u in range(2):
        for q in range(4):
            x = (u << 7) | (q << 5)
            if x:
                a(f"v_xor_b32 v{104 + 4 * u + q}, {x}, v14")
    for u in range(2):
        for q in range(4):
            ad = f"v{104 + 4 * u + q}" if (u or q) else "v14"
            a(f"ds_write_b128 {ad}, {vr(SA + 16 * u + 4 * q, 4)}")
    a.wait_all(vm=False)
    stamp(a)
    a("s_barrier")
    for kq in range(4):
        for i in range(2):
            a(f"ds_read_b128 {vr(R + 8 * kq + 4 * i, 4)}, v{248 + i} offset:{kq * 16384}")
    for kq in range(1, 4):
        for r in range(8):
            a(f"v_add_f32 v{R + r}, v{R + r}, v{R + 8 * kq + r}")
    for r in range(8):
        a(f"v_fmac_f32 v{XF + r}, v{R + r}, v{G + r}")
    for r in range(4):
        a(f"v_cvt_pk_bf16_f32 v{XR + r}, v{XF + 2 * r}, v{XF + 2 * r + 1}")
    a(f"buffer_store_dwordx4 {vr(XR, 4)}, v12, {sr(SOUT, 4)}, s12 offen")
    a(f"s_or_b32 s14, s2, s{S_WAVE}")
    a("s_cmp_lg_u32 s14, 0")
    a("s_cbranch_scc1 L_notag")
    a(f"s_mov_b32 s14, {WS_E}")
    flag_store(a, "s14", 101)
    a.label("L_notag")
    if STAMPS:
        a.wait_all()
        stamp_flush(a)
    a("s_endpgm")

    a.label("L_spin2")
    a.reset_state()
    spin(a, "L_poll2", poll2_issue, 244, 1)
    a("s_branch L_spin2_ret")

    a.label("L_slow")
    a.reset_state()
    QS, C0 = S0 + 28, 64
    a("v_mov_b32 v101, 0xff800000")
    a("s_mov_b32 s74, 0")
    a.settle()
    a.label("L_p1")
    a(f"s_add_u32 s75, s74, {WS_KF}")
    a(f"buffer_load_dwordx4 {vr(KR, 4)}, v5, {sr(SWS, 4)}, s75 offen sc1")
    a(f"v_mfma_f32_32x32x16_bf16 {vr(S0, 16)}, {vr(KR, 4)}, {vr(QS, 4)}, 0")
    for r in range(8):
        a(f"v_max3_f32 v101, v{S0 + 2 * r}, v{S0 + 2 * r + 1}, v101")
    a("s_add_u32 s74, s74, 1024")
    a("s_cmp_lt_u32 s74, 65536")
    a.settle()
    a("s_cbranch_scc1 L_p1")
    a("v_mov_b32 v102, v101")
    a("v_permlane32_swap_b32 v101, v102")
    a("v_max_f32 v101, v101, v102")
    for r in range(16):
        a(f"v_sub_f32 v{C0 + r}, 0, v101")
        a(f"v_mov_b32 v{O0 + r}, 0")
    for r in range(8):
        a(f"v_mov_b32 v{V0R + r}, 0x3f803f80")
    a("s_mov_b32 s74, 0")
    a("s_mov_b32 s14, 0x0000ffff")
    a("s_mov_b32 s15, 0x0000ffff")
    a.settle()
    a.label("L_p2")
    a(f"s_add_u32 s75, s74, {WS_KF}")
    a(f"buffer_load_dwordx4 {vr(KR, 4)}, v5, {sr(SWS, 4)}, s75 offen sc1")
    a(f"s_add_u32 s75, s74, {WS_VF}")
    a("s_mov_b64 exec, s[14:15]")
    a(f"buffer_load_dwordx4 {vr(V0R, 4)}, v6, {sr(SWS, 4)}, s75 offen sc1")
    a(f"buffer_load_dwordx4 {vr(V1R, 4)}, v6, {sr(SWS, 4)}, s75 offen offset:512 sc1")
    a("s_mov_b64 exec, -1")
    a(f"v_mfma_f32_32x32x16_bf16 {vr(S0, 16)}, {vr(KR, 4)}, {vr(QS, 4)}, {vr(C0, 16)}")
    ex(0, 0, 16)
    smf(0, 0)
    smf(0, 1)
    a("s_add_u32 s74, s74, 1024")
    a("s_cmp_lt_u32 s74, 65536")
    a.wait_all()
    a.settle()
    a("s_cbranch_scc1 L_p2")
    a("s_branch L_fin")


def descriptor(name):
    return f""".section .rodata,"a"
.p2align 6
.amdhsa_kernel {name}
  .amdhsa_next_free_vgpr 256
  .amdhsa_next_free_sgpr 96
  .amdhsa_accum_offset 256
  .amdhsa_group_segment_fixed_size 0
  .amdhsa_kernarg_size 104
  .amdhsa_user_sgpr_count 2
  .amdhsa_user_sgpr_kernarg_segment_ptr 1
  .amdhsa_system_sgpr_workgroup_id_x 1
  .amdhsa_float_denorm_mode_32 3
.end_amdhsa_kernel
"""


def main(out):
    a = Asm()
    hdr = open("cdna_kernels/" + NAME + ".s.ref").read().split("; Override launch")[0]
    a.raw(hdr.rstrip())
    a.raw("; @launch grid=(256,1,1) block=(512,1,1) lds=163840")
    a.raw('.amdgcn_target "amdgcn-amd-amdhsa--gfx950"\n.text')
    gen(a)
    a.raw(descriptor(KN))
    open(out, "w").write(a.text())
    print("written", out, "nop states", a.nops, "stamps", _stamp["n"])


if __name__ == "__main__":
    STAMPS = len(sys.argv) > 2 and sys.argv[2] == "1"
    for kv in sys.argv[3:]:
        k_, v_ = kv.split("=")
        OPT[k_] = int(v_)
    main(sys.argv[1])
```

```python
import struct
import sys
from asmgen import Asm, vr, sr

NAME = "recurrent_scan__grouped_kv_mqa__mixer_channel_mlp__prompt"
KN = NAME + "_kernel"

WS_KF = 0x000000
WS_VF = 0x010000
WS_E = 0x020000
WS_FL1 = 0x021000
WS_FL2 = 0x028000
WS_FL3 = 0x040000
WS_HF = 0x400000
HF_STRIDE = 0x2C000
WS_W2T = 0xA00000
WS_WOT = 0xC00000
WS_OF = 0xD00000
WS_ST = 0xF00000
WS_SIZE = 0x1000000

P_X, P_WQ, P_WK, P_WV, P_WO, P_BX, P_W1, P_B1, P_W2, P_B2, P_OUT, P_DBG, P_WS = range(16, 42, 2)
S_WAVE, S_TG, S_J, S_TAG, S_ROLE, S_ROT, S_KROT, S_KIND = 3, 4, 5, 84, 42, 43, 75, 88
S_OOFF = 89
SX, SW, SKV, SWS, ST, SB1, SH = 44, 48, 52, 56, 60, 64, 68
SW2, SWO, SO, SOUT, SB2 = 52, 60, 64, 76, 80

KT = 2064
L_XC, L_RING, L_QF, L_STATS, L_CS = 0, 32 * KT, 147968, 156160, 157184
L_CNT = 158208
L_XCH = 131584
L_MP = L_RING
SPIN_LIMIT = 200000

LOG2E = 1.4426950408889634
STAMPS = False
OPT = {}
_stamp = {"n": 0}


def f32(x):
    return "0x%08x" % struct.unpack("<I", struct.pack("<f", x))[0]


def srd(a, dst, ptr, size, off=None):
    if off is None:
        a(f"s_mov_b32 s{dst}, s{ptr}")
        a(f"s_mov_b32 s{dst + 1}, s{ptr + 1}")
    else:
        a(f"s_add_u32 s{dst}, s{ptr}, {off}")
        a(f"s_addc_u32 s{dst + 1}, s{ptr + 1}, 0")
    a(f"s_mov_b32 s{dst + 2}, {size}")
    a(f"s_mov_b32 s{dst + 3}, 0x00020000")


def csel(a, dst, if_true, if_false):
    a(f"s_mov_b32 s{dst}, {if_false}")
    a(f"s_cselect_b32 s{dst}, {if_true}, s{dst}")


def stamp(a, n=None):
    if not STAMPS:
        return
    if n is None:
        n = _stamp["n"]
        _stamp["n"] += 1
    a("s_memrealtime s[92:93]")
    a("s_memtime s[94:95]")
    a.wait_all(vm=False)
    a(f"v_writelane_b32 v255, s92, {2 * n}")
    a(f"v_writelane_b32 v255, s94, {2 * n + 1}")


def stamp_flush(a):
    if not STAMPS:
        return
    stamp(a)
    a("s_lshl_b32 s92, s2, 3")
    a(f"s_add_u32 s92, s92, s{S_WAVE}")
    a("s_lshl_b32 s92, s92, 8")
    a(f"s_add_u32 s92, s92, {WS_ST}")
    a("v_lshlrev_b32 v254, 2, v0")
    a(f"buffer_store_dword v255, v254, {sr(SWS, 4)}, s92 offen")


def poll_issue(a, base, vt):
    t = None
    a(f"s_mov_b32 s85, {base}")
    for i in range(4):
        t = a(f"buffer_load_dword v{vt + i}, v5, {sr(SWS, 4)}, s85 offen offset:{1024 * i} sc1")
    return t


def poll_check(a, vt, n=4):
    for i in range(n):
        a(f"v_xor_b32 v{vt + i}, s{S_TAG}, v{vt + i}")
    if n == 2:
        a(f"v_or_b32 v{vt}, v{vt}, v{vt + 1}")
    if n == 4:
        a(f"v_or3_b32 v{vt}, v{vt}, v{vt + 1}, v{vt + 2}")
        a(f"v_or_b32 v{vt}, v{vt}, v{vt + 3}")
    a(f"v_cmp_eq_u32 vcc, 0, v{vt}")
    a("s_cmp_eq_u64 vcc, exec")


def spin(a, label, issue, vt, n=4):
    a("s_mov_b32 s86, 0")
    a.settle()
    a.label(label)
    issue()
    a("s_add_u32 s86, s86, 1")
    poll_check(a, vt, n)
    a.settle()
    a(f"s_cbranch_scc1 {label}_ok")
    a("s_sleep 4")
    a(f"s_cmp_lt_u32 s86, {SPIN_LIMIT}")
    a(f"s_cbranch_scc1 {label}")
    a.label(f"{label}_ok")


def flag_store(a, soff, vtmp):
    a(f"v_mov_b32 v{vtmp}, s{S_TAG}")
    a("s_mov_b64 exec, 1")
    a(f"buffer_store_dword v{vtmp}, v5, {sr(SWS, 4)}, {soff} offen sc1")
    a("s_mov_b64 exec, -1")


def gen(a):
    name = KN
    a.raw(f".globl {name}\n.p2align 8\n.type {name},@function\n{name}:")
    a("s_cmp_ge_u32 s2, 256")
    a("s_cbranch_scc1 L_end")
    stamp(a)
    a("s_load_dwordx16 s[16:31], s[0:1], 0")
    a("s_load_dwordx8 s[32:39], s[0:1], 64")
    a("s_load_dwordx2 s[40:41], s[0:1], 96")
    a("v_lshrrev_b32 v1, 6, v0")
    a("v_and_b32 v0, 63, v0")
    a(f"v_readfirstlane_b32 s{S_WAVE}, v1")
    if OPT.get("map", 0) == 0:
        a(f"s_and_b32 s{S_TG}, s2, 7")
        a(f"s_lshl_b32 s{S_TG}, s{S_TG}, 2")
        a("s_bfe_u32 s6, s2, 0x20003")
        a(f"s_add_u32 s{S_TG}, s{S_TG}, s6")
        a(f"s_lshr_b32 s{S_J}, s2, 5")
        a("s_lshl_b32 s6, s6, 1")
        a(f"s_add_u32 s{S_ROT}, s6, s{S_J}")
    else:
        a(f"s_bfe_u32 s{S_TG}, s2, 0x20001")
        a(f"s_lshl_b32 s{S_TG}, s{S_TG}, 3")
        a("s_bfe_u32 s6, s2, 0x30003")
        a(f"s_add_u32 s{S_TG}, s{S_TG}, s6")
        a(f"s_and_b32 s{S_J}, s2, 1")
        a(f"s_lshl_b32 s{S_J}, s{S_J}, 2")
        a("s_lshr_b32 s7, s2, 6")
        a(f"s_add_u32 s{S_J}, s{S_J}, s7")
        a("s_lshl_b32 s7, s7, 1")
        a(f"s_add_u32 s{S_ROT}, s6, s7")
    a(f"s_and_b32 s{S_ROT}, s{S_ROT}, {7 if OPT.get('rot', 1) else 0}")
    a(f"s_lshr_b32 s{S_KROT}, s2, 3")
    a(f"s_and_b32 s{S_KROT}, s{S_KROT}, {31 if OPT.get('krot', 1) else 0}")
    a(f"s_cmp_eq_u32 s{S_J}, 7")
    a("s_cselect_b32 s6, 4, 0")
    a(f"s_xor_b32 s{S_ROLE}, s{S_WAVE}, s6")
    front(a)
    attention(a)
    a.label("L_end")
    a("s_endpgm")


def front(a):
    ACC, X = 64, 16
    RS = 10
    PRE = OPT.get('pre', 4)
    a("v_lshrrev_b32 v2, 3, v0")
    a("v_and_b32 v3, 7, v0")
    a(f"s_and_b32 s7, s{S_WAVE}, 1")
    a("s_lshl_b32 s7, s7, 2")
    a("v_lshrrev_b32 v4, 4, v0")
    a("v_or_b32 v4, s7, v4")
    a("v_xor_b32 v4, v4, v3")
    a("v_lshlrev_b32 v4, 4, v4")
    a("v_lshl_add_u32 v4, v2, 10, v4")
    a(f"s_lshl_b32 s6, s{S_TG}, 16")
    a(f"s_lshl_b32 s7, s{S_WAVE}, 13")
    a("s_add_u32 s6, s6, s7")
    a("v_lshlrev_b32 v5, 4, v0")
    a("v_lshrrev_b32 v6, 2, v0")
    a("v_and_b32 v7, 3, v0")
    def touch():
        lvl = OPT.get("tl", 1)
        a(f"s_cmp_lt_u32 s{S_WAVE}, {8 - lvl}")
        a("s_cbranch_scc1 L_nopf")
        st_ = a.snapshot()
        a(f"s_cmp_eq_u32 s{S_WAVE}, 5")
        a("s_cbranch_scc1 L_pfsmall")
        a(f"s_cmp_eq_u32 s{S_WAVE}, 7")
        a(f"s_cselect_b32 s76, s{P_WQ}, s{P_WO}")
        a(f"s_cselect_b32 s77, s{P_WQ + 1}, s{P_WO + 1}")
        a(f"s_cselect_b32 s78, s{P_W1}, s{P_W2}")
        a(f"s_cselect_b32 s79, s{P_W1 + 1}, s{P_W2 + 1}")
        a("s_sub_u32 s10, s2, 64")
        a("s_cmp_lt_u32 s2, 64")
        a(f"s_cselect_b32 s{ST}, s76, s78")
        a(f"s_cselect_b32 s{ST + 1}, s77, s79")
        csel(a, ST + 2, 524288, 1409024)
        a(f"s_mov_b32 s{ST + 3}, 0x00020000")
        a("s_cselect_b32 s8, s2, s10")
        a("s_lshl_b32 s8, s8, 13")
        a("v_lshlrev_b32 v209, 7, v0")
        a(f"buffer_load_dword v209, v209, {sr(ST, 4)}, s8 offen")
        a("s_branch L_nopf")
        a.label("L_pfsmall")
        a("v_lshlrev_b32 v209, 7, v0")
        srd(a, ST, P_B1, 2752)
        a(f"buffer_load_dword v210, v209, {sr(ST, 4)}, 0 offen")
        srd(a, ST, P_B2, 1024)
        a(f"buffer_load_dword v211, v209, {sr(ST, 4)}, 0 offen")
        if OPT.get("tlb", 0):
            srd(a, ST, P_OUT, 4)
            a(f"buffer_load_dword v212, v209, {sr(ST, 4)}, 0 offen")
            srd(a, ST, P_WS, WS_SIZE)
            a("v_lshlrev_b32 v209, 21, v0")
            a("v_add_u32 v209, 0x1fff80, v209")
            a(f"buffer_load_dword v213, v209, {sr(ST, 4)}, 0 offen")
        a.label("L_nopf")
        a.restore(st_)

    srd(a, SX, P_X, 2097152)
    if OPT.get("pf", 0) == 4:
        touch()
    t_x = []
    for i in range(8):
        a(f"s_add_u32 s8, s{S_ROT}, {i}")
        a("s_and_b32 s8, s8, 7")
        a("s_lshl_b32 s8, s8, 7")
        a("s_add_u32 s8, s8, s6")
        a(f"s_add_u32 m0, s7, {1024 * i}")
        t_x.append(a(f"buffer_load_dwordx4 v4, {sr(SX, 4)}, s8 offen lds"))
    srd(a, SWS, P_WS, WS_SIZE)
    a(f"s_mul_i32 s9, s{S_J}, 6")
    a(f"s_add_u32 s9, s9, s{S_ROLE}")
    a(f"s_cmp_gt_u32 s{S_J}, 3")
    a("s_cselect_b32 s10, 3, 2")
    a("s_sub_u32 s9, s9, s10")
    a("s_max_i32 s9, s9, 0")
    a("s_cmp_lt_u32 s9, 43")
    a(f"s_cselect_b32 s{S_KIND}, 0, 1")
    a(f"s_lshl_b32 s10, s{S_J}, 3")
    a(f"s_add_u32 s10, s10, s{S_ROLE}")
    a("s_cmp_eq_u32 s10, 31")
    a(f"s_cselect_b32 s{S_KIND}, 2, s{S_KIND}")
    a(f"s_lshl_b32 s10, s{S_J}, 1")
    a(f"s_add_u32 s10, s10, s{S_ROLE}")
    a(f"s_cmp_lt_u32 s{S_ROLE}, 2")
    a(f"s_cselect_b32 s{SW}, s{P_WQ}, s{P_W1}")
    a(f"s_cselect_b32 s{SW + 1}, s{P_WQ + 1}, s{P_W1 + 1}")
    csel(a, SW + 2, 524288, 1409024)
    a(f"s_mov_b32 s{SW + 3}, 0x00020000")
    csel(a, 11, 1024, 2752)
    a("s_cselect_b32 s15, s10, s9")
    a("s_lshl_b32 s15, s15, 6")
    a("s_lshl_b32 s13, s11, 4")
    a(f"s_lshl_b32 s12, s{S_ROT}, 2")
    a("s_mov_b32 s73, 31")
    a("v_mul_u32_u24 v8, s11, v6")
    a("v_lshl_add_u32 v8, v7, 4, v8")
    a(f"s_cmp_eq_u32 s{S_KIND}, 0")
    a("s_cbranch_scc1 L_stdw")
    a(f"s_cmp_lt_u32 s{S_ROLE}, 6")
    a(f"s_cselect_b32 s{SW}, s{P_WK}, s{P_WV}")
    a(f"s_cselect_b32 s{SW + 1}, s{P_WK + 1}, s{P_WV + 1}")
    a(f"s_cmp_eq_u32 s{S_KIND}, 2")
    a(f"s_cselect_b32 s{SW + 2}, 0, 16384")
    a(f"s_and_b32 s12, s{S_ROLE}, 1")
    a("s_lshl_b32 s12, s12, 2")
    a(f"s_add_u32 s12, s12, s{S_ROT}")
    a("s_lshl_b32 s12, s12, 1")
    a("s_mov_b32 s73, 15")
    a("s_mov_b32 s15, 0")
    a("s_mov_b32 s13, 1024")
    a("v_mov_b32 v8, v5")
    a.label("L_stdw")
    a(f"s_mul_i32 s14, s{S_WAVE}, {RS * 1024}")
    a(f"s_add_u32 s14, s14, {L_RING}")
    if OPT.get("pf", 0) in (2, 3):
        touch()
    a("s_barrier")
    dma = {}

    def issue_w(ks):
        a("s_and_b32 s74, s12, s73")
        a("s_mul_i32 s74, s74, s13")
        a("s_add_u32 s74, s74, s15")
        a(f"s_add_u32 m0, s14, {(ks % RS) * 1024}")
        a("s_add_u32 s12, s12, 1")
        dma[ks] = a(f"buffer_load_dwordx4 v8, {sr(SW, 4)}, s74 offen lds")

    for ks in range(PRE):
        issue_w(ks)
    if OPT.get("pf", 0) == 1:
        a(f"s_lshl_b32 s8, s{S_J}, 3")
        a(f"s_add_u32 s8, s8, s{S_ROLE}")
        a("s_sub_u32 s8, s8, 56")
        a("s_cmp_ge_u32 s8, 2")
        a("s_cbranch_scc1 L_nopf")
        st_ = a.snapshot()
        a(f"s_and_b32 s10, s{S_TG}, 3")
        a("s_lshl_b32 s10, s10, 1")
        a("s_add_u32 s8, s8, s10")
        a("s_lshl_b32 s8, s8, 16")
        a("s_add_u32 s8, s8, 384")
        a("v_lshlrev_b32 v209, 10, v0")
        a(f"buffer_load_dword v209, v209, {sr(SW, 4)}, s8 offen")
        a.label("L_nopf")
        a.restore(st_)
    a("v_lshlrev_b32 v9, 10, v6")
    a("v_lshl_add_u32 v9, v7, 4, v9")
    a(f"s_lshl_b32 s76, s{S_TG}, 3")
    a(f"s_add_u32 s76, s76, s{S_WAVE}")
    a("s_sub_u32 s77, s76, 172")
    a("s_cmp_lt_u32 s76, 172")
    a(f"s_cselect_b32 s{ST}, s{P_W2}, s{P_WO}")
    a(f"s_cselect_b32 s{ST + 1}, s{P_W2 + 1}, s{P_WO + 1}")
    csel(a, ST + 2, 1409024, 524288)
    a(f"s_mov_b32 s{ST + 3}, 0x00020000")
    a("s_cselect_b32 s77, s76, s77")
    csel(a, 78, HF_STRIDE, 65536)
    csel(a, 79, WS_W2T, WS_WOT)
    a("s_lshr_b32 s80, s77, 1")
    a("s_and_b32 s81, s77, 1")
    a("s_lshl_b32 s82, s80, 14")
    a("s_lshl_b32 s83, s81, 6")
    a("s_add_u32 s82, s82, s83")
    a(f"s_lshl_b32 s83, s{S_J}, 7")
    a("s_add_u32 s82, s82, s83")
    a(f"s_mul_i32 s83, s{S_J}, s78")
    a("s_add_u32 s79, s79, s83")
    a("s_lshl_b32 s83, s77, 10")
    a("s_add_u32 s79, s79, s83")
    a("s_cmp_lt_u32 s76, 236")
    a(f"s_cselect_b32 s79, s79, {WS_SIZE}")
    a("v_add_u32 v11, s7, v5")
    a(f"s_lshl_b32 s8, s{S_WAVE}, 5")
    a(f"s_add_u32 s8, s8, {L_STATS}")
    a("v_lshl_add_u32 v12, v2, 2, s8")
    a("v_and_b32 v13, 31, v0")
    a("v_lshrrev_b32 v14, 5, v0")
    a("v_bfe_u32 v52, v0, 1, 3")
    a("v_xor_b32 v52, v52, v14")
    a("v_bfe_u32 v53, v0, 3, 2")
    a("v_lshlrev_b32 v53, 13, v53")
    a("v_lshl_add_u32 v53, v3, 7, v53")
    for c in range(4):
        a(f"v_xor_b32 v15, {2 * c}, v52")
        a(f"v_lshl_add_u32 v{60 + c}, v15, 4, v53")
    a("v_bfe_u32 v52, v0, 2, 2")
    a("v_bfe_u32 v53, v0, 4, 1")
    a("v_lshlrev_b32 v15, 3, v7")
    a("v_lshl_add_u32 v15, v52, 6, v15")
    a("v_lshl_add_u32 v15, v53, 5, v15")
    a("v_add_u32 v15, s14, v15")
    a("v_lshl_add_u32 v7, v14, 8, v15")
    a("v_lshl_add_u32 v6, v14, 9, v15")
    a("v_lshlrev_b32 v57, 2, v13")
    a(f"v_add_u32 v57, {L_STATS}, v57")
    a(f"s_lshl_b32 s8, s{S_WAVE}, 7")
    a(f"s_add_u32 s8, s8, {L_CS}")
    a("v_and_b32 v52, 15, v0")
    a("v_lshrrev_b32 v53, 4, v0")
    a("v_lshlrev_b32 v54, 6, v52")
    a("v_lshl_add_u32 v54, v53, 4, v54")
    a("v_add_u32 v54, s8, v54")
    a("v_mov_b32 v15, 0x40000")
    a("v_cmp_gt_u32 vcc, 2, v52")
    a("v_cndmask_b32 v54, v15, v54, vcc")
    a("v_and_b32 v53, 1, v53")
    a("v_cmp_eq_u32 vcc, v53, v52")
    a("v_mov_b32 v15, 0x3f803f80")
    for r in range(4):
        a(f"v_cndmask_b32 v{200 + r}, 0, v15, vcc")
    a("v_lshl_add_u32 v55, v14, 4, s8")
    a("v_lshlrev_b32 v10, 7, v13")
    a(f"v_mov_b32 v15, {L_CNT}")
    a("v_mov_b32 v52, 0")
    a("ds_write2_b32 v15, v52, v52 offset0:0 offset1:1")
    a("s_mov_b32 s72, 0x3f803f80")
    srd(a, SB1, P_B1, 2752)
    a(f"s_mul_i32 s8, s{S_TG}, {HF_STRIDE}")
    a(f"s_add_u32 s8, s8, {WS_HF}")
    srd(a, SH, P_WS, 86 * 2048, "s8")
    for i in range(8):
        a.wait_tok(t_x[i])
        a(f"ds_read_b128 {vr(X + 4 * i, 4)}, v11 offset:{1024 * i}")
    stamp(a)
    nxt = PRE
    for r in range(32):
        a(f"v_dot2_f32_bf16 v48, v{X + r}, s72, {'v48' if r else '0'}")
        a(f"v_dot2_f32_bf16 v49, v{X + r}, v{X + r}, {'v49' if r else '0'}")
        if r % 4 == 3 and nxt < RS and OPT.get("late", 0) == 0:
            issue_w(nxt)
            nxt += 1
    for mod in ("quad_perm:[1,0,3,2]", "quad_perm:[2,3,0,1]", "row_half_mirror"):
        for r in (48, 49):
            a(f"v_add_f32_dpp v{r}, v{r}, v{r} {mod} row_mask:0xf bank_mask:0xf")
    a(f"v_mul_f32 v48, {f32(-1.0 / 512)}, v48")
    a(f"v_mul_f32 v49, {f32(1.0 / 512)}, v49")
    a("v_fma_f32 v49, -v48, v48, v49")
    a("v_max_f32 v49, 0, v49")
    a(f"v_add_f32 v50, {f32(1e-5)}, v49")
    a("v_rsq_f32 v50, v50")
    a("v_mul_f32 v51, v49, v50")
    a(f"v_fmaak_f32 v51, v51, v50, {f32(1e-5)}")
    a("v_rsq_f32 v51, v51")
    a("v_mul_f32 v51, v51, v50")
    a("ds_write2_b32 v12, v50, v51 offset0:0 offset1:64")
    a("ds_write_b32 v12, v48 offset:512")
    NPRE = max(8, nxt) if OPT.get("late", 0) == 2 else RS
    for ks in range(nxt, NPRE):
        issue_w(ks)
    a(f"s_cmp_lg_u32 s{S_KIND}, 1")
    a("s_cbranch_scc1 L_nokvw")
    a.raw(f"    s_waitcnt vmcnt({NPRE - 8})")
    a.label("L_nokvw")
    a.wait_all(vm=False)
    stamp(a)
    a("s_barrier")
    stamp(a)

    for ks in range(NPRE, RS):
        issue_w(ks)
    a(f"v_mov_b32 v1, {WS_E}")
    a(f"buffer_load_dword v1, v1, {sr(SWS, 4)}, 0 offen sc1")

    def make_tag():
        a.comment("hand-off tag of this launch")
        a(f"v_readfirstlane_b32 s{S_TAG}, v1")
        a(f"s_mul_i32 s{S_TAG}, s{S_TAG}, 0x9e3779b1")
        a(f"s_add_u32 s{S_TAG}, s{S_TAG}, 0x7f4a7c15")

    def t_issue():
        a(f"s_add_u32 m0, s14, {(RS - 1) * 1024}")
        return a(f"buffer_load_dwordx4 v9, {sr(ST, 4)}, s82 offen lds")

    def t_task(t_tr):
        a.wait_tok(t_tr)
        a(f"ds_read_b64_tr_b16 v[128:129], v7 offset:{(RS - 1) * 1024}")
        a(f"ds_read_b64_tr_b16 v[130:131], v7 offset:{(RS - 1) * 1024 + 512}")
        a(f"buffer_store_dwordx4 v[128:131], v5, {sr(SWS, 4)}, s79 offen sc1")

    def poll1_issue():
        a(f"s_mov_b32 s85, {WS_FL1}")
        a(f"buffer_load_dword v132, v10, {sr(SWS, 4)}, s85 offen sc1")

    def colsum_finish():
        a("ds_write_b128 v54, v[204:207]")

    def colsum_spread(dst, n):
        for q in range(n):
            a(f"ds_read_b128 {vr(dst + 4 * q, 4)}, v55 offset:{32 * q}")

    def kv_dma():
        a(f"s_and_b32 s10, s{S_WAVE}, 1")
        a("s_lshl_b32 s10, s10, 15")
        a(f"s_lshr_b32 s12, s{S_WAVE}, 1")
        a("s_lshl_b32 s12, s12, 2")
        a(f"s_add_u32 s12, s12, s{S_KROT}")
        t = None
        for s in range(4):
            a(f"s_add_u32 s11, s12, {s}")
            a("s_and_b32 s11, s11, 31")
            a("s_lshl_b32 s11, s11, 10")
            a("s_add_u32 s11, s11, s10")
            a(f"s_add_u32 m0, s14, {s * KT}")
            a(f"s_add_u32 s13, s11, {WS_VF}")
            a(f"buffer_load_dwordx4 v5, {sr(SWS, 4)}, s11 offen sc1 lds")
            a(f"s_add_u32 m0, s14, {s * KT + 1024}")
            t = a(f"buffer_load_dwordx4 v5, {sr(SWS, 4)}, s13 offen sc1 lds")
        for r in range(4):
            a(f"v_mov_b32 v{136 + r}, 0x3f803f80")
        a("v_and_b32 v140, 3, v0")
        a(f"v_mul_u32_u24 v140, {KT}, v140")
        a("v_add_u32 v140, s14, v140")
        a("ds_write_b128 v140, v[136:139] offset:2048")
        return t

    def gelu(packed):
        a("ds_read2_b32 v[58:59], v57 offset0:64 offset1:96")
        a("ds_read2_b32 v[160:161], v57 offset0:128 offset1:160")
        a("s_lshl_b32 s7, s9, 12")
        BI = 176
        for q in range(8):
            a(f"v_lshlrev_b32 v{BI + 2 * q}, 16, v{120 + q}")
            a(f"v_and_b32 v{BI + 2 * q + 1}, 0xffff0000, v{120 + q}")
        c0 = -2.0 * 0.7978845608028654 * LOG2E
        a(f"v_mov_b32 v168, {f32(c0 * 0.044715)}")
        if packed:
            a(f"v_mov_b32 v170, {f32(c0)}")
            a("v_mov_b32 v172, 1.0")
            a("v_mov_b32 v162, v59")
            a("v_mov_b32 v164, v161")
        for tt in range(2):
            for half in range(2):
                U = ACC + 16 * tt + 8 * half
                T = 192
                if (tt, half) == (1, 0):
                    t_task(t_tr)
                if packed:
                    rs, nm = ("v[58:59]", "v[160:161]") if tt == 0 else ("v[162:163]", "v[164:165]")
                    P = lambda b, r: vr(b + 2 * r, 2)
                    for r in range(4):
                        a(f"v_pk_fma_f32 {P(U, r)}, {P(144 + 8 * half, r)}, {nm}, {P(U, r)} op_sel_hi:[1,0,1]")
                    for r in range(4):
                        a(f"v_pk_fma_f32 {P(U, r)}, {P(U, r)}, {rs}, {P(BI + 8 * half, r)} op_sel_hi:[1,0,1]")
                    for r in range(4):
                        a(f"v_pk_mul_f32 {P(T, r)}, {P(U, r)}, {P(U, r)}")
                    for r in range(4):
                        a(f"v_pk_fma_f32 {P(T, r)}, {P(T, r)}, v[168:169], v[170:171] op_sel_hi:[1,0,0]")
                    for r in range(4):
                        a(f"v_pk_mul_f32 {P(T, r)}, {P(T, r)}, {P(U, r)}")
                    for r in range(8):
                        a(f"v_exp_f32 v{T + r}, v{T + r}")
                    for r in range(4):
                        a(f"v_pk_add_f32 {P(T, r)}, {P(T, r)}, v[172:173] op_sel_hi:[1,0]")
                    for r in range(8):
                        a(f"v_rcp_f32 v{T + r}, v{T + r}")
                    for r in range(4):
                        a(f"v_pk_mul_f32 {P(U, r)}, {P(U, r)}, {P(T, r)}")
                    d = 104 + 8 * tt + 4 * half
                    for r in range(4):
                        a(f"v_cvt_pk_bf16_f32 v{d + r}, v{U + 2 * r}, v{U + 2 * r + 1}")
                    a(f"buffer_store_dwordx4 {vr(d, 4)}, v5, {sr(SH, 4)}, s7 offen offset:{half * 2048 + tt * 1024} sc1")
                    continue
                for r in range(8):
                    a(f"v_fmac_f32 v{U + r}, v{144 + 8 * half + r}, v{160 + tt}")
                for r in range(8):
                    a(f"v_fma_f32 v{U + r}, v{U + r}, v{58 + tt}, v{BI + 8 * half + r}")
                for r in range(8):
                    a(f"v_mul_f32 v{T + r}, v{U + r}, v{U + r}")
                for r in range(8):
                    a(f"v_fmaak_f32 v{T + r}, v{T + r}, v168, {f32(c0)}")
                for r in range(8):
                    a(f"v_mul_f32 v{T + r}, v{T + r}, v{U + r}")
                for r in range(8):
                    a(f"v_exp_f32 v{T + r}, v{T + r}")
                for r in range(8):
                    a(f"v_add_f32 v{T + r}, 1.0, v{T + r}")
                for r in range(8):
                    a(f"v_rcp_f32 v{T + r}, v{T + r}")
                for r in range(8):
                    a(f"v_mul_f32 v{U + r}, v{U + r}, v{T + r}")
                d = 104 + 8 * tt + 4 * half
                for r in range(4):
                    a(f"v_cvt_pk_bf16_f32 v{d + r}, v{U + 2 * r}, v{U + 2 * r + 1}")
                a(f"buffer_store_dwordx4 {vr(d, 4)}, v5, {sr(SH, 4)}, s7 offen offset:{half * 2048 + tt * 1024} sc1")

    a(f"s_cmp_eq_u32 s{S_KIND}, 0")
    a.settle()
    a("s_cbranch_scc0 L_spare")
    snap0 = a.snapshot()

    def reads(ks):
        ab, bb = 96 + 4 * (ks & 1), 104 + 8 * (ks & 1)
        a.wait_tok(dma[ks])
        a(f"ds_read_b64_tr_b16 {vr(ab, 2)}, v6 offset:{(ks % RS) * 1024}")
        t = a(f"ds_read_b64_tr_b16 {vr(ab + 2, 2)}, v6 offset:{(ks % RS) * 1024 + 256}")
        for tt in range(2):
            a(f"ds_read_b128 {vr(bb + 4 * tt, 4)}, v{60 + (ks & 3)} offset:{tt * 32768 + (ks >> 2) * 1024}")
        return t

    a(f"s_cmp_lg_u32 s{S_J}, 7")
    a("s_cbranch_scc1 L_nohold")
    a("s_barrier")
    a.label("L_nohold")
    tk = {0: reads(0)}
    LOCK = OPT.get("lock", 0)
    nlock = 0
    for ks in range(32):
        if LOCK and ks % LOCK == 0 and 0 < ks < 24:
            a("s_barrier")
            nlock += 1
        if ks + 1 < 32:
            tk[ks + 1] = reads(ks + 1)
        ab, bb = 96 + 4 * (ks & 1), 104 + 8 * (ks & 1)
        a(f"v_mfma_f32_16x16x32_bf16 v[204:207], {vr(ab, 4)}, v[200:203], {'0' if ks == 0 else 'v[204:207]'}")
        for tt in range(2):
            acc = vr(ACC + 16 * tt, 16)
            a(f"v_mfma_f32_32x32x16_bf16 {acc}, {vr(ab, 4)}, {vr(bb + 4 * tt, 4)}, {'0' if ks == 0 else acc}")
            if tt == 0:
                a.wait_tok(tk[ks])
                if ks == 12:
                    make_tag()
                if ks == OPT.get("bks", 6):
                    a("s_lshl_b32 s7, s9, 6")
                    a("v_lshlrev_b32 v56, 3, v14")
                    for q in range(4):
                        a(f"buffer_load_dwordx2 {vr(120 + 2 * q, 2)}, v56, {sr(SB1, 4)}, s7 offen offset:{16 * q}")
                    if OPT.get("tpf", 1):
                        a(f"buffer_load_dword v210, v9, {sr(ST, 4)}, s82 offen")
                if ks + RS < 32:
                    issue_w(ks + RS)
                elif ks == OPT.get("pollks", 27):
                    a(f"s_cmp_ge_u32 s{S_WAVE}, 2")
                    a("s_cbranch_scc1 L_nopre")
                    st_ = a.snapshot()
                    poll1_issue()
                    a.label("L_nopre")
                    a.restore(st_)
                elif ks == 29:
                    t_tr = t_issue()
    stamp(a, 4)
    a("s_mov_b32 s73, 0")
    a(f"s_cmp_ge_u32 s{S_WAVE}, 2")
    a.settle()
    a("s_cbranch_scc1 L_noearly")
    st_ = a.snapshot()
    a.raw("    s_waitcnt vmcnt(1)")
    poll_check(a, 132, 1)
    a.settle()
    a("s_cbranch_scc0 L_noearly")
    stamp(a, 21)
    a("s_mov_b32 s73, 1")
    kv_dma()
    a.settle()
    a.label("L_noearly")
    a.restore(st_)
    colsum_finish()
    colsum_spread(144, 4)
    a(f"s_cmp_lt_u32 s{S_ROLE}, 2")
    a.settle()
    a("s_cbranch_scc0 L_mlp")
    snap = a.snapshot()
    a("ds_read2_b32 v[58:59], v57 offset0:0 offset1:32")
    a("ds_read2_b32 v[160:161], v57 offset0:128 offset1:160")
    a(f"s_lshl_b32 s8, s{S_ROLE}, 12")
    a(f"s_add_u32 s8, s8, {L_QF}")
    a("v_add_u32 v56, s8, v5")
    a(f"v_mul_f32 v58, {f32(0.25 * LOG2E)}, v58")
    a(f"v_mul_f32 v59, {f32(0.25 * LOG2E)}, v59")
    for tt in range(2):
        for r in range(16):
            a(f"v_fmac_f32 v{ACC + 16 * tt + r}, v{144 + r}, v{160 + tt}")
        for r in range(16):
            a(f"v_mul_f32 v{ACC + 16 * tt + r}, v{ACC + 16 * tt + r}, v{58 + tt}")
        for ab in range(2):
            d = 104 + 8 * tt + 4 * ab
            for r in range(4):
                s0 = ACC + 16 * tt + 8 * ab + 2 * r
                a(f"v_cvt_pk_bf16_f32 v{d + r}, v{s0}, v{s0 + 1}")
            a(f"ds_write_b128 v56, {vr(d, 4)} offset:{(2 * tt + ab) * 1024}")
    t_task(t_tr)
    a.settle()
    a("s_branch L_done")

    a.label("L_mlp")
    a.restore(snap)
    a(f"s_cmp_ge_u32 s{S_WAVE}, 4")
    a("s_cbranch_scc1 L_young")
    gelu(bool(LOCK))
    a.settle()
    a("s_branch L_done")
    a.label("L_young")
    a.restore(snap)
    gelu(True)
    a.settle()
    a("s_branch L_done")

    a.label("L_spare")
    a.restore(snap0)
    a(f"s_cmp_eq_u32 s{S_KIND}, 2")
    a("s_cbranch_scc1 L_idle")
    a("v_and_b32 v128, 15, v0")
    a("v_lshrrev_b32 v129, 4, v0")
    a(f"s_and_b32 s8, s{S_WAVE}, 1")
    a("s_lshl_b32 s7, s8, 15")
    a("v_lshrrev_b32 v130, 1, v128")
    a("v_xor_b32 v130, v130, v129")
    a("v_lshrrev_b32 v131, 3, v128")
    a("v_lshlrev_b32 v131, 13, v131")
    a("v_lshl_add_u32 v131, v3, 7, v131")
    a("v_add_u32 v131, s7, v131")
    a("v_lshl_add_u32 v60, v130, 4, v131")
    a("v_xor_b32 v61, 64, v60")
    a(f"s_and_b32 s7, s{S_WAVE}, 6")
    a(f"s_mul_i32 s7, s7, {RS * 1024}")
    a(f"s_add_u32 s7, s7, {L_RING}")
    a("v_lshlrev_b32 v6, 3, v128")
    a("v_lshl_add_u32 v6, v129, 8, v6")
    a("v_add_u32 v6, s7, v6")
    for r in range(4):
        a(f"v_mov_b32 v{200 + r}, 0x3f803f80")
    a(f"s_lshl_b32 s10, s{S_TG}, 1")
    a("s_add_u32 s10, s10, s8")
    a("s_lshl_b32 s10, s10, 10")
    a("s_lshl_b32 s7, s8, 7")
    a(f"s_add_u32 s7, s7, {L_STATS}")
    a(f"s_cmp_lt_u32 s{S_ROLE}, 6")
    a.settle()
    a("s_cbranch_scc0 L_doV")
    snap2 = a.snapshot()
    for isv in (0, 1):
        if isv:
            a.label("L_doV")
            a.restore(snap2)
        KB, ND = 144, 4

        def reads_kv(s_):
            b = KB + 12 * (s_ % ND)
            o = (s_ >> 3) * RS * 1024 + (s_ & 7) * 1024
            a(f"ds_read_b64_tr_b16 {vr(b, 2)}, v6 offset:{o}")
            a(f"ds_read_b64_tr_b16 {vr(b + 2, 2)}, v6 offset:{o + 128}")
            for u in range(2):
                a(f"ds_read_b128 {vr(b + 4 + 4 * u, 4)}, v{60 + (s_ & 1)} offset:{16384 * u + 1024 * (s_ >> 1)}")

        for s_ in range(ND - 1):
            reads_kv(s_)
        for s_ in range(16):
            if s_ + ND - 1 < 16:
                reads_kv(s_ + ND - 1)
            b = KB + 12 * (s_ % ND)
            for u, other in ((2, "v[200:203]"), (0, vr(b + 4, 4)), (1, vr(b + 8, 4))):
                acc = vr(ACC + 4 * u, 4)
                opa, opb = (other, vr(b, 4)) if isv else (vr(b, 4), other)
                a(f"v_mfma_f32_16x16x32_bf16 {acc}, {opa}, {opb}, {'0' if s_ == 0 else acc}")
            if s_ == 13:
                if isv:
                    a("v_lshl_add_u32 v57, v129, 4, s7")
                    for u in range(2):
                        a(f"ds_read_b128 {vr(96 + 4 * u, 4)}, v57 offset:{64 * u}")
                        a(f"ds_read_b128 {vr(104 + 4 * u, 4)}, v57 offset:{512 + 64 * u}")
                    a("v_lshrrev_b32 v130, 1, v129")
                    a("v_lshl_add_u32 v130, v130, 4, v128")
                    a("v_lshlrev_b32 v130, 4, v130")
                    a("v_and_b32 v131, 1, v129")
                    a("v_lshl_add_u32 v56, v131, 3, v130")
                    a(f"s_add_u32 s10, s10, {WS_VF}")
                else:
                    a("v_lshl_add_u32 v57, v128, 2, s7")
                    a("ds_read2_b32 v[96:97], v57 offset0:0 offset1:16")
                    a("ds_read2_b32 v[104:105], v57 offset0:128 offset1:144")
                    a("v_and_b32 v131, 1, v129")
                    a("v_lshl_add_u32 v130, v131, 5, v128")
                    a("v_lshlrev_b32 v130, 4, v130")
                    a("v_lshrrev_b32 v131, 1, v129")
                    a("v_lshl_add_u32 v56, v131, 3, v130")
        stamp(a, 13)
        for u in range(2):
            for r in range(4):
                nm = 104 + 4 * u + r if isv else 104 + u
                a(f"v_fmac_f32 v{ACC + 4 * u + r}, v{ACC + 8 + r}, v{nm}")
            for r in range(4):
                rs = 96 + 4 * u + r if isv else 96 + u
                a(f"v_mul_f32 v{ACC + 4 * u + r}, v{ACC + 4 * u + r}, v{rs}")
            a(f"v_cvt_pk_bf16_f32 v{112 + 2 * u}, v{ACC + 4 * u}, v{ACC + 4 * u + 1}")
            a(f"v_cvt_pk_bf16_f32 v{113 + 2 * u}, v{ACC + 4 * u + 2}, v{ACC + 4 * u + 3}")
            a(f"buffer_store_dwordx2 {vr(112 + 2 * u, 2)}, v56, {sr(SWS, 4)}, s10 offen offset:{(512 if isv else 256) * u} sc1")
        a.wait_all()
        a.settle()
        if not isv:
            a("s_branch L_kvpub")
    a.label("L_kvpub")
    stamp(a, 14)
    make_tag()
    a(f"v_mov_b32 v15, {L_CNT}")
    a("v_mov_b32 v52, 1")
    a("s_mov_b64 exec, 1")
    a("ds_add_rtn_u32 v53, v15, v52")
    a("s_mov_b64 exec, -1")
    a(f"s_lshl_b32 s8, s{S_TG}, 7")
    a(f"s_add_u32 s8, s8, {WS_FL1}")
    a("v_readfirstlane_b32 s7, v53")
    a("s_cmp_lg_u32 s7, 3")
    a.settle()
    a("s_cbranch_scc1 L_noflag1")
    flag_store(a, "s8", 136)
    a.settle()
    a.label("L_noflag1")
    a("s_barrier")
    a.label("L_idle")
    a.reset_state()
    a.wait_all()
    make_tag()
    a("s_mov_b32 s73, 0")
    t_task(t_issue())
    for _ in range(nlock):
        a("s_barrier")
    a.settle()

    a.label("L_done")
    a.reset_state()
    stamp(a, 19)
    a(f"s_cmp_ge_u32 s{S_WAVE}, 2")
    a("s_cbranch_scc1 L_late")
    a("s_cmp_eq_u32 s73, 1")
    a("s_cbranch_scc1 L_kvdone")
    spin(a, "L_poll1", poll1_issue, 132, 1)
    a.reset_state()
    stamp(a, 21)
    kv_dma()
    a.wait_all()
    a.settle()
    a.label("L_kvdone")
    a.raw("    s_waitcnt vmcnt(1) lgkmcnt(0)")
    stamp(a, 5)
    a("s_barrier")
    stamp(a, 6)
    a.settle()
    a("s_branch L_attn")
    a.label("L_late")
    a.reset_state()
    a.wait_all(vm=False)
    stamp(a, 5)
    a("s_barrier")
    stamp(a, 6)
    kv_dma()
    a.settle()
    a.label("L_attn")
    a.reset_state()
    _stamp["n"] = 7


def attention(a):
    S0, O0, Q0, KR, V0R, V1R, IDX = 16, 48, 80, 88, 92, 96, 100
    M, BUF, DEPTH, WO, XR, B2R = 104, 136, 3, 172, 236, 240
    a(f"s_and_b32 s6, s{S_WAVE}, 3")
    a(f"s_lshr_b32 s7, s{S_WAVE}, 2")
    a("s_mul_i32 s13, s7, 10240")
    a(f"s_add_u32 s13, s13, {L_RING}")
    a("v_add_u32 v1, s13, v5")
    a("v_and_b32 v6, 15, v0")
    a("v_lshrrev_b32 v7, 5, v0")
    a("v_lshlrev_b32 v6, 4, v6")
    a("v_lshl_add_u32 v6, v7, 8, v6")
    a("v_and_b32 v8, 31, v0")
    a("v_add_u32 v2, 1024, v6")
    a("v_add_u32 v3, 1536, v6")
    a("v_mov_b32 v9, 2048")
    a("v_cmp_eq_u32 vcc, 16, v8")
    a("v_cndmask_b32 v2, v2, v9, vcc")
    a("v_cndmask_b32 v3, v3, v9, vcc")
    a("v_mov_b32 v9, 0x40000")
    a("v_cmp_lt_u32 vcc, 16, v8")
    a("v_cndmask_b32 v2, v2, v9, vcc")
    a("v_cndmask_b32 v3, v3, v9, vcc")
    a("v_add_u32 v2, s13, v2")
    a("v_add_u32 v3, s13, v3")
    a("s_lshl_b32 s8, s6, 11")
    a(f"s_add_u32 s8, s8, {L_QF}")
    a("v_add_u32 v4, s8, v5")
    a(f"v_mov_b32 v{IDX}, 0xdddddddd")
    for r in range(32):
        a(f"v_mov_b32 v{O0 + r}, 0")

    def kvoff(it):
        return ((it >> 2) & 1) * 20480 + (it & 3) * KT if it < 16 else (it - 16) * KT

    def rebase(it, r):
        if it == 8:
            a(f"v_add_u32 v{r}, 40960, v{r}")
        if it == 16:
            a(f"v_subrev_u32 v{r}, s87, v{r}")

    def rk(it):
        rebase(it, 1)
        a(f"ds_read_b128 {vr(KR, 4)}, v1 offset:{kvoff(it)}")

    def rv(it, p):
        rebase(it, 2 + p)
        a(f"ds_read_b128 {vr((V0R, V1R)[p], 4)}, v{2 + p} offset:{kvoff(it)}")

    def kv_dma2(n):
        s_, isv = n >> 1, n & 1
        if n == 0:
            a(f"s_mul_i32 s87, s7, {(10240 - 16 * KT) & 0xffffffff}")
            a(f"s_add_u32 s87, s87, {L_RING + 40960}")
            a("s_lshl_b32 s10, s7, 4")
            a("s_add_u32 s10, s10, s6")
            a(f"s_mul_i32 s14, s10, {KT}")
            a("s_lshl_b32 s10, s7, 15")
            a(f"s_add_u32 s12, s6, s{S_KROT}")
        if isv:
            a(f"s_add_u32 s11, s11, {WS_VF}")
        else:
            a(f"s_add_u32 s11, s12, {16 + 4 * s_}")
            a("s_and_b32 s11, s11, 31")
            a("s_lshl_b32 s11, s11, 10")
            a("s_add_u32 s11, s11, s10")
        a(f"s_add_u32 m0, s14, {4 * s_ * KT + 1024 * isv}")
        a(f"buffer_load_dwordx4 v5, {sr(SWS, 4)}, s11 offen sc1 lds")
        if n == 7:
            a("v_and_b32 v101, 3, v0")
            a(f"v_mul_u32_u24 v101, {4 * KT}, v101")
            a("v_add_u32 v101, s14, v101")
            a("ds_write_b128 v101, v[136:139] offset:2048")

    def mf(t):
        a(f"v_mfma_f32_32x32x16_bf16 {vr(S0 + 16 * (t & 1), 16)}, {vr(KR, 4)}, {vr(Q0 + 4 * (t & 1), 4)}, 0")

    def smf(t, p):
        a(f"v_smfmac_f32_32x32x32_bf16 {vr(O0 + 16 * (t & 1), 16)}, {vr((V0R, V1R)[p], 4)}, "
          f"{vr(S0 + 16 * (t & 1) + 8 * p, 8)}, v{IDX}")

    def ex(t, lo, hi):
        for i in range(lo, hi):
            r = S0 + 16 * (t & 1) + i
            a(f"v_exp_f32 v{r}, v{r}")

    NT = 64
    hooks = {(t, p): [] for t in range(NT) for p in range(4)}

    def at(t, p, fn):
        hooks[(t, p)].append(fn)

    def setup_mlp2():
        a(f"s_mul_i32 s14, s{S_J}, {HF_STRIDE}")
        a(f"s_add_u32 s14, s14, {WS_W2T}")
        srd(a, SW2, P_WS, 86 * 2048, "s14")
        a(f"s_lshl_b32 s14, s{S_J}, 16")
        a(f"s_add_u32 s14, s14, {WS_WOT}")
        srd(a, SWO, P_WS, 65536, "s14")
        a(f"s_lshl_b32 s14, s{S_TG}, 16")
        a(f"s_add_u32 s14, s14, {WS_OF}")
        srd(a, SO, P_WS, 65536, "s14")
        srd(a, SB2, P_B2, 1024)
        srd(a, SOUT, P_OUT, 2097152)

    def setup_offsets():
        a(f"s_and_b32 s72, s{S_WAVE}, 1")
        a(f"s_lshr_b32 s73, s{S_WAVE}, 1")
        a("s_lshl_b32 s8, s73, 11")
        a("s_lshl_b32 s9, s72, 10")
        a("s_add_u32 s9, s9, s8")
        a("s_lshl_b32 s10, s73, 14")
        a("s_lshl_b32 s11, s72, 10")
        a("s_add_u32 s11, s11, s10")
        a(f"s_lshl_b32 s12, s{S_TG}, 16")
        a(f"s_lshl_b32 s13, s{S_WAVE}, 13")
        a("s_add_u32 s12, s12, s13")
        a(f"s_lshl_b32 s13, s{S_J}, 7")
        a("s_add_u32 s12, s12, s13")

    def publish_h():
        a.wait_all()
        a("s_barrier")
        stamp(a, 17)
        a(f"s_cmp_lg_u32 s{S_WAVE}, 0")
        a("s_cbranch_scc1 L_noflag2")
        hist = list(a.hist)
        a(f"s_lshl_b32 s14, s{S_TG}, 3")
        a(f"s_add_u32 s14, s14, s{S_J}")
        a("s_lshl_b32 s14, s14, 7")
        a(f"s_add_u32 s14, s14, {WS_FL2}")
        flag_store(a, "s14", 101)
        a.label("L_noflag2")
        a.hist = hist

    def poll2_addr():
        a(f"v_lshl_add_u32 v245, v8, 3, s{S_J}")
        a(f"s_lshl_b32 s14, s{S_TG}, 3")
        a("v_and_b32 v246, 7, v0")
        a("v_add_u32 v246, s14, v246")
        a("v_cmp_eq_u32 vcc, 0, v7")
        a("v_cndmask_b32 v245, v246, v245, vcc")
        a("v_lshlrev_b32 v245, 7, v245")

    def poll2_issue():
        a(f"s_mov_b32 s85, {WS_FL2}")
        a(f"buffer_load_dword v244, v245, {sr(SWS, 4)}, s85 offen sc1")

    def check_h():
        poll_check(a, 244, 1)
        a("s_cbranch_scc0 L_spin2")
        a.label("L_spin2_ret")
        stamp(a, 16)

    def mlp2_load(i, k):
        b = BUF + 12 * (i % DEPTH)
        if k == 0:
            a(f"buffer_load_dwordx4 {vr(b, 4)}, v5, {sr(SW2, 4)}, s9 offen sc1")
            a("s_add_u32 s9, s9, 8192")
        elif k == 1:
            a(f"buffer_load_dwordx4 {vr(b + 4, 4)}, v5, {sr(SH, 4)}, s8 offen sc1")
        else:
            a(f"buffer_load_dwordx4 {vr(b + 8, 4)}, v5, {sr(SH, 4)}, s8 offen offset:1024 sc1")
            a("s_add_u32 s8, s8, 8192")

    def mlp2_mm(i, u):
        b = BUF + 12 * (i % DEPTH)
        acc = vr(M + 16 * u, 16)
        a(f"v_mfma_f32_32x32x16_bf16 {acc}, {vr(b, 4)}, {vr(b + 4 + 4 * u, 4)}, {'0' if i == 0 else acc}")

    def wo_load(n):
        a(f"buffer_load_dwordx4 {vr(WO + 4 * n, 4)}, v5, {sr(SWO, 4)}, s10 offen offset:{(n & 3) * 1024} sc1")
        if n & 3 == 3:
            a("s_add_u32 s10, s10, 4096")

    def tail_addr():
        a("v_lshrrev_b32 v10, 3, v0")
        a("v_and_b32 v11, 7, v0")
        a("v_lshlrev_b32 v12, 10, v10")
        a("v_lshl_add_u32 v12, v11, 4, v12")
        a("v_lshlrev_b32 v13, 4, v11")
        a(f"buffer_load_dwordx4 {vr(XR, 4)}, v12, {sr(SX, 4)}, s12 offen")
        a(f"buffer_load_dwordx4 {vr(B2R, 4)}, v13, {sr(SB2, 4)}, s13 offen")

    def red_addr():
        a("s_lshl_b32 s14, s73, 14")
        a("v_and_b32 v14, 15, v0")
        a("v_xor_b32 v14, v14, v7")
        a("v_lshlrev_b32 v14, 4, v14")
        a("v_lshl_add_u32 v14, v8, 8, v14")
        a("v_add_u32 v14, s14, v14")
        a("s_lshl_b32 s15, s72, 7")
        a("v_xor_b32 v15, s15, v14")
        a(f"v_add_u32 v15, {L_MP}, v15")
        a("s_lshl_b32 s15, s72, 13")
        a("v_add_u32 v14, s15, v14")

    def red_addr2():
        a(f"s_lshl_b32 s15, s{S_WAVE}, 3")
        a("v_add_u32 v10, s15, v10")
        a("v_and_b32 v248, 15, v10")
        a("v_lshlrev_b32 v11, 1, v11")
        a("v_xor_b32 v248, v248, v11")
        a("v_lshlrev_b32 v248, 4, v248")
        a("v_lshl_add_u32 v248, v10, 8, v248")
        a("v_xor_b32 v249, 16, v248")
        a(f"v_add_u32 v250, {L_MP}, v248")
        a(f"v_add_u32 v251, {L_MP}, v249")

    def m_write(q):
        if q:
            a(f"v_xor_b32 v101, {q << 5}, v15")
        ad = "v101" if q else "v15"
        for u in range(2):
            a(f"ds_write_b128 {ad}, {vr(M + 16 * u + 4 * q, 4)} offset:{u * 8192}")

    TP = OPT.get("tp", 5)
    T0 = OPT.get("t0", 14)
    at(TP, 0, publish_h)
    for n in range(8):
        at(TP + n // 2, (1, 3)[n & 1], lambda n=n: kv_dma2(n))
    at(TP + 4, 2, setup_mlp2)
    at(TP + 5, 2, setup_offsets)
    at(1, 2, poll2_addr)
    at(T0 - 3, 2, poll2_issue)
    at(T0 - 1, 3, check_h)
    at(28, 0, lambda: a("s_barrier"))
    for i in range(22):
        at(T0 + 2 * i, 1, lambda i=i: mlp2_load(i, 0))
        at(T0 + 2 * i, 3, lambda i=i: mlp2_load(i, 1))
        at(T0 + 2 * i + 1, 1, lambda i=i: mlp2_load(i, 2))
        at(T0 + 2 * i + 3, 2, lambda i=i: mlp2_mm(i, 0))
        at(T0 + 2 * i + 4, 2, lambda i=i: mlp2_mm(i, 1))
    at(48, 0, lambda: a("s_barrier"))
    at(48, 0, lambda: stamp(a, 18))
    at(50, 3, red_addr)
    for n in range(16):
        at(56 + n // 2, (0, 2)[n & 1], lambda n=n: wo_load(n))
    at(52, 3, tail_addr)
    at(53, 3, red_addr2)
    for q in range(4):
        at(62 + (q >> 1), (1, 3)[q & 1], lambda q=q: m_write(q))

    a(f"ds_read_b128 {vr(Q0, 4)}, v4")
    rk(0)
    a(f"ds_read_b128 {vr(Q0 + 4, 4)}, v4 offset:1024")
    rv(0, 0)
    rv(0, 1)
    mf(0)
    for t in range(NT):
        it = t >> 1
        for fn in hooks[(t, 0)]:
            fn()
        ex(t, 0, 2)
        if t > 0:
            smf(t - 1, 1)
            if t % 2 == 0:
                rv(it, 1)
        ex(t, 2, 5)
        if t + 1 < NT:
            mf(t + 1)
            if t % 2 == 0 and it + 1 < 32:
                rk(it + 1)
        ex(t, 5, 7)
        for fn in hooks[(t, 1)]:
            fn()
        ex(t, 7, 10)
        smf(t, 0)
        if t % 2 == 1 and it + 1 < 32:
            rv(it + 1, 0)
        ex(t, 10, 13)
        for fn in hooks[(t, 2)]:
            fn()
        ex(t, 13, 15)
        for fn in hooks[(t, 3)]:
            fn()
        ex(t, 15, 16)
    smf(NT - 1, 1)
    stamp(a)

    a(f"s_mul_i32 s14, s{S_WAVE}, 2304")
    a(f"s_add_u32 s14, s14, {L_XCH}")
    a(f"s_xor_b32 s15, s{S_WAVE}, 4")
    a("s_mul_i32 s15, s15, 2304")
    a(f"s_add_u32 s15, s15, {L_XCH}")
    a("v_add_u32 v1, s14, v5")
    a("v_lshl_add_u32 v2, v0, 2, s14")
    a("v_add_u32 v3, s15, v5")
    a("v_lshl_add_u32 v4, v0, 2, s15")
    a("s_cmp_eq_u32 s7, 0")
    a.settle()
    a("s_cbranch_scc1 L_lo")
    snap = a.snapshot()
    for kh in (1, 0):
        if kh == 0:
            a.label("L_lo")
            a.restore(snap)
        give, keep = O0 + 16 * (1 - kh), O0 + 16 * kh
        a(f"ds_write_b128 v1, {vr(give, 4)}")
        a(f"ds_write_b128 v1, {vr(give + 4, 4)} offset:1024")
        a(f"ds_write_b32 v2, v{give + 8} offset:2048")
        for r in range(9):
            a(f"v_mov_b32 v{S0 + r}, v{keep + r}")
        for r in range(4):
            a(f"v_mov_b32 v{S0 + 28 + r}, v{Q0 + 4 * kh + r}")
        a.wait_all(vm=False)
        a.settle()
        if kh == 1:
            a("s_branch L_join")
    a.label("L_join")
    a("s_barrier")
    stamp(a)
    a(f"ds_read_b128 {vr(O0, 4)}, v3")
    a(f"ds_read_b128 {vr(O0 + 4, 4)}, v3 offset:1024")
    a(f"ds_read_b32 v{O0 + 8}, v4 offset:2048")
    a(f"s_lshl_b32 s14, s{S_J}, 2")
    a("s_and_b32 s15, s6, 2")
    a("s_add_u32 s14, s14, s15")
    a("s_add_u32 s14, s14, s7")
    a("s_and_b32 s15, s6, 1")
    a("s_lshl_b32 s8, s14, 11")
    a("s_lshl_b32 s9, s15, 10")
    a("s_add_u32 s8, s8, s9")
    a(f"s_lshl_b32 s9, s{S_TG}, 1")
    a("s_add_u32 s9, s9, s15")
    a("s_lshl_b32 s9, s9, 5")
    a("s_add_u32 s9, s9, s14")
    a("s_lshl_b32 s9, s9, 7")
    a(f"s_add_u32 s9, s9, {WS_FL3}")
    for r in range(9):
        a(f"v_add_f32 v{O0 + r}, v{O0 + r}, v{S0 + r}")
    a(f"v_mov_b32 v101, v{O0 + 8}")
    a(f"v_permlane32_swap_b32 v{O0 + 8}, v101")
    a(f"v_max3_f32 v102, |v{O0}|, |v{O0 + 1}|, |v{O0 + 2}|")
    a(f"v_max3_f32 v102, |v{O0 + 3}|, |v{O0 + 4}|, v102")
    a(f"v_max3_f32 v102, |v{O0 + 5}|, |v{O0 + 6}|, v102")
    a(f"v_max3_f32 v102, |v{O0 + 7}|, v{O0 + 8}, v102")
    a(f"v_cmp_gt_f32 vcc, {f32(2.0 ** 100)}, v102")
    a(f"s_mov_b32 s74, {f32(2.0 ** -60)}")
    a(f"v_cmp_lt_f32 s[14:15], s74, v{O0 + 8}")
    a("s_and_b64 vcc, vcc, s[14:15]")
    a("s_cmp_eq_u64 vcc, exec")
    a.settle()
    a("s_cbranch_scc0 L_slow")
    a.label("L_fin")
    a(f"v_rcp_f32 v101, v{O0 + 8}")
    for r in range(8):
        a(f"v_mul_f32 v{O0 + r}, v{O0 + r}, v101")
    for r in range(4):
        a(f"v_cvt_pk_bf16_f32 v{S0 + r}, v{O0 + 2 * r}, v{O0 + 2 * r + 1}")
    t_o = a(f"buffer_store_dwordx4 {vr(S0, 4)}, v5, {sr(SO, 4)}, s8 offen sc1")
    R = 104
    for kq in range(4):
        for i in range(2):
            a(f"ds_read_b128 {vr(R + 8 * kq + 4 * i, 4)}, v{250 + i} offset:{kq * 16384}")
    G, XF, T = 80, 88, 24
    for r in range(4):
        a(f"v_lshlrev_b32 v{G + 2 * r}, 16, v{B2R + r}")
        a(f"v_and_b32 v{G + 2 * r + 1}, 0xffff0000, v{B2R + r}")
    a.wait_tok(t_o)
    flag_store(a, "s9", 101)
    a(f"s_lshl_b32 s14, s{S_TG}, 1")
    a("s_add_u32 s14, s14, s72")
    a("s_lshl_b32 s14, s14, 5")
    a("s_lshl_b32 s15, s73, 3")
    a("s_add_u32 s14, s14, s15")
    a("s_lshl_b32 s14, s14, 7")
    a(f"s_add_u32 s14, s14, {WS_FL3}")
    a("v_and_b32 v102, 7, v0")
    a("v_lshlrev_b32 v102, 7, v102")
    for r in range(4):
        a(f"v_lshlrev_b32 v{XF + 2 * r}, 16, v{XR + r}")
        a(f"v_and_b32 v{XF + 2 * r + 1}, 0xffff0000, v{XR + r}")
    for kq in range(4):
        for r in range(8):
            a(f"v_add_f32 v{G + r}, v{G + r}, v{R + 8 * kq + r}")
    for r in range(8):
        a(f"v_mul_f32 v{T + r}, {f32(-LOG2E)}, v{G + r}")
    for r in range(8):
        a(f"v_exp_f32 v{T + r}, v{T + r}")
    for r in range(8):
        a(f"v_add_f32 v{T + r}, 1.0, v{T + r}")
    for r in range(8):
        a(f"v_rcp_f32 v{T + r}, v{T + r}")
    for r in range(8):
        a(f"v_mul_f32 v{G + r}, v{G + r}, v{T + r}")
    stamp(a)
    spin(a, "L_poll3", lambda: a(f"buffer_load_dword v103, v102, {sr(SWS, 4)}, s14 offen sc1"), 103, n=1)
    stamp(a)
    OF, SA = 136, 16
    for i in range(8):
        a(f"buffer_load_dwordx4 {vr(OF + 4 * i, 4)}, v5, {sr(SO, 4)}, s11 offen offset:{(i & 1) * 2048} sc1")
        if i & 1:
            a("s_add_u32 s11, s11, 4096")
    for i in range(8):
        for u in range(2):
            acc = vr(SA + 16 * u, 16)
            a(f"v_mfma_f32_32x32x16_bf16 {acc}, {vr(WO + 8 * i + 4 * u, 4)}, {vr(OF + 4 * i, 4)}, {'0' if i == 0 else acc}")
    for u in range(2):
        for q in range(4):
            x = (u << 7) | (q << 5)
            if x:
                a(f"v_xor_b32 v{104 + 4 * u + q}, {x}, v14")
    for u in range(2):
        for q in range(4):
            ad = f"v{104 + 4 * u + q}" if (u or q) else "v14"
            a(f"ds_write_b128 {ad}, {vr(SA + 16 * u + 4 * q, 4)}")
    a.wait_all(vm=False)
    stamp(a)
    a("s_barrier")
    for kq in range(4):
        for i in range(2):
            a(f"ds_read_b128 {vr(R + 8 * kq + 4 * i, 4)}, v{248 + i} offset:{kq * 16384}")
    for kq in range(1, 4):
        for r in range(8):
            a(f"v_add_f32 v{R + r}, v{R + r}, v{R + 8 * kq + r}")
    for r in range(8):
        a(f"v_fmac_f32 v{XF + r}, v{R + r}, v{G + r}")
    for r in range(4):
        a(f"v_cvt_pk_bf16_f32 v{XR + r}, v{XF + 2 * r}, v{XF + 2 * r + 1}")
    a(f"buffer_store_dwordx4 {vr(XR, 4)}, v12, {sr(SOUT, 4)}, s12 offen")
    a(f"s_or_b32 s14, s2, s{S_WAVE}")
    a("s_cmp_lg_u32 s14, 0")
    a("s_cbranch_scc1 L_notag")
    a(f"s_mov_b32 s14, {WS_E}")
    flag_store(a, "s14", 101)
    a.label("L_notag")
    if STAMPS:
        a.wait_all()
        stamp_flush(a)
    a("s_endpgm")

    a.label("L_spin2")
    a.reset_state()
    spin(a, "L_poll2", poll2_issue, 244, 1)
    a("s_branch L_spin2_ret")

    a.label("L_slow")
    a.reset_state()
    QS, C0 = S0 + 28, 64
    a("v_mov_b32 v101, 0xff800000")
    a("s_mov_b32 s74, 0")
    a.settle()
    a.label("L_p1")
    a(f"s_add_u32 s75, s74, {WS_KF}")
    a(f"buffer_load_dwordx4 {vr(KR, 4)}, v5, {sr(SWS, 4)}, s75 offen sc1")
    a(f"v_mfma_f32_32x32x16_bf16 {vr(S0, 16)}, {vr(KR, 4)}, {vr(QS, 4)}, 0")
    for r in range(8):
        a(f"v_max3_f32 v101, v{S0 + 2 * r}, v{S0 + 2 * r + 1}, v101")
    a("s_add_u32 s74, s74, 1024")
    a("s_cmp_lt_u32 s74, 65536")
    a.settle()
    a("s_cbranch_scc1 L_p1")
    a("v_mov_b32 v102, v101")
    a("v_permlane32_swap_b32 v101, v102")
    a("v_max_f32 v101, v101, v102")
    for r in range(16):
        a(f"v_sub_f32 v{C0 + r}, 0, v101")
        a(f"v_mov_b32 v{O0 + r}, 0")
    for r in range(8):
        a(f"v_mov_b32 v{V0R + r}, 0x3f803f80")
    a("s_mov_b32 s74, 0")
    a("s_mov_b32 s14, 0x0000ffff")
    a("s_mov_b32 s15, 0x0000ffff")
    a.settle()
    a.label("L_p2")
    a(f"s_add_u32 s75, s74, {WS_KF}")
    a(f"buffer_load_dwordx4 {vr(KR, 4)}, v5, {sr(SWS, 4)}, s75 offen sc1")
    a(f"s_add_u32 s75, s74, {WS_VF}")
    a("s_mov_b64 exec, s[14:15]")
    a(f"buffer_load_dwordx4 {vr(V0R, 4)}, v6, {sr(SWS, 4)}, s75 offen sc1")
    a(f"buffer_load_dwordx4 {vr(V1R, 4)}, v6, {sr(SWS, 4)}, s75 offen offset:512 sc1")
    a("s_mov_b64 exec, -1")
    a(f"v_mfma_f32_32x32x16_bf16 {vr(S0, 16)}, {vr(KR, 4)}, {vr(QS, 4)}, {vr(C0, 16)}")
    ex(0, 0, 16)
    smf(0, 0)
    smf(0, 1)
    a("s_add_u32 s74, s74, 1024")
    a("s_cmp_lt_u32 s74, 65536")
    a.wait_all()
    a.settle()
    a("s_cbranch_scc1 L_p2")
    a("s_branch L_fin")


def descriptor(name):
    return f""".section .rodata,"a"
.p2align 6
.amdhsa_kernel {name}
  .amdhsa_next_free_vgpr 256
  .amdhsa_next_free_sgpr 96
  .amdhsa_accum_offset 256
  .amdhsa_group_segment_fixed_size 0
  .amdhsa_kernarg_size 104
  .amdhsa_user_sgpr_count 2
  .amdhsa_user_sgpr_kernarg_segment_ptr 1
  .amdhsa_system_sgpr_workgroup_id_x 1
  .amdhsa_float_denorm_mode_32 3
.end_amdhsa_kernel
"""


def main(out):
    a = Asm()
    hdr = open("cdna_kernels/" + NAME + ".s.ref").read().split("; Override launch")[0]
    a.raw(hdr.rstrip())
    a.raw("; @launch grid=(256,1,1) block=(512,1,1) lds=163840")
    a.raw('.amdgcn_target "amdgcn-amd-amdhsa--gfx950"\n.text')
    gen(a)
    a.raw(descriptor(KN))
    open(out, "w").write(a.text())
    print("written", out, "nop states", a.nops, "stamps", _stamp["n"])


if __name__ == "__main__":
    STAMPS = len(sys.argv) > 2 and sys.argv[2] == "1"
    for kv in sys.argv[3:]:
        k_, v_ = kv.split("=")
        OPT[k_] = int(v_)
    main(sys.argv[1])
```

```python
import struct
import sys
from asmgen import Asm, vr, sr

NAME = "recurrent_scan__grouped_kv_mqa__mixer_channel_mlp__prompt"
KN = NAME + "_kernel"

WS_KF = 0x000000
WS_VF = 0x010000
WS_E = 0x020000
WS_FL1 = 0x021000
WS_FL2 = 0x028000
WS_FL3 = 0x080000
WS_HF = 0x400000
HF_STRIDE = 0x2C000
WS_W2T = 0xA00000
WS_WOT = 0xC00000
WS_OF = 0xD00000
WS_ST = 0xF00000
WS_SIZE = 0x1000000

P_X, P_WQ, P_WK, P_WV, P_WO, P_BX, P_W1, P_B1, P_W2, P_B2, P_OUT, P_DBG, P_WS = range(16, 42, 2)
S_WAVE, S_TG, S_J, S_TAG, S_ROLE, S_ROT, S_KROT, S_KIND = 3, 4, 5, 84, 42, 43, 75, 88
S_OOFF = 89
SX, SW, SKV, SWS, ST, SB1, SH = 44, 48, 52, 56, 60, 64, 68
SW2, SWO, SO, SOUT, SB2 = 52, 60, 64, 76, 80

KT = 2064
L_XC, L_RING, L_QF, L_STATS, L_CS = 0, 32 * KT, 147968, 156160, 157184
L_CNT = 158208
L_XCH = 131584
L_MP = L_RING
SPIN_LIMIT = 200000

LOG2E = 1.4426950408889634
STAMPS = False
OPT = dict(tp=5, pre=2, rot=0, map=1, pf=2, late=2, tl=1, tpf=1, pn=12)
_stamp = {"n": 0}


def f32(x):
    return "0x%08x" % struct.unpack("<I", struct.pack("<f", x))[0]


def srd(a, dst, ptr, size, off=None):
    if off is None:
        a(f"s_mov_b32 s{dst}, s{ptr}")
        a(f"s_mov_b32 s{dst + 1}, s{ptr + 1}")
    else:
        a(f"s_add_u32 s{dst}, s{ptr}, {off}")
        a(f"s_addc_u32 s{dst + 1}, s{ptr + 1}, 0")
    a(f"s_mov_b32 s{dst + 2}, {size}")
    a(f"s_mov_b32 s{dst + 3}, 0x00020000")


def csel(a, dst, if_true, if_false):
    a(f"s_mov_b32 s{dst}, {if_false}")
    a(f"s_cselect_b32 s{dst}, {if_true}, s{dst}")


def stamp(a, n=None):
    if not STAMPS:
        return
    if n is None:
        n = _stamp["n"]
        _stamp["n"] += 1
    a("s_memrealtime s[92:93]")
    a("s_memtime s[94:95]")
    a.wait_all(vm=False)
    a(f"v_writelane_b32 v255, s92, {2 * n}")
    a(f"v_writelane_b32 v255, s94, {2 * n + 1}")


def stamp_flush(a):
    if not STAMPS:
        return
    stamp(a)
    a("s_lshl_b32 s92, s2, 3")
    a(f"s_add_u32 s92, s92, s{S_WAVE}")
    a("s_lshl_b32 s92, s92, 8")
    a(f"s_add_u32 s92, s92, {WS_ST}")
    a("v_lshlrev_b32 v254, 2, v0")
    a(f"buffer_store_dword v255, v254, {sr(SWS, 4)}, s92 offen")


def poll_issue(a, base, vt):
    t = None
    a(f"s_mov_b32 s85, {base}")
    for i in range(4):
        t = a(f"buffer_load_dword v{vt + i}, v5, {sr(SWS, 4)}, s85 offen offset:{1024 * i} sc1")
    return t


def poll_check(a, vt, n=4):
    for i in range(n):
        a(f"v_xor_b32 v{vt + i}, s{S_TAG}, v{vt + i}")
    if n == 2:
        a(f"v_or_b32 v{vt}, v{vt}, v{vt + 1}")
    if n == 4:
        a(f"v_or3_b32 v{vt}, v{vt}, v{vt + 1}, v{vt + 2}")
        a(f"v_or_b32 v{vt}, v{vt}, v{vt + 3}")
    a(f"v_cmp_eq_u32 vcc, 0, v{vt}")
    a("s_cmp_eq_u64 vcc, exec")


def spin(a, label, issue, vt, n=4):
    a("s_mov_b32 s86, 0")
    a.settle()
    a.label(label)
    issue()
    a("s_add_u32 s86, s86, 1")
    poll_check(a, vt, n)
    a.settle()
    a(f"s_cbranch_scc1 {label}_ok")
    a(f"s_sleep {OPT.get('slp', 2)}")
    a(f"s_cmp_lt_u32 s86, {SPIN_LIMIT}")
    a(f"s_cbranch_scc1 {label}")
    a.label(f"{label}_ok")


def flag_store(a, soff, vtmp):
    a(f"v_mov_b32 v{vtmp}, s{S_TAG}")
    a("s_mov_b64 exec, 1")
    a(f"buffer_store_dword v{vtmp}, v5, {sr(SWS, 4)}, {soff} offen sc1")
    a("s_mov_b64 exec, -1")


def gen(a):
    name = KN
    a.raw(f".globl {name}\n.p2align 8\n.type {name},@function\n{name}:")
    a("s_cmp_ge_u32 s2, 256")
    a("s_cbranch_scc1 L_end")
    stamp(a)
    a("s_load_dwordx16 s[16:31], s[0:1], 0")
    a("s_load_dwordx8 s[32:39], s[0:1], 64")
    a("s_load_dwordx2 s[40:41], s[0:1], 96")
    a("v_lshrrev_b32 v1, 6, v0")
    a("v_and_b32 v0, 63, v0")
    a(f"v_readfirstlane_b32 s{S_WAVE}, v1")
    if OPT.get("map", 0) == 0:
        a(f"s_and_b32 s{S_TG}, s2, 7")
        a(f"s_lshl_b32 s{S_TG}, s{S_TG}, 2")
        a("s_bfe_u32 s6, s2, 0x20003")
        a(f"s_add_u32 s{S_TG}, s{S_TG}, s6")
        a(f"s_lshr_b32 s{S_J}, s2, 5")
        a("s_lshl_b32 s6, s6, 1")
        a(f"s_add_u32 s{S_ROT}, s6, s{S_J}")
    else:
        a(f"s_bfe_u32 s{S_TG}, s2, 0x20001")
        a(f"s_lshl_b32 s{S_TG}, s{S_TG}, 3")
        a("s_bfe_u32 s6, s2, 0x30003")
        a(f"s_add_u32 s{S_TG}, s{S_TG}, s6")
        a(f"s_and_b32 s{S_J}, s2, 1")
        a(f"s_lshl_b32 s{S_J}, s{S_J}, 2")
        a("s_lshr_b32 s7, s2, 6")
        a(f"s_add_u32 s{S_J}, s{S_J}, s7")
        a("s_lshl_b32 s7, s7, 1")
        a(f"s_add_u32 s{S_ROT}, s6, s7")
    a(f"s_and_b32 s{S_ROT}, s{S_ROT}, {7 if OPT.get('rot', 1) else 0}")
    a(f"s_lshr_b32 s{S_KROT}, s2, 3")
    a(f"s_and_b32 s{S_KROT}, s{S_KROT}, {31 if OPT.get('krot', 1) else 0}")
    a(f"s_cmp_eq_u32 s{S_J}, 7")
    a("s_cselect_b32 s6, 4, 0")
    a(f"s_xor_b32 s{S_ROLE}, s{S_WAVE}, s6")
    front(a)
    attention(a)
    a.label("L_end")
    a("s_endpgm")


def attn_prep(a):
    a(f"s_lshr_b32 s8, s{S_WAVE}, 2")
    a("s_mul_i32 s8, s8, 10240")
    a(f"s_add_u32 s8, s8, {L_RING}")
    a("v_add_u32 v244, s8, v5")
    a("v_and_b32 v52, 15, v0")
    a("v_lshlrev_b32 v52, 4, v52")
    a("v_lshl_add_u32 v52, v14, 8, v52")
    a("v_add_u32 v245, 1024, v52")
    a("v_add_u32 v246, 1536, v52")
    a("v_mov_b32 v53, 2048")
    a("v_cmp_eq_u32 vcc, 16, v13")
    a("v_cndmask_b32 v245, v245, v53, vcc")
    a("v_cndmask_b32 v246, v246, v53, vcc")
    a("v_mov_b32 v53, 0x40000")
    a("v_cmp_lt_u32 vcc, 16, v13")
    a("v_cndmask_b32 v245, v245, v53, vcc")
    a("v_cndmask_b32 v246, v246, v53, vcc")
    a("v_add_u32 v245, s8, v245")
    a("v_add_u32 v246, s8, v246")
    a(f"s_and_b32 s8, s{S_WAVE}, 3")
    a("s_lshl_b32 s8, s8, 11")
    a(f"s_add_u32 s8, s8, {L_QF}")
    a("v_add_u32 v247, s8, v5")
    for r in range(32):
        a(f"v_mov_b32 v{212 + r}, 0")
    a(f"v_lshl_add_u32 v248, v13, 3, s{S_J}")
    a(f"s_lshl_b32 s8, s{S_TG}, 3")
    a("v_add_u32 v52, s8, v3")
    a("v_cmp_eq_u32 vcc, 0, v14")
    a("v_cndmask_b32 v248, v52, v248, vcc")
    a("v_lshlrev_b32 v248, 7, v248")
    a(f"s_lshl_b32 s8, s{S_J}, 7")
    a("v_lshl_add_u32 v253, v3, 10, s8")
    a(f"s_lshl_b32 s8, s{S_J}, 10")
    a("v_lshl_add_u32 v252, v3, 7, s8")
    a(f"s_lshr_b32 s8, s{S_WAVE}, 1")
    a("s_lshl_b32 s8, s8, 14")
    a("v_and_b32 v52, 15, v0")
    a("v_xor_b32 v52, v52, v14")
    a("v_lshlrev_b32 v52, 4, v52")
    a("v_lshl_add_u32 v52, v13, 8, v52")
    a("v_add_u32 v249, s8, v52")
    a(f"s_lshl_b32 s8, s{S_WAVE}, 3")
    a("v_add_u32 v52, s8, v2")
    a("v_and_b32 v53, 15, v52")
    a("v_lshlrev_b32 v250, 1, v3")
    a("v_xor_b32 v53, v53, v250")
    a("v_lshlrev_b32 v53, 4, v53")
    a("v_lshl_add_u32 v250, v52, 8, v53")
    a("v_lshlrev_b32 v251, 10, v2")
    a("v_lshl_add_u32 v251, v3, 4, v251")


def front(a):
    ACC, X = 64, 16
    RS = 10
    PRE = OPT.get('pre', 4)
    a("v_lshrrev_b32 v2, 3, v0")
    a("v_and_b32 v3, 7, v0")
    a(f"s_and_b32 s7, s{S_WAVE}, 1")
    a("s_lshl_b32 s7, s7, 2")
    a("v_lshrrev_b32 v4, 4, v0")
    a("v_or_b32 v4, s7, v4")
    a("v_xor_b32 v4, v4, v3")
    a("v_lshlrev_b32 v4, 4, v4")
    a("v_lshl_add_u32 v4, v2, 10, v4")
    a(f"s_lshl_b32 s6, s{S_TG}, 16")
    a(f"s_lshl_b32 s7, s{S_WAVE}, 13")
    a("s_add_u32 s6, s6, s7")
    a("v_lshlrev_b32 v5, 4, v0")
    a("v_lshrrev_b32 v6, 2, v0")
    a("v_and_b32 v7, 3, v0")
    def touch():
        lvl = OPT.get("tl", 1)
        a(f"s_cmp_lt_u32 s{S_WAVE}, {8 - lvl}")
        a("s_cbranch_scc1 L_nopf")
        st_ = a.snapshot()
        a(f"s_cmp_eq_u32 s{S_WAVE}, 5")
        a("s_cbranch_scc1 L_pfsmall")
        a(f"s_cmp_eq_u32 s{S_WAVE}, 7")
        a(f"s_cselect_b32 s76, s{P_WQ}, s{P_WO}")
        a(f"s_cselect_b32 s77, s{P_WQ + 1}, s{P_WO + 1}")
        a(f"s_cselect_b32 s78, s{P_W1}, s{P_W2}")
        a(f"s_cselect_b32 s79, s{P_W1 + 1}, s{P_W2 + 1}")
        a("s_sub_u32 s10, s2, 64")
        a("s_cmp_lt_u32 s2, 64")
        a(f"s_cselect_b32 s{ST}, s76, s78")
        a(f"s_cselect_b32 s{ST + 1}, s77, s79")
        csel(a, ST + 2, 524288, 1409024)
        a(f"s_mov_b32 s{ST + 3}, 0x00020000")
        a("s_cselect_b32 s8, s2, s10")
        a("s_lshl_b32 s8, s8, 13")
        a("v_lshlrev_b32 v209, 7, v0")
        a(f"buffer_load_dword v209, v209, {sr(ST, 4)}, s8 offen")
        a("s_branch L_nopf")
        a.label("L_pfsmall")
        a("v_lshlrev_b32 v209, 7, v0")
        srd(a, ST, P_B1, 2752)
        a(f"buffer_load_dword v210, v209, {sr(ST, 4)}, 0 offen")
        srd(a, ST, P_B2, 1024)
        a(f"buffer_load_dword v211, v209, {sr(ST, 4)}, 0 offen")
        if OPT.get("tlb", 0):
            srd(a, ST, P_OUT, 4)
            a(f"buffer_load_dword v212, v209, {sr(ST, 4)}, 0 offen")
            srd(a, ST, P_WS, WS_SIZE)
            a("v_lshlrev_b32 v209, 21, v0")
            a("v_add_u32 v209, 0x1fff80, v209")
            a(f"buffer_load_dword v213, v209, {sr(ST, 4)}, 0 offen")
        a.label("L_nopf")
        a.restore(st_)

    srd(a, SX, P_X, 2097152)
    if OPT.get("pf", 0) == 4:
        touch()
    t_x = []
    for i in range(8):
        a(f"s_add_u32 s8, s{S_ROT}, {i}")
        a("s_and_b32 s8, s8, 7")
        a("s_lshl_b32 s8, s8, 7")
        a("s_add_u32 s8, s8, s6")
        a(f"s_add_u32 m0, s7, {1024 * i}")
        t_x.append(a(f"buffer_load_dwordx4 v4, {sr(SX, 4)}, s8 offen lds"))
    srd(a, SWS, P_WS, WS_SIZE)
    a(f"s_mul_i32 s9, s{S_J}, 6")
    a(f"s_add_u32 s9, s9, s{S_ROLE}")
    a(f"s_cmp_gt_u32 s{S_J}, 3")
    a("s_cselect_b32 s10, 3, 2")
    a("s_sub_u32 s9, s9, s10")
    a("s_max_i32 s9, s9, 0")
    a("s_cmp_lt_u32 s9, 43")
    a(f"s_cselect_b32 s{S_KIND}, 0, 1")
    a(f"s_lshl_b32 s10, s{S_J}, 3")
    a(f"s_add_u32 s10, s10, s{S_ROLE}")
    a("s_cmp_eq_u32 s10, 31")
    a(f"s_cselect_b32 s{S_KIND}, 2, s{S_KIND}")
    a(f"s_lshl_b32 s10, s{S_J}, 1")
    a(f"s_add_u32 s10, s10, s{S_ROLE}")
    a(f"s_cmp_lt_u32 s{S_ROLE}, 2")
    a(f"s_cselect_b32 s{SW}, s{P_WQ}, s{P_W1}")
    a(f"s_cselect_b32 s{SW + 1}, s{P_WQ + 1}, s{P_W1 + 1}")
    csel(a, SW + 2, 524288, 1409024)
    a(f"s_mov_b32 s{SW + 3}, 0x00020000")
    csel(a, 11, 1024, 2752)
    a("s_cselect_b32 s15, s10, s9")
    a("s_lshl_b32 s15, s15, 6")
    a("s_lshl_b32 s13, s11, 4")
    a(f"s_lshl_b32 s12, s{S_ROT}, 2")
    a("s_mov_b32 s73, 31")
    a("v_mul_u32_u24 v8, s11, v6")
    a("v_lshl_add_u32 v8, v7, 4, v8")
    a(f"s_cmp_eq_u32 s{S_KIND}, 0")
    a("s_cbranch_scc1 L_stdw")
    a(f"s_cmp_lt_u32 s{S_ROLE}, 6")
    a(f"s_cselect_b32 s{SW}, s{P_WK}, s{P_WV}")
    a(f"s_cselect_b32 s{SW + 1}, s{P_WK + 1}, s{P_WV + 1}")
    a(f"s_cmp_eq_u32 s{S_KIND}, 2")
    a(f"s_cselect_b32 s{SW + 2}, 0, 16384")
    a(f"s_and_b32 s12, s{S_ROLE}, 1")
    a("s_lshl_b32 s12, s12, 2")
    a(f"s_add_u32 s12, s12, s{S_ROT}")
    a("s_lshl_b32 s12, s12, 1")
    a("s_mov_b32 s73, 15")
    a("s_mov_b32 s15, 0")
    a("s_mov_b32 s13, 1024")
    a("v_mov_b32 v8, v5")
    a.label("L_stdw")
    a(f"s_mul_i32 s14, s{S_WAVE}, {RS * 1024}")
    a(f"s_add_u32 s14, s14, {L_RING}")
    if OPT.get("pf", 0) in (2, 3):
        touch()
    a("s_barrier")
    dma = {}

    def issue_w(ks):
        a("s_and_b32 s74, s12, s73")
        a("s_mul_i32 s74, s74, s13")
        a("s_add_u32 s74, s74, s15")
        a(f"s_add_u32 m0, s14, {(ks % RS) * 1024}")
        a("s_add_u32 s12, s12, 1")
        dma[ks] = a(f"buffer_load_dwordx4 v8, {sr(SW, 4)}, s74 offen lds")

    for ks in range(PRE):
        issue_w(ks)
    if OPT.get("pf", 0) == 1:
        a(f"s_lshl_b32 s8, s{S_J}, 3")
        a(f"s_add_u32 s8, s8, s{S_ROLE}")
        a("s_sub_u32 s8, s8, 56")
        a("s_cmp_ge_u32 s8, 2")
        a("s_cbranch_scc1 L_nopf")
        st_ = a.snapshot()
        a(f"s_and_b32 s10, s{S_TG}, 3")
        a("s_lshl_b32 s10, s10, 1")
        a("s_add_u32 s8, s8, s10")
        a("s_lshl_b32 s8, s8, 16")
        a("s_add_u32 s8, s8, 384")
        a("v_lshlrev_b32 v209, 10, v0")
        a(f"buffer_load_dword v209, v209, {sr(SW, 4)}, s8 offen")
        a.label("L_nopf")
        a.restore(st_)
    a("v_lshlrev_b32 v9, 10, v6")
    a("v_lshl_add_u32 v9, v7, 4, v9")
    a(f"s_lshl_b32 s76, s{S_TG}, 3")
    a(f"s_add_u32 s76, s76, s{S_WAVE}")
    a("s_sub_u32 s77, s76, 172")
    a("s_cmp_lt_u32 s76, 172")
    a(f"s_cselect_b32 s{ST}, s{P_W2}, s{P_WO}")
    a(f"s_cselect_b32 s{ST + 1}, s{P_W2 + 1}, s{P_WO + 1}")
    csel(a, ST + 2, 1409024, 524288)
    a(f"s_mov_b32 s{ST + 3}, 0x00020000")
    a("s_cselect_b32 s77, s76, s77")
    csel(a, 78, HF_STRIDE, 65536)
    csel(a, 79, WS_W2T, WS_WOT)
    a("s_lshr_b32 s80, s77, 1")
    a("s_and_b32 s81, s77, 1")
    a("s_lshl_b32 s82, s80, 14")
    a("s_lshl_b32 s83, s81, 6")
    a("s_add_u32 s82, s82, s83")
    a(f"s_lshl_b32 s83, s{S_J}, 7")
    a("s_add_u32 s82, s82, s83")
    a(f"s_mul_i32 s83, s{S_J}, s78")
    a("s_add_u32 s79, s79, s83")
    a("s_lshl_b32 s83, s77, 10")
    a("s_add_u32 s79, s79, s83")
    a("s_cmp_lt_u32 s76, 236")
    a(f"s_cselect_b32 s79, s79, {WS_SIZE}")
    a("v_add_u32 v11, s7, v5")
    a(f"s_lshl_b32 s8, s{S_WAVE}, 5")
    a(f"s_add_u32 s8, s8, {L_STATS}")
    a("v_lshl_add_u32 v12, v2, 2, s8")
    a("v_and_b32 v13, 31, v0")
    a("v_lshrrev_b32 v14, 5, v0")
    a("v_bfe_u32 v52, v0, 1, 3")
    a("v_xor_b32 v52, v52, v14")
    a("v_bfe_u32 v53, v0, 3, 2")
    a("v_lshlrev_b32 v53, 13, v53")
    a("v_lshl_add_u32 v53, v3, 7, v53")
    for c in range(4):
        a(f"v_xor_b32 v15, {2 * c}, v52")
        a(f"v_lshl_add_u32 v{60 + c}, v15, 4, v53")
    a("v_bfe_u32 v52, v0, 2, 2")
    a("v_bfe_u32 v53, v0, 4, 1")
    a("v_lshlrev_b32 v15, 3, v7")
    a("v_lshl_add_u32 v15, v52, 6, v15")
    a("v_lshl_add_u32 v15, v53, 5, v15")
    a("v_add_u32 v15, s14, v15")
    a("v_lshl_add_u32 v7, v14, 8, v15")
    a("v_lshl_add_u32 v6, v14, 9, v15")
    a("v_lshlrev_b32 v57, 2, v13")
    a(f"v_add_u32 v57, {L_STATS}, v57")
    a(f"s_lshl_b32 s8, s{S_WAVE}, 7")
    a(f"s_add_u32 s8, s8, {L_CS}")
    a("v_and_b32 v52, 15, v0")
    a("v_lshrrev_b32 v53, 4, v0")
    a("v_lshlrev_b32 v54, 6, v52")
    a("v_lshl_add_u32 v54, v53, 4, v54")
    a("v_add_u32 v54, s8, v54")
    a("v_mov_b32 v15, 0x40000")
    a("v_cmp_gt_u32 vcc, 2, v52")
    a("v_cndmask_b32 v54, v15, v54, vcc")
    a("v_and_b32 v53, 1, v53")
    a("v_cmp_eq_u32 vcc, v53, v52")
    a("v_mov_b32 v15, 0x3f803f80")
    for r in range(4):
        a(f"v_cndmask_b32 v{200 + r}, 0, v15, vcc")
    a("v_lshl_add_u32 v55, v14, 4, s8")
    a("v_lshlrev_b32 v10, 7, v13")
    a(f"v_mov_b32 v15, {L_CNT}")
    a("v_mov_b32 v52, 0")
    a("ds_write2_b32 v15, v52, v52 offset0:0 offset1:1")
    a("s_mov_b32 s72, 0x3f803f80")
    srd(a, SB1, P_B1, 2752)
    a(f"s_mul_i32 s8, s{S_TG}, {HF_STRIDE}")
    a(f"s_add_u32 s8, s8, {WS_HF}")
    srd(a, SH, P_WS, 86 * 2048, "s8")
    attn_prep(a)
    for i in range(8):
        a.wait_tok(t_x[i])
        a(f"ds_read_b128 {vr(X + 4 * i, 4)}, v11 offset:{1024 * i}")
    stamp(a)
    nxt = PRE
    for r in range(32):
        a(f"v_dot2_f32_bf16 v48, v{X + r}, s72, {'v48' if r else '0'}")
        a(f"v_dot2_f32_bf16 v49, v{X + r}, v{X + r}, {'v49' if r else '0'}")
        if r % 4 == 3 and nxt < RS and OPT.get("late", 0) == 0:
            issue_w(nxt)
            nxt += 1
    for mod in ("quad_perm:[1,0,3,2]", "quad_perm:[2,3,0,1]", "row_half_mirror"):
        for r in (48, 49):
            a(f"v_add_f32_dpp v{r}, v{r}, v{r} {mod} row_mask:0xf bank_mask:0xf")
    a(f"v_mul_f32 v48, {f32(-1.0 / 512)}, v48")
    a(f"v_mul_f32 v49, {f32(1.0 / 512)}, v49")
    a("v_fma_f32 v49, -v48, v48, v49")
    a("v_max_f32 v49, 0, v49")
    a(f"v_add_f32 v50, {f32(1e-5)}, v49")
    a("v_rsq_f32 v50, v50")
    a("v_mul_f32 v51, v49, v50")
    a(f"v_fmaak_f32 v51, v51, v50, {f32(1e-5)}")
    a("v_rsq_f32 v51, v51")
    a("v_mul_f32 v51, v51, v50")
    a("ds_write2_b32 v12, v50, v51 offset0:0 offset1:64")
    a("ds_write_b32 v12, v48 offset:512")
    NPRE = max(8, nxt) if OPT.get("late", 0) == 2 else RS
    for ks in range(nxt, NPRE):
        issue_w(ks)
    a(f"s_cmp_lg_u32 s{S_KIND}, 1")
    a("s_cbranch_scc1 L_nokvw")
    a.raw(f"    s_waitcnt vmcnt({NPRE - 8})")
    a.label("L_nokvw")
    a.wait_all(vm=False)
    stamp(a)
    a("s_barrier")
    stamp(a)

    for ks in range(NPRE, RS):
        issue_w(ks)
    a(f"v_mov_b32 v1, {WS_E}")
    a(f"buffer_load_dword v1, v1, {sr(SWS, 4)}, 0 offen sc1")

    def make_tag():
        a.comment("hand-off tag of this launch")
        a(f"v_readfirstlane_b32 s{S_TAG}, v1")
        a(f"s_mul_i32 s{S_TAG}, s{S_TAG}, 0x9e3779b1")
        a(f"s_add_u32 s{S_TAG}, s{S_TAG}, 0x7f4a7c15")

    def t_issue():
        a(f"s_add_u32 m0, s14, {(RS - 1) * 1024}")
        return a(f"buffer_load_dwordx4 v9, {sr(ST, 4)}, s82 offen lds")

    def t_task(t_tr):
        a.wait_tok(t_tr)
        a(f"ds_read_b64_tr_b16 v[128:129], v7 offset:{(RS - 1) * 1024}")
        a(f"ds_read_b64_tr_b16 v[130:131], v7 offset:{(RS - 1) * 1024 + 512}")
        a(f"buffer_store_dwordx4 v[128:131], v5, {sr(SWS, 4)}, s79 offen sc1")

    def poll1_issue():
        a(f"s_mov_b32 s85, {WS_FL1}")
        a(f"buffer_load_dword v132, v10, {sr(SWS, 4)}, s85 offen sc1")

    def colsum_finish():
        a("ds_write_b128 v54, v[204:207]")

    def colsum_spread(dst, n):
        for q in range(n):
            a(f"ds_read_b128 {vr(dst + 4 * q, 4)}, v55 offset:{32 * q}")

    def kv_dma():
        a(f"s_and_b32 s10, s{S_WAVE}, 1")
        a("s_lshl_b32 s10, s10, 15")
        a(f"s_lshr_b32 s12, s{S_WAVE}, 1")
        a("s_lshl_b32 s12, s12, 2")
        a(f"s_add_u32 s12, s12, s{S_KROT}")
        t = None
        for s in range(4):
            a(f"s_add_u32 s11, s12, {s}")
            a("s_and_b32 s11, s11, 31")
            a("s_lshl_b32 s11, s11, 10")
            a("s_add_u32 s11, s11, s10")
            a(f"s_add_u32 m0, s14, {s * KT}")
            a(f"s_add_u32 s13, s11, {WS_VF}")
            a(f"buffer_load_dwordx4 v5, {sr(SWS, 4)}, s11 offen sc1 lds")
            a(f"s_add_u32 m0, s14, {s * KT + 1024}")
            t = a(f"buffer_load_dwordx4 v5, {sr(SWS, 4)}, s13 offen sc1 lds")
        kv_ones()
        return t

    def kv_ones():
        for r in range(4):
            a(f"v_mov_b32 v{136 + r}, 0x3f803f80")
        a("v_and_b32 v140, 3, v0")
        a(f"v_mul_u32_u24 v140, {KT}, v140")
        a("v_add_u32 v140, s14, v140")
        a("ds_write_b128 v140, v[136:139] offset:2048")

    def gelu(packed):
        a("ds_read2_b32 v[58:59], v57 offset0:64 offset1:96")
        a("ds_read2_b32 v[160:161], v57 offset0:128 offset1:160")
        a("s_lshl_b32 s7, s9, 12")
        BI = 176
        for q in range(8):
            a(f"v_lshlrev_b32 v{BI + 2 * q}, 16, v{120 + q}")
            a(f"v_and_b32 v{BI + 2 * q + 1}, 0xffff0000, v{120 + q}")
        c0 = -2.0 * 0.7978845608028654 * LOG2E
        a(f"v_mov_b32 v168, {f32(c0 * 0.044715)}")
        if packed:
            a(f"v_mov_b32 v170, {f32(c0)}")
            a("v_mov_b32 v172, 1.0")
            a("v_mov_b32 v162, v59")
            a("v_mov_b32 v164, v161")
        for tt in range(2):
            for half in range(2):
                U = ACC + 16 * tt + 8 * half
                T = 192
                if (tt, half) == (1, 0):
                    t_task(t_tr)
                if packed:
                    rs, nm = ("v[58:59]", "v[160:161]") if tt == 0 else ("v[162:163]", "v[164:165]")
                    P = lambda b, r: vr(b + 2 * r, 2)
                    for r in range(4):
                        a(f"v_pk_fma_f32 {P(U, r)}, {P(144 + 8 * half, r)}, {nm}, {P(U, r)} op_sel_hi:[1,0,1]")
                    for r in range(4):
                        a(f"v_pk_fma_f32 {P(U, r)}, {P(U, r)}, {rs}, {P(BI + 8 * half, r)} op_sel_hi:[1,0,1]")
                    for r in range(4):
                        a(f"v_pk_mul_f32 {P(T, r)}, {P(U, r)}, {P(U, r)}")
                    for r in range(4):
                        a(f"v_pk_fma_f32 {P(T, r)}, {P(T, r)}, v[168:169], v[170:171] op_sel_hi:[1,0,0]")
                    for r in range(4):
                        a(f"v_pk_mul_f32 {P(T, r)}, {P(T, r)}, {P(U, r)}")
                    for r in range(8):
                        a(f"v_exp_f32 v{T + r}, v{T + r}")
                    for r in range(4):
                        a(f"v_pk_add_f32 {P(T, r)}, {P(T, r)}, v[172:173] op_sel_hi:[1,0]")
                    for r in range(8):
                        a(f"v_rcp_f32 v{T + r}, v{T + r}")
                    for r in range(4):
                        a(f"v_pk_mul_f32 {P(U, r)}, {P(U, r)}, {P(T, r)}")
                    d = 104 + 8 * tt + 4 * half
                    for r in range(4):
                        a(f"v_cvt_pk_bf16_f32 v{d + r}, v{U + 2 * r}, v{U + 2 * r + 1}")
                    a(f"buffer_store_dwordx4 {vr(d, 4)}, v5, {sr(SH, 4)}, s7 offen offset:{half * 2048 + tt * 1024} sc1")
                    continue
                for r in range(8):
                    a(f"v_fmac_f32 v{U + r}, v{144 + 8 * half + r}, v{160 + tt}")
                for r in range(8):
                    a(f"v_fma_f32 v{U + r}, v{U + r}, v{58 + tt}, v{BI + 8 * half + r}")
                for r in range(8):
                    a(f"v_mul_f32 v{T + r}, v{U + r}, v{U + r}")
                for r in range(8):
                    a(f"v_fmaak_f32 v{T + r}, v{T + r}, v168, {f32(c0)}")
                for r in range(8):
                    a(f"v_mul_f32 v{T + r}, v{T + r}, v{U + r}")
                for r in range(8):
                    a(f"v_exp_f32 v{T + r}, v{T + r}")
                for r in range(8):
                    a(f"v_add_f32 v{T + r}, 1.0, v{T + r}")
                for r in range(8):
                    a(f"v_rcp_f32 v{T + r}, v{T + r}")
                for r in range(8):
                    a(f"v_mul_f32 v{U + r}, v{U + r}, v{T + r}")
                d = 104 + 8 * tt + 4 * half
                for r in range(4):
                    a(f"v_cvt_pk_bf16_f32 v{d + r}, v{U + 2 * r}, v{U + 2 * r + 1}")
                a(f"buffer_store_dwordx4 {vr(d, 4)}, v5, {sr(SH, 4)}, s7 offen offset:{half * 2048 + tt * 1024} sc1")

    a(f"s_cmp_eq_u32 s{S_KIND}, 0")
    a.settle()
    a("s_cbranch_scc0 L_spare")
    snap0 = a.snapshot()

    def reads(ks):
        ab, bb = 96 + 4 * (ks & 1), 104 + 8 * (ks & 1)
        a.wait_tok(dma[ks])
        a(f"ds_read_b64_tr_b16 {vr(ab, 2)}, v6 offset:{(ks % RS) * 1024}")
        t = a(f"ds_read_b64_tr_b16 {vr(ab + 2, 2)}, v6 offset:{(ks % RS) * 1024 + 256}")
        for tt in range(2):
            a(f"ds_read_b128 {vr(bb + 4 * tt, 4)}, v{60 + (ks & 3)} offset:{tt * 32768 + (ks >> 2) * 1024}")
        return t

    a(f"s_cmp_lg_u32 s{S_J}, 7")
    a("s_cbranch_scc1 L_nohold")
    a("s_barrier")
    a.label("L_nohold")
    tk = {0: reads(0)}
    LOCK = OPT.get("lock", 0)
    nlock = 0
    for ks in range(32):
        if LOCK and ks % LOCK == 0 and 0 < ks < 24:
            a("s_barrier")
            nlock += 1
        if ks + 1 < 32:
            tk[ks + 1] = reads(ks + 1)
        ab, bb = 96 + 4 * (ks & 1), 104 + 8 * (ks & 1)
        a(f"v_mfma_f32_16x16x32_bf16 v[204:207], {vr(ab, 4)}, v[200:203], {'0' if ks == 0 else 'v[204:207]'}")
        for tt in range(2):
            acc = vr(ACC + 16 * tt, 16)
            a(f"v_mfma_f32_32x32x16_bf16 {acc}, {vr(ab, 4)}, {vr(bb + 4 * tt, 4)}, {'0' if ks == 0 else acc}")
            if tt == 0:
                a.wait_tok(tk[ks])
                if ks == 12:
                    make_tag()
                if ks == OPT.get("bks", 6):
                    a("s_lshl_b32 s7, s9, 6")
                    a("v_lshlrev_b32 v56, 3, v14")
                    for q in range(4):
                        a(f"buffer_load_dwordx2 {vr(120 + 2 * q, 2)}, v56, {sr(SB1, 4)}, s7 offen offset:{16 * q}")
                    if OPT.get("tpf", 1):
                        a(f"buffer_load_dword v210, v9, {sr(ST, 4)}, s82 offen")
                if ks + RS < 32:
                    issue_w(ks + RS)
                elif ks == OPT.get("pollks", 27):
                    a(f"s_cmp_ge_u32 s{S_WAVE}, 2")
                    a("s_cbranch_scc1 L_nopre")
                    st_ = a.snapshot()
                    poll1_issue()
                    a.label("L_nopre")
                    a.restore(st_)
                elif ks == 29:
                    t_tr = t_issue()
    stamp(a, 4)
    a("s_mov_b32 s73, 0")
    a(f"s_cmp_ge_u32 s{S_WAVE}, 2")
    a.settle()
    a("s_cbranch_scc1 L_noearly")
    st_ = a.snapshot()
    a.raw("    s_waitcnt vmcnt(1)")
    poll_check(a, 132, 1)
    a.settle()
    a("s_cbranch_scc0 L_noearly")
    stamp(a, 21)
    a("s_mov_b32 s73, 1")
    kv_dma()
    a.settle()
    a.label("L_noearly")
    a.restore(st_)
    colsum_finish()
    colsum_spread(144, 4)
    a(f"s_cmp_lt_u32 s{S_ROLE}, 2")
    a.settle()
    a("s_cbranch_scc0 L_mlp")
    snap = a.snapshot()
    a("ds_read2_b32 v[58:59], v57 offset0:0 offset1:32")
    a("ds_read2_b32 v[160:161], v57 offset0:128 offset1:160")
    a(f"s_lshl_b32 s8, s{S_ROLE}, 12")
    a(f"s_add_u32 s8, s8, {L_QF}")
    a("v_add_u32 v56, s8, v5")
    a(f"v_mul_f32 v58, {f32(0.25 * LOG2E)}, v58")
    a(f"v_mul_f32 v59, {f32(0.25 * LOG2E)}, v59")
    for tt in range(2):
        for r in range(16):
            a(f"v_fmac_f32 v{ACC + 16 * tt + r}, v{144 + r}, v{160 + tt}")
        for r in range(16):
            a(f"v_mul_f32 v{ACC + 16 * tt + r}, v{ACC + 16 * tt + r}, v{58 + tt}")
        for ab in range(2):
            d = 104 + 8 * tt + 4 * ab
            for r in range(4):
                s0 = ACC + 16 * tt + 8 * ab + 2 * r
                a(f"v_cvt_pk_bf16_f32 v{d + r}, v{s0}, v{s0 + 1}")
            a(f"ds_write_b128 v56, {vr(d, 4)} offset:{(2 * tt + ab) * 1024}")
    t_task(t_tr)
    a.settle()
    a("s_branch L_done")

    a.label("L_mlp")
    a.restore(snap)
    a(f"s_cmp_ge_u32 s{S_WAVE}, 4")
    a("s_cbranch_scc1 L_young")
    gelu(bool(LOCK))
    a.settle()
    a("s_branch L_done")
    a.label("L_young")
    a.restore(snap)
    gelu(True)
    a.settle()
    a("s_branch L_done")

    a.label("L_spare")
    a.restore(snap0)
    a(f"s_cmp_eq_u32 s{S_KIND}, 2")
    a("s_cbranch_scc1 L_idle")
    a("v_and_b32 v128, 15, v0")
    a("v_lshrrev_b32 v129, 4, v0")
    a(f"s_and_b32 s8, s{S_WAVE}, 1")
    a("s_lshl_b32 s7, s8, 15")
    a("v_lshrrev_b32 v130, 1, v128")
    a("v_xor_b32 v130, v130, v129")
    a("v_lshrrev_b32 v131, 3, v128")
    a("v_lshlrev_b32 v131, 13, v131")
    a("v_lshl_add_u32 v131, v3, 7, v131")
    a("v_add_u32 v131, s7, v131")
    a("v_lshl_add_u32 v60, v130, 4, v131")
    a("v_xor_b32 v61, 64, v60")
    a(f"s_and_b32 s7, s{S_WAVE}, 6")
    a(f"s_mul_i32 s7, s7, {RS * 1024}")
    a(f"s_add_u32 s7, s7, {L_RING}")
    a("v_lshlrev_b32 v6, 3, v128")
    a("v_lshl_add_u32 v6, v129, 8, v6")
    a("v_add_u32 v6, s7, v6")
    for r in range(4):
        a(f"v_mov_b32 v{200 + r}, 0x3f803f80")
    a(f"s_lshl_b32 s10, s{S_TG}, 1")
    a("s_add_u32 s10, s10, s8")
    a("s_lshl_b32 s10, s10, 10")
    a("s_lshl_b32 s7, s8, 7")
    a(f"s_add_u32 s7, s7, {L_STATS}")
    a(f"s_cmp_lt_u32 s{S_ROLE}, 6")
    a.settle()
    a("s_cbranch_scc0 L_doV")
    snap2 = a.snapshot()
    for isv in (0, 1):
        if isv:
            a.label("L_doV")
            a.restore(snap2)
        KB, ND = 144, 4

        def reads_kv(s_):
            b = KB + 12 * (s_ % ND)
            o = (s_ >> 3) * RS * 1024 + (s_ & 7) * 1024
            a(f"ds_read_b64_tr_b16 {vr(b, 2)}, v6 offset:{o}")
            a(f"ds_read_b64_tr_b16 {vr(b + 2, 2)}, v6 offset:{o + 128}")
            for u in range(2):
                a(f"ds_read_b128 {vr(b + 4 + 4 * u, 4)}, v{60 + (s_ & 1)} offset:{16384 * u + 1024 * (s_ >> 1)}")

        for s_ in range(ND - 1):
            reads_kv(s_)
        for s_ in range(16):
            if s_ + ND - 1 < 16:
                reads_kv(s_ + ND - 1)
            b = KB + 12 * (s_ % ND)
            for u, other in ((2, "v[200:203]"), (0, vr(b + 4, 4)), (1, vr(b + 8, 4))):
                acc = vr(ACC + 4 * u, 4)
                opa, opb = (other, vr(b, 4)) if isv else (vr(b, 4), other)
                a(f"v_mfma_f32_16x16x32_bf16 {acc}, {opa}, {opb}, {'0' if s_ == 0 else acc}")
            if s_ == 13:
                if isv:
                    a("v_lshl_add_u32 v57, v129, 4, s7")
                    for u in range(2):
                        a(f"ds_read_b128 {vr(96 + 4 * u, 4)}, v57 offset:{64 * u}")
                        a(f"ds_read_b128 {vr(104 + 4 * u, 4)}, v57 offset:{512 + 64 * u}")
                    a("v_lshrrev_b32 v130, 1, v129")
                    a("v_lshl_add_u32 v130, v130, 4, v128")
                    a("v_lshlrev_b32 v130, 4, v130")
                    a("v_and_b32 v131, 1, v129")
                    a("v_lshl_add_u32 v56, v131, 3, v130")
                    a(f"s_add_u32 s10, s10, {WS_VF}")
                else:
                    a("v_lshl_add_u32 v57, v128, 2, s7")
                    a("ds_read2_b32 v[96:97], v57 offset0:0 offset1:16")
                    a("ds_read2_b32 v[104:105], v57 offset0:128 offset1:144")
                    a("v_and_b32 v131, 1, v129")
                    a("v_lshl_add_u32 v130, v131, 5, v128")
                    a("v_lshlrev_b32 v130, 4, v130")
                    a("v_lshrrev_b32 v131, 1, v129")
                    a("v_lshl_add_u32 v56, v131, 3, v130")
        stamp(a, 13)
        for u in range(2):
            for r in range(4):
                nm = 104 + 4 * u + r if isv else 104 + u
                a(f"v_fmac_f32 v{ACC + 4 * u + r}, v{ACC + 8 + r}, v{nm}")
            for r in range(4):
                rs = 96 + 4 * u + r if isv else 96 + u
                a(f"v_mul_f32 v{ACC + 4 * u + r}, v{ACC + 4 * u + r}, v{rs}")
            a(f"v_cvt_pk_bf16_f32 v{112 + 2 * u}, v{ACC + 4 * u}, v{ACC + 4 * u + 1}")
            a(f"v_cvt_pk_bf16_f32 v{113 + 2 * u}, v{ACC + 4 * u + 2}, v{ACC + 4 * u + 3}")
            a(f"buffer_store_dwordx2 {vr(112 + 2 * u, 2)}, v56, {sr(SWS, 4)}, s10 offen offset:{(512 if isv else 256) * u} sc1")
        a.wait_all()
        a.settle()
        if not isv:
            a("s_branch L_kvpub")
    a.label("L_kvpub")
    stamp(a, 14)
    make_tag()
    a(f"v_mov_b32 v15, {L_CNT}")
    a("v_mov_b32 v52, 1")
    a("s_mov_b64 exec, 1")
    a("ds_add_rtn_u32 v53, v15, v52")
    a("s_mov_b64 exec, -1")
    a(f"s_lshl_b32 s8, s{S_TG}, 7")
    a(f"s_add_u32 s8, s8, {WS_FL1}")
    a("v_readfirstlane_b32 s7, v53")
    a("s_cmp_lg_u32 s7, 3")
    a.settle()
    a("s_cbranch_scc1 L_noflag1")
    flag_store(a, "s8", 136)
    a.settle()
    a.label("L_noflag1")
    a("s_barrier")
    a.label("L_idle")
    a.reset_state()
    a.wait_all()
    make_tag()
    a("s_mov_b32 s73, 0")
    t_task(t_issue())
    for _ in range(nlock):
        a("s_barrier")
    a.settle()

    a.label("L_done")
    a.reset_state()
    stamp(a, 19)
    a(f"s_cmp_ge_u32 s{S_WAVE}, 2")
    a("s_cbranch_scc1 L_late")
    a("s_cmp_eq_u32 s73, 1")
    a("s_cbranch_scc1 L_kvdone")
    spin(a, "L_poll1", poll1_issue, 132, 1)
    a.reset_state()
    stamp(a, 21)
    kv_dma()
    a.wait_all()
    a.settle()
    a.label("L_kvdone")
    a.raw("    s_waitcnt vmcnt(1) lgkmcnt(0)")
    stamp(a, 5)
    a("s_barrier")
    stamp(a, 6)
    a.settle()
    a("s_branch L_attn")
    a.label("L_late")
    a.reset_state()
    kv_ones()
    a.wait_all(vm=False)
    stamp(a, 5)
    a("s_barrier")
    stamp(a, 6)
    a.settle()
    a.label("L_attn")
    a.reset_state()
    _stamp["n"] = 7


def attention(a):
    S0, O0, Q0, KR, V0R, V1R, IDX = 16, 212, 80, 88, 92, 96, 100
    M, BUF, DEPTH, XR, B2R = 104, 136, 3, 72, 76
    AK, AV0, AV1, AQ = 244, 245, 246, 247
    wo_reg = lambda n: 172 + 4 * n if n < 10 else 48 + 4 * (n - 10)
    a(f"s_and_b32 s6, s{S_WAVE}, 3")
    a(f"s_lshr_b32 s7, s{S_WAVE}, 2")
    a(f"v_mov_b32 v{IDX}, 0xdddddddd")

    def kvoff(it):
        return ((it >> 2) & 1) * 20480 + (it & 3) * KT if it < 16 else (it - 16) * KT

    def rebase(it, r):
        if it == 8:
            a(f"v_add_u32 v{r}, 40960, v{r}")
        if it == 16:
            a(f"v_subrev_u32 v{r}, s87, v{r}")

    def rk(it):
        rebase(it, AK)
        a(f"ds_read_b128 {vr(KR, 4)}, v{AK} offset:{kvoff(it)}")

    def rv(it, p):
        rebase(it, AV0 + p)
        a(f"ds_read_b128 {vr((V0R, V1R)[p], 4)}, v{AV0 + p} offset:{kvoff(it)}")

    def kv_dma1(s_):
        a(f"s_cmp_lt_u32 s{S_WAVE}, 2")
        a(f"s_cbranch_scc1 L_skipkv{s_}")
        hist = list(a.hist)
        if s_ == 0:
            a(f"s_and_b32 s10, s{S_WAVE}, 1")
            a("s_lshl_b32 s10, s10, 15")
            a(f"s_lshr_b32 s12, s{S_WAVE}, 1")
            a("s_lshl_b32 s12, s12, 2")
            a(f"s_add_u32 s12, s12, s{S_KROT}")
        a(f"s_add_u32 s11, s12, {s_}")
        a("s_and_b32 s11, s11, 31")
        a("s_lshl_b32 s11, s11, 10")
        a("s_add_u32 s11, s11, s10")
        a(f"s_add_u32 m0, s14, {s_ * KT}")
        a(f"s_add_u32 s13, s11, {WS_VF}")
        a(f"buffer_load_dwordx4 v5, {sr(SWS, 4)}, s11 offen sc1 lds")
        a(f"s_add_u32 m0, s14, {s_ * KT + 1024}")
        a(f"buffer_load_dwordx4 v5, {sr(SWS, 4)}, s13 offen sc1 lds")
        a.label(f"L_skipkv{s_}")
        a.hist = hist

    def kv_dma2(n):
        s_, isv = n >> 1, n & 1
        if n == 0:
            a(f"s_mul_i32 s87, s7, {(10240 - 16 * KT) & 0xffffffff}")
            a(f"s_add_u32 s87, s87, {L_RING + 40960}")
            a("s_lshl_b32 s10, s7, 4")
            a("s_add_u32 s10, s10, s6")
            a(f"s_mul_i32 s14, s10, {KT}")
            a("s_lshl_b32 s10, s7, 15")
            a(f"s_add_u32 s12, s6, s{S_KROT}")
        if isv:
            a(f"s_add_u32 s11, s11, {WS_VF}")
        else:
            a(f"s_add_u32 s11, s12, {16 + 4 * s_}")
            a("s_and_b32 s11, s11, 31")
            a("s_lshl_b32 s11, s11, 10")
            a("s_add_u32 s11, s11, s10")
        a(f"s_add_u32 m0, s14, {4 * s_ * KT + 1024 * isv}")
        a(f"buffer_load_dwordx4 v5, {sr(SWS, 4)}, s11 offen sc1 lds")
        if n == 7:
            a("v_and_b32 v101, 3, v0")
            a(f"v_mul_u32_u24 v101, {4 * KT}, v101")
            a("v_add_u32 v101, s14, v101")
            a("ds_write_b128 v101, v[136:139] offset:2048")

    def mf(t):
        a(f"v_mfma_f32_32x32x16_bf16 {vr(S0 + 16 * (t & 1), 16)}, {vr(KR, 4)}, {vr(Q0 + 4 * (t & 1), 4)}, 0")

    def smf(t, p):
        a(f"v_smfmac_f32_32x32x32_bf16 {vr(O0 + 16 * (t & 1), 16)}, {vr((V0R, V1R)[p], 4)}, "
          f"{vr(S0 + 16 * (t & 1) + 8 * p, 8)}, v{IDX}")

    PN, PP = OPT.get("pn", 0), OPT.get("pp", 2)

    def ex(t, lo, hi, prio=True):
        for i in range(lo, hi):
            r = S0 + 16 * (t & 1) + i
            if PN and prio:
                pos = (t % PP) * 16 + i
                if pos == 0:
                    a("s_setprio 0")
                if pos == PN:
                    a("s_setprio 1")
            a(f"v_exp_f32 v{r}, v{r}")

    NT = 64
    hooks = {(t, p): [] for t in range(NT) for p in range(4)}

    def at(t, p, fn):
        hooks[(t, p)].append(fn)

    def setup_mlp2():
        a(f"s_mul_i32 s14, s{S_J}, {HF_STRIDE}")
        a(f"s_add_u32 s14, s14, {WS_W2T}")
        srd(a, SW2, P_WS, 86 * 2048, "s14")
        a(f"s_lshl_b32 s14, s{S_J}, 16")
        a(f"s_add_u32 s14, s14, {WS_WOT}")
        srd(a, SWO, P_WS, 65536, "s14")
        a(f"s_lshl_b32 s14, s{S_TG}, 16")
        a(f"s_add_u32 s14, s14, {WS_OF}")
        srd(a, SO, P_WS, 65536, "s14")
        srd(a, SB2, P_B2, 1024)
        srd(a, SOUT, P_OUT, 2097152)

    def setup_offsets():
        a(f"s_and_b32 s72, s{S_WAVE}, 1")
        a(f"s_lshr_b32 s73, s{S_WAVE}, 1")
        a("s_lshl_b32 s8, s73, 11")
        a("s_lshl_b32 s9, s72, 10")
        a("s_add_u32 s9, s9, s8")
        a("s_lshl_b32 s10, s73, 14")
        a("s_lshl_b32 s11, s72, 10")
        a("s_add_u32 s11, s11, s10")
        a(f"s_lshl_b32 s12, s{S_TG}, 16")
        a(f"s_lshl_b32 s13, s{S_WAVE}, 13")
        a("s_add_u32 s12, s12, s13")
        a(f"s_lshl_b32 s13, s{S_J}, 7")
        a("s_add_u32 s12, s12, s13")

    def publish_h():
        a.wait_all()
        a("s_barrier")
        stamp(a, 17)
        a(f"s_cmp_lg_u32 s{S_WAVE}, 0")
        a("s_cbranch_scc1 L_noflag2")
        hist = list(a.hist)
        a(f"s_lshl_b32 s14, s{S_TG}, 3")
        a(f"s_add_u32 s14, s14, s{S_J}")
        a("s_lshl_b32 s14, s14, 7")
        a(f"s_add_u32 s14, s14, {WS_FL2}")
        flag_store(a, "s14", 101)
        a.label("L_noflag2")
        a.hist = hist

    def poll2_issue():
        a(f"s_mov_b32 s85, {WS_FL2}")
        a(f"buffer_load_dword v102, v248, {sr(SWS, 4)}, s85 offen sc1")

    def check_h():
        poll_check(a, 102, 1)
        a("s_cbranch_scc0 L_spin2")
        a.label("L_spin2_ret")
        stamp(a, 16)

    def mlp2_load(i, k):
        b = BUF + 12 * (i % DEPTH)
        if k == 0:
            a(f"buffer_load_dwordx4 {vr(b, 4)}, v5, {sr(SW2, 4)}, s9 offen sc1")
            a("s_add_u32 s9, s9, 8192")
        elif k == 1:
            a(f"buffer_load_dwordx4 {vr(b + 4, 4)}, v5, {sr(SH, 4)}, s8 offen sc1")
        else:
            a(f"buffer_load_dwordx4 {vr(b + 8, 4)}, v5, {sr(SH, 4)}, s8 offen offset:1024 sc1")
            a("s_add_u32 s8, s8, 8192")

    def mlp2_mm(i, u):
        b = BUF + 12 * (i % DEPTH)
        acc = vr(M + 16 * u, 16)
        a(f"v_mfma_f32_32x32x16_bf16 {acc}, {vr(b, 4)}, {vr(b + 4 + 4 * u, 4)}, {'0' if i == 0 else acc}")

    def wo_load(n):
        a(f"buffer_load_dwordx4 {vr(wo_reg(n), 4)}, v5, {sr(SWO, 4)}, s10 offen offset:{(n & 3) * 1024} sc1")
        if n & 3 == 3:
            a("s_add_u32 s10, s10, 4096")

    def o_addr():
        a.comment("head index and destination of this wave's O fragment")
        a(f"s_lshl_b32 s14, s{S_J}, 2")
        a("s_and_b32 s15, s6, 2")
        a("s_add_u32 s14, s14, s15")
        a("s_add_u32 s14, s14, s7")
        a("s_and_b32 s15, s6, 1")
        a("s_lshl_b32 s90, s14, 11")
        a("s_lshl_b32 s91, s15, 10")
        a("s_add_u32 s90, s90, s91")
        a(f"s_lshl_b32 s91, s{S_TG}, 13")
        a(f"s_add_u32 s91, s91, {WS_FL3}")

    def tail_loads():
        a("v_and_b32 v101, 0x70, v251")
        a(f"buffer_load_dwordx4 {vr(XR, 4)}, v251, {sr(SX, 4)}, s12 offen")
        a(f"buffer_load_dwordx4 {vr(B2R, 4)}, v101, {sr(SB2, 4)}, s13 offen")

    TP = OPT.get("tp", 5)
    T0 = OPT.get("t0", 14)
    LAG = OPT.get("lag", 4)
    at(TP, 0, publish_h)
    for n in range(8):
        at(TP + n // 2, (1, 3)[n & 1], lambda n=n: kv_dma2(n))
    at(TP + 4, 2, setup_mlp2)
    at(TP + 5, 2, setup_offsets)
    for s_ in range(4):
        at(s_ // 2, (1, 3)[s_ & 1], lambda s_=s_: kv_dma1(s_))
    at(T0 - 3, 2, poll2_issue)
    at(T0 - 1, 3, check_h)
    at(28, 0, lambda: a("s_barrier"))
    for i in range(22):
        at(T0 + 2 * i, 1, lambda i=i: mlp2_load(i, 0))
        at(T0 + 2 * i, 3, lambda i=i: mlp2_load(i, 1))
        at(T0 + 2 * i + 1, 1, lambda i=i: mlp2_load(i, 2))
        at(T0 + 2 * i + LAG, 2, lambda i=i: mlp2_mm(i, 0))
        at(T0 + 2 * i + LAG + 1, 2, lambda i=i: mlp2_mm(i, 1))
    for tb in range(OPT.get("b0", 64), 64, OPT.get("bs", 8)):
        at(tb, 0, lambda: a("s_barrier"))
    if OPT.get("yp", 0):
        def raise_young():
            a(f"s_cmp_lt_u32 s{S_WAVE}, 4")
            a("s_cbranch_scc1 L_noyp")
            a("s_setprio 1")
            a.label("L_noyp")
        at(OPT["yp"], 0, raise_young)
    at(48, 0, lambda: stamp(a, 18))
    WT = OPT.get("wt", 31)
    for n in range(16):
        at(WT + 2 * n, 3, lambda n=n: wo_load(n))
    at(TP + 6, 2, o_addr)
    at(62, 1, tail_loads)

    a(f"ds_read_b128 {vr(Q0, 4)}, v{AQ}")
    rk(0)
    a(f"ds_read_b128 {vr(Q0 + 4, 4)}, v{AQ} offset:1024")
    rv(0, 0)
    rv(0, 1)
    mf(0)
    for t in range(NT):
        it = t >> 1
        for fn in hooks[(t, 0)]:
            fn()
        ex(t, 0, 2)
        if t > 0:
            smf(t - 1, 1)
            if t % 2 == 0:
                rv(it, 1)
        ex(t, 2, 5)
        if t + 1 < NT:
            mf(t + 1)
            if t % 2 == 0 and it + 1 < 32:
                rk(it + 1)
        ex(t, 5, 7)
        for fn in hooks[(t, 1)]:
            fn()
        ex(t, 7, 10)
        smf(t, 0)
        if t % 2 == 1 and it + 1 < 32:
            rv(it + 1, 0)
        ex(t, 10, 13)
        for fn in hooks[(t, 2)]:
            fn()
        ex(t, 13, 15)
        for fn in hooks[(t, 3)]:
            fn()
        ex(t, 15, 16)
    smf(NT - 1, 1)
    if PN:
        a("s_setprio 0")
    stamp(a)

    a(f"s_mul_i32 s14, s{S_WAVE}, 2304")
    a(f"s_add_u32 s14, s14, {L_XCH}")
    a(f"s_xor_b32 s15, s{S_WAVE}, 4")
    a("s_mul_i32 s15, s15, 2304")
    a(f"s_add_u32 s15, s15, {L_XCH}")
    a("v_add_u32 v1, s14, v5")
    a("v_lshl_add_u32 v2, v0, 2, s14")
    a("v_add_u32 v3, s15, v5")
    a("v_lshl_add_u32 v4, v0, 2, s15")
    a("s_cmp_eq_u32 s7, 0")
    a.settle()
    a("s_cbranch_scc1 L_lo")
    snap = a.snapshot()
    for kh in (1, 0):
        if kh == 0:
            a.label("L_lo")
            a.restore(snap)
        give, keep = O0 + 16 * (1 - kh), O0 + 16 * kh
        a(f"ds_write_b128 v1, {vr(give, 4)}")
        a(f"ds_write_b128 v1, {vr(give + 4, 4)} offset:1024")
        a(f"ds_write_b32 v2, v{give + 8} offset:2048")
        for r in range(9):
            a(f"v_mov_b32 v{S0 + r}, v{keep + r}")
        for r in range(4):
            a(f"v_mov_b32 v{S0 + 28 + r}, v{Q0 + 4 * kh + r}")
        a.wait_all(vm=False)
        a.settle()
        if kh == 1:
            a("s_branch L_join")
    a.label("L_join")
    a("s_barrier")
    stamp(a)
    a(f"ds_read_b128 {vr(O0, 4)}, v3")
    a(f"ds_read_b128 {vr(O0 + 4, 4)}, v3 offset:1024")
    a(f"ds_read_b32 v{O0 + 8}, v4 offset:2048")
    for r in range(9):
        a(f"v_add_f32 v{O0 + r}, v{O0 + r}, v{S0 + r}")
    a(f"v_mov_b32 v101, v{O0 + 8}")
    a(f"v_permlane32_swap_b32 v{O0 + 8}, v101")
    a(f"v_max3_f32 v102, |v{O0}|, |v{O0 + 1}|, |v{O0 + 2}|")
    a(f"v_max3_f32 v102, |v{O0 + 3}|, |v{O0 + 4}|, v102")
    a(f"v_max3_f32 v102, |v{O0 + 5}|, |v{O0 + 6}|, v102")
    a(f"v_max3_f32 v102, |v{O0 + 7}|, v{O0 + 8}, v102")
    a(f"v_cmp_gt_f32 vcc, {f32(2.0 ** 100)}, v102")
    a(f"s_mov_b32 s74, {f32(2.0 ** -60)}")
    a(f"v_cmp_lt_f32 s[14:15], s74, v{O0 + 8}")
    a("s_and_b64 vcc, vcc, s[14:15]")
    a("s_cmp_eq_u64 vcc, exec")
    a.settle()
    a("s_cbranch_scc0 L_slow")
    a.label("L_fin")
    a(f"v_rcp_f32 v101, v{O0 + 8}")
    for r in range(8):
        a(f"v_mul_f32 v{O0 + r}, v{O0 + r}, v101")
    for r in range(4):
        a(f"v_cvt_pk_bf16_f32 v{S0 + r}, v{O0 + 2 * r}, v{O0 + 2 * r + 1}")
    t_o = a(f"buffer_store_dwordx4 {vr(S0, 4)}, v5, {sr(SO, 4)}, s90 offen sc1")
    R = 136
    a("s_lshl_b32 s15, s72, 7")
    a("v_xor_b32 v1, s15, v249")
    a(f"v_add_u32 v1, {L_MP}, v1")
    for q in range(4):
        if q:
            a(f"v_xor_b32 v{1 + q}, {q << 5}, v1")
        for u in range(2):
            a(f"ds_write_b128 v{1 + q}, {vr(M + 16 * u + 4 * q, 4)} offset:{u * 8192}")
    a("s_lshl_b32 s15, s72, 13")
    a("v_add_u32 v14, s15, v249")
    a("v_xor_b32 v6, 16, v250")
    a(f"v_add_u32 v7, {L_MP}, v250")
    a(f"v_add_u32 v8, {L_MP}, v6")
    G, XF, T = 80, 88, 24
    for r in range(4):
        a(f"v_lshlrev_b32 v{G + 2 * r}, 16, v{B2R + r}")
        a(f"v_and_b32 v{G + 2 * r + 1}, 0xffff0000, v{B2R + r}")
    a.wait_tok(t_o)
    a.wait_all(vm=False)
    a("s_barrier")
    a(f"s_cmp_lg_u32 s{S_WAVE}, 7")
    a("s_cbranch_scc1 L_noflag3")
    hist = list(a.hist)
    a(f"v_mov_b32 v101, s{S_TAG}")
    a("s_mov_b64 exec, 0xff")
    a(f"buffer_store_dword v101, v253, {sr(SWS, 4)}, s91 offen sc1")
    a("s_mov_b64 exec, -1")
    a.label("L_noflag3")
    a.hist = hist
    for kq in range(4):
        for i in range(2):
            a(f"ds_read_b128 {vr(R + 8 * kq + 4 * i, 4)}, v{7 + i} offset:{kq * 16384}")
    for r in range(4):
        a(f"v_lshlrev_b32 v{XF + 2 * r}, 16, v{XR + r}")
        a(f"v_and_b32 v{XF + 2 * r + 1}, 0xffff0000, v{XR + r}")
    for kq in range(4):
        for r in range(8):
            a(f"v_add_f32 v{G + r}, v{G + r}, v{R + 8 * kq + r}")
    for r in range(8):
        a(f"v_mul_f32 v{T + r}, {f32(-LOG2E)}, v{G + r}")
    for r in range(8):
        a(f"v_exp_f32 v{T + r}, v{T + r}")
    for r in range(8):
        a(f"v_add_f32 v{T + r}, 1.0, v{T + r}")
    for r in range(8):
        a(f"v_rcp_f32 v{T + r}, v{T + r}")
    for r in range(8):
        a(f"v_mul_f32 v{G + r}, v{G + r}, v{T + r}")
    stamp(a)
    a(f"s_cmp_lg_u32 s{S_WAVE}, 7")
    a.settle()
    a("s_cbranch_scc1 L_nopoll3")
    snap = a.snapshot()
    spin(a, "L_poll3", lambda: a(f"buffer_load_dword v103, v252, {sr(SWS, 4)}, s91 offen sc1"), 103, n=1)
    a.label("L_nopoll3")
    a.restore(snap)
    a("s_barrier")
    stamp(a)
    OF, SA = 104, 16
    for i in range(8):
        a(f"buffer_load_dwordx4 {vr(OF + 4 * i, 4)}, v5, {sr(SO, 4)}, s11 offen offset:{(i & 1) * 2048} sc1")
        if i & 1:
            a("s_add_u32 s11, s11, 4096")
    for i in range(8):
        for u in range(2):
            acc = vr(SA + 16 * u, 16)
            a(f"v_mfma_f32_32x32x16_bf16 {acc}, {vr(wo_reg(2 * i + u), 4)}, {vr(OF + 4 * i, 4)}, {'0' if i == 0 else acc}")
    for u in range(2):
        for q in range(4):
            x = (u << 7) | (q << 5)
            if x:
                a(f"v_xor_b32 v{212 + 4 * u + q}, {x}, v14")
    for u in range(2):
        for q in range(4):
            ad = f"v{212 + 4 * u + q}" if (u or q) else "v14"
            a(f"ds_write_b128 {ad}, {vr(SA + 16 * u + 4 * q, 4)}")
    a.wait_all(vm=False)
    stamp(a)
    a("s_barrier")
    for kq in range(4):
        for i in range(2):
            a(f"ds_read_b128 {vr(R + 8 * kq + 4 * i, 4)}, v{(250, 6)[i]} offset:{kq * 16384}")
    for kq in range(1, 4):
        for r in range(8):
            a(f"v_add_f32 v{R + r}, v{R + r}, v{R + 8 * kq + r}")
    for r in range(8):
        a(f"v_fmac_f32 v{XF + r}, v{R + r}, v{G + r}")
    for r in range(4):
        a(f"v_cvt_pk_bf16_f32 v{XR + r}, v{XF + 2 * r}, v{XF + 2 * r + 1}")
    a(f"buffer_store_dwordx4 {vr(XR, 4)}, v251, {sr(SOUT, 4)}, s12 offen {('', 'sc1', 'nt', 'sc0 sc1')[OPT.get('om', 0)]}")
    a(f"s_or_b32 s14, s2, s{S_WAVE}")
    a("s_cmp_lg_u32 s14, 0")
    a("s_cbranch_scc1 L_notag")
    a(f"s_mov_b32 s14, {WS_E}")
    flag_store(a, "s14", 101)
    a.label("L_notag")
    if STAMPS:
        a.wait_all()
        stamp_flush(a)
    a("s_endpgm")

    a.label("L_spin2")
    a.reset_state()
    spin(a, "L_poll2", poll2_issue, 102, 1)
    a("s_branch L_spin2_ret")

    a.label("L_slow")
    a.reset_state()
    QS, C0 = S0 + 28, O0 + 16
    a("v_and_b32 v6, 15, v0")
    a("v_lshrrev_b32 v7, 5, v0")
    a("v_lshlrev_b32 v6, 4, v6")
    a("v_lshl_add_u32 v6, v7, 8, v6")
    a("v_mov_b32 v101, 0xff800000")
    a("s_mov_b32 s74, 0")
    a.settle()
    a.label("L_p1")
    a(f"s_add_u32 s75, s74, {WS_KF}")
    a(f"buffer_load_dwordx4 {vr(KR, 4)}, v5, {sr(SWS, 4)}, s75 offen sc1")
    a(f"v_mfma_f32_32x32x16_bf16 {vr(S0, 16)}, {vr(KR, 4)}, {vr(QS, 4)}, 0")
    for r in range(8):
        a(f"v_max3_f32 v101, v{S0 + 2 * r}, v{S0 + 2 * r + 1}, v101")
    a("s_add_u32 s74, s74, 1024")
    a("s_cmp_lt_u32 s74, 65536")
    a.settle()
    a("s_cbranch_scc1 L_p1")
    a("v_mov_b32 v102, v101")
    a("v_permlane32_swap_b32 v101, v102")
    a("v_max_f32 v101, v101, v102")
    for r in range(16):
        a(f"v_sub_f32 v{C0 + r}, 0, v101")
        a(f"v_mov_b32 v{O0 + r}, 0")
    for r in range(8):
        a(f"v_mov_b32 v{V0R + r}, 0x3f803f80")
    a("s_mov_b32 s74, 0")
    a("s_mov_b32 s14, 0x0000ffff")
    a("s_mov_b32 s15, 0x0000ffff")
    a.settle()
    a.label("L_p2")
    a(f"s_add_u32 s75, s74, {WS_KF}")
    a(f"buffer_load_dwordx4 {vr(KR, 4)}, v5, {sr(SWS, 4)}, s75 offen sc1")
    a(f"s_add_u32 s75, s74, {WS_VF}")
    a("s_mov_b64 exec, s[14:15]")
    a(f"buffer_load_dwordx4 {vr(V0R, 4)}, v6, {sr(SWS, 4)}, s75 offen sc1")
    a(f"buffer_load_dwordx4 {vr(V1R, 4)}, v6, {sr(SWS, 4)}, s75 offen offset:512 sc1")
    a("s_mov_b64 exec, -1")
    a(f"v_mfma_f32_32x32x16_bf16 {vr(S0, 16)}, {vr(KR, 4)}, {vr(QS, 4)}, {vr(C0, 16)}")
    ex(0, 0, 16, False)
    smf(0, 0)
    smf(0, 1)
    a("s_add_u32 s74, s74, 1024")
    a("s_cmp_lt_u32 s74, 65536")
    a.wait_all()
    a.settle()
    a("s_cbranch_scc1 L_p2")
    a("s_branch L_fin")


def descriptor(name):
    return f""".section .rodata,"a"
.p2align 6
.amdhsa_kernel {name}
  .amdhsa_next_free_vgpr 256
  .amdhsa_next_free_sgpr 96
  .amdhsa_accum_offset 256
  .amdhsa_group_segment_fixed_size 0
  .amdhsa_kernarg_size 104
  .amdhsa_user_sgpr_count 2
  .amdhsa_user_sgpr_kernarg_segment_ptr 1
  .amdhsa_system_sgpr_workgroup_id_x 1
  .amdhsa_float_denorm_mode_32 3
.end_amdhsa_kernel
"""


def main(out):
    a = Asm()
    hdr = open("cdna_kernels/" + NAME + ".s.ref").read().split("; Override launch")[0]
    a.raw(hdr.rstrip())
    a.raw("; @launch grid=(256,1,1) block=(512,1,1) lds=163840")
    a.raw('.amdgcn_target "amdgcn-amd-amdhsa--gfx950"\n.text')
    gen(a)
    a.raw(descriptor(KN))
    open(out, "w").write(a.text())
    print("written", out, "nop states", a.nops, "stamps", _stamp["n"])


if __name__ == "__main__":
    STAMPS = len(sys.argv) > 2 and sys.argv[2] == "1"
    for kv in sys.argv[3:]:
        k_, v_ = kv.split("=")
        OPT[k_] = int(v_)
    main(sys.argv[1])
```

```python
import struct
import sys
from asmgen import Asm, vr, sr

NAME = "recurrent_scan__grouped_kv_mqa__mixer_channel_mlp__prompt"
KN = NAME + "_kernel"

WS_KF = 0x000000
WS_VF = 0x010000
WS_E = 0x020000
WS_FL1 = 0x021000
WS_FL2 = 0x028000
WS_FL3 = 0x080000
WS_HF = 0x400000
HF_STRIDE = 0x2C000
WS_W2T = 0xA00000
WS_WOT = 0xC00000
WS_OF = 0xD00000
WS_ST = 0xF00000
WS_SIZE = 0x1000000

P_X, P_WQ, P_WK, P_WV, P_WO, P_BX, P_W1, P_B1, P_W2, P_B2, P_OUT, P_DBG, P_WS = range(16, 42, 2)
S_WAVE, S_TG, S_J, S_TAG, S_ROLE, S_ROT, S_KROT, S_KIND = 3, 4, 5, 84, 42, 43, 75, 88
S_OOFF = 89
SX, SW, SKV, SWS, ST, SB1, SH = 44, 48, 52, 56, 60, 64, 68
SW2, SWO, SO, SOUT, SB2 = 52, 60, 64, 76, 80

KT = 2064
L_XC, L_RING, L_QF, L_STATS, L_CS = 0, 32 * KT, 147968, 156160, 157184
L_CNT = 158208
L_XCH = 131584
L_MP = L_RING
SPIN_LIMIT = 200000

LOG2E = 1.4426950408889634
STAMPS = False
OPT = dict(tp=5, pre=2, rot=0, map=1, pf=2, late=2, tl=1, tpf=1, pn=12, om=1, lock=2, lag=5, g1=96, sb=0)
_stamp = {"n": 0}


def f32(x):
    return "0x%08x" % struct.unpack("<I", struct.pack("<f", x))[0]


def srd(a, dst, ptr, size, off=None):
    if off is None:
        a(f"s_mov_b32 s{dst}, s{ptr}")
        a(f"s_mov_b32 s{dst + 1}, s{ptr + 1}")
    else:
        a(f"s_add_u32 s{dst}, s{ptr}, {off}")
        a(f"s_addc_u32 s{dst + 1}, s{ptr + 1}, 0")
    a(f"s_mov_b32 s{dst + 2}, {size}")
    a(f"s_mov_b32 s{dst + 3}, 0x00020000")


def csel(a, dst, if_true, if_false):
    a(f"s_mov_b32 s{dst}, {if_false}")
    a(f"s_cselect_b32 s{dst}, {if_true}, s{dst}")


def stamp(a, n=None):
    if not STAMPS:
        return
    if n is None:
        n = _stamp["n"]
        _stamp["n"] += 1
    a("s_memrealtime s[92:93]")
    a("s_memtime s[94:95]")
    a.wait_all(vm=False)
    a(f"v_writelane_b32 v255, s92, {2 * n}")
    a(f"v_writelane_b32 v255, s94, {2 * n + 1}")


def stamp_flush(a):
    if not STAMPS:
        return
    stamp(a)
    a("s_lshl_b32 s92, s2, 3")
    a(f"s_add_u32 s92, s92, s{S_WAVE}")
    a("s_lshl_b32 s92, s92, 8")
    a(f"s_add_u32 s92, s92, {WS_ST}")
    a("v_lshlrev_b32 v254, 2, v0")
    a(f"buffer_store_dword v255, v254, {sr(SWS, 4)}, s92 offen")


def poll_issue(a, base, vt):
    t = None
    a(f"s_mov_b32 s85, {base}")
    for i in range(4):
        t = a(f"buffer_load_dword v{vt + i}, v5, {sr(SWS, 4)}, s85 offen offset:{1024 * i} sc1")
    return t


def poll_check(a, vt, n=4):
    for i in range(n):
        a(f"v_xor_b32 v{vt + i}, s{S_TAG}, v{vt + i}")
    if n == 2:
        a(f"v_or_b32 v{vt}, v{vt}, v{vt + 1}")
    if n == 4:
        a(f"v_or3_b32 v{vt}, v{vt}, v{vt + 1}, v{vt + 2}")
        a(f"v_or_b32 v{vt}, v{vt}, v{vt + 3}")
    a(f"v_cmp_eq_u32 vcc, 0, v{vt}")
    a("s_cmp_eq_u64 vcc, exec")


def spin(a, label, issue, vt, n=4):
    a("s_mov_b32 s86, 0")
    a.settle()
    a.label(label)
    issue()
    a("s_add_u32 s86, s86, 1")
    poll_check(a, vt, n)
    a.settle()
    a(f"s_cbranch_scc1 {label}_ok")
    a(f"s_sleep {OPT.get('slp', 2)}")
    a(f"s_cmp_lt_u32 s86, {SPIN_LIMIT}")
    a(f"s_cbranch_scc1 {label}")
    a.label(f"{label}_ok")


def flag_store(a, soff, vtmp):
    a(f"v_mov_b32 v{vtmp}, s{S_TAG}")
    a("s_mov_b64 exec, 1")
    a(f"buffer_store_dword v{vtmp}, v5, {sr(SWS, 4)}, {soff} offen sc1")
    a("s_mov_b64 exec, -1")


def gen(a):
    name = KN
    a.raw(f".globl {name}\n.p2align 8\n.type {name},@function\n{name}:")
    a("s_cmp_ge_u32 s2, 256")
    a("s_cbranch_scc1 L_end")
    stamp(a)
    a("s_load_dwordx16 s[16:31], s[0:1], 0")
    a("s_load_dwordx8 s[32:39], s[0:1], 64")
    a("s_load_dwordx2 s[40:41], s[0:1], 96")
    a("v_lshrrev_b32 v1, 6, v0")
    a("v_and_b32 v0, 63, v0")
    a(f"v_readfirstlane_b32 s{S_WAVE}, v1")
    if OPT.get("map", 0) == 0:
        a(f"s_and_b32 s{S_TG}, s2, 7")
        a(f"s_lshl_b32 s{S_TG}, s{S_TG}, 2")
        a("s_bfe_u32 s6, s2, 0x20003")
        a(f"s_add_u32 s{S_TG}, s{S_TG}, s6")
        a(f"s_lshr_b32 s{S_J}, s2, 5")
        a("s_lshl_b32 s6, s6, 1")
        a(f"s_add_u32 s{S_ROT}, s6, s{S_J}")
    else:
        a(f"s_bfe_u32 s{S_TG}, s2, 0x20001")
        a(f"s_lshl_b32 s{S_TG}, s{S_TG}, 3")
        a("s_bfe_u32 s6, s2, 0x30003")
        a(f"s_add_u32 s{S_TG}, s{S_TG}, s6")
        a(f"s_and_b32 s{S_J}, s2, 1")
        a(f"s_lshl_b32 s{S_J}, s{S_J}, 2")
        a("s_lshr_b32 s7, s2, 6")
        a(f"s_add_u32 s{S_J}, s{S_J}, s7")
        a("s_lshl_b32 s7, s7, 1")
        a(f"s_add_u32 s{S_ROT}, s6, s7")
    a(f"s_and_b32 s{S_ROT}, s{S_ROT}, {7 if OPT.get('rot', 1) else 0}")
    a(f"s_lshr_b32 s{S_KROT}, s2, 3")
    a(f"s_and_b32 s{S_KROT}, s{S_KROT}, {31 if OPT.get('krot', 1) else 0}")
    a(f"s_cmp_eq_u32 s{S_J}, 7")
    a("s_cselect_b32 s6, 4, 0")
    a(f"s_xor_b32 s{S_ROLE}, s{S_WAVE}, s6")
    front(a)
    attention(a)
    a.label("L_end")
    a("s_endpgm")


def attn_prep(a):
    a(f"s_lshr_b32 s8, s{S_WAVE}, 2")
    a("s_mul_i32 s8, s8, 10240")
    a(f"s_add_u32 s8, s8, {L_RING}")
    a("v_add_u32 v244, s8, v5")
    a("v_and_b32 v52, 15, v0")
    a("v_lshlrev_b32 v52, 4, v52")
    a("v_lshl_add_u32 v52, v14, 8, v52")
    a("v_add_u32 v245, 1024, v52")
    a("v_add_u32 v246, 1536, v52")
    a("v_mov_b32 v53, 2048")
    a("v_cmp_eq_u32 vcc, 16, v13")
    a("v_cndmask_b32 v245, v245, v53, vcc")
    a("v_cndmask_b32 v246, v246, v53, vcc")
    a("v_mov_b32 v53, 0x40000")
    a("v_cmp_lt_u32 vcc, 16, v13")
    a("v_cndmask_b32 v245, v245, v53, vcc")
    a("v_cndmask_b32 v246, v246, v53, vcc")
    a("v_add_u32 v245, s8, v245")
    a("v_add_u32 v246, s8, v246")
    a(f"s_and_b32 s8, s{S_WAVE}, 3")
    a("s_lshl_b32 s8, s8, 11")
    a(f"s_add_u32 s8, s8, {L_QF}")
    a("v_add_u32 v247, s8, v5")
    for r in range(32):
        a(f"v_mov_b32 v{212 + r}, 0")
    a(f"v_lshl_add_u32 v248, v13, 3, s{S_J}")
    a(f"s_lshl_b32 s8, s{S_TG}, 3")
    a("v_add_u32 v52, s8, v3")
    a("v_cmp_eq_u32 vcc, 0, v14")
    a("v_cndmask_b32 v248, v52, v248, vcc")
    a("v_lshlrev_b32 v248, 7, v248")
    a(f"s_lshl_b32 s8, s{S_J}, 7")
    a("v_lshl_add_u32 v253, v3, 10, s8")
    a(f"s_lshl_b32 s8, s{S_J}, 10")
    a("v_lshl_add_u32 v252, v3, 7, s8")
    a(f"s_lshr_b32 s8, s{S_WAVE}, 1")
    a("s_lshl_b32 s8, s8, 14")
    a("v_and_b32 v52, 15, v0")
    a("v_lshlrev_b32 v53, 1, v14")
    a("v_xor_b32 v52, v52, v53")
    a("v_lshlrev_b32 v52, 4, v52")
    a("v_lshl_add_u32 v52, v13, 8, v52")
    a("v_add_u32 v249, s8, v52")
    a(f"s_lshl_b32 s8, s{S_WAVE}, 3")
    a("v_add_u32 v52, s8, v2")
    a("v_and_b32 v53, 15, v52")
    a("v_lshlrev_b32 v250, 1, v3")
    a("v_xor_b32 v53, v53, v250")
    a("v_lshlrev_b32 v53, 4, v53")
    a("v_lshl_add_u32 v250, v52, 8, v53")
    a("v_lshlrev_b32 v251, 10, v2")
    a("v_lshl_add_u32 v251, v3, 4, v251")


def front(a):
    ACC, X = 64, 16
    RS = 10
    PRE = OPT.get('pre', 4)
    a("v_lshrrev_b32 v2, 3, v0")
    a("v_and_b32 v3, 7, v0")
    a(f"s_and_b32 s7, s{S_WAVE}, 1")
    a("s_lshl_b32 s7, s7, 2")
    a("v_lshrrev_b32 v4, 4, v0")
    a("v_or_b32 v4, s7, v4")
    a("v_xor_b32 v4, v4, v3")
    a("v_lshlrev_b32 v4, 4, v4")
    a("v_lshl_add_u32 v4, v2, 10, v4")
    a(f"s_lshl_b32 s6, s{S_TG}, 16")
    a(f"s_lshl_b32 s7, s{S_WAVE}, 13")
    a("s_add_u32 s6, s6, s7")
    a("v_lshlrev_b32 v5, 4, v0")
    a("v_lshrrev_b32 v6, 2, v0")
    a("v_and_b32 v7, 3, v0")
    def touch():
        lvl = OPT.get("tl", 1)
        a(f"s_cmp_lt_u32 s{S_WAVE}, {8 - lvl}")
        a("s_cbranch_scc1 L_nopf")
        st_ = a.snapshot()
        a(f"s_cmp_eq_u32 s{S_WAVE}, 5")
        a("s_cbranch_scc1 L_pfsmall")
        a(f"s_cmp_eq_u32 s{S_WAVE}, 7")
        a(f"s_cselect_b32 s76, s{P_WQ}, s{P_WO}")
        a(f"s_cselect_b32 s77, s{P_WQ + 1}, s{P_WO + 1}")
        a(f"s_cselect_b32 s78, s{P_W1}, s{P_W2}")
        a(f"s_cselect_b32 s79, s{P_W1 + 1}, s{P_W2 + 1}")
        a("s_sub_u32 s10, s2, 64")
        a("s_cmp_lt_u32 s2, 64")
        a(f"s_cselect_b32 s{ST}, s76, s78")
        a(f"s_cselect_b32 s{ST + 1}, s77, s79")
        csel(a, ST + 2, 524288, 1409024)
        a(f"s_mov_b32 s{ST + 3}, 0x00020000")
        a("s_cselect_b32 s8, s2, s10")
        a("s_lshl_b32 s8, s8, 13")
        a("v_lshlrev_b32 v209, 7, v0")
        a(f"buffer_load_dword v209, v209, {sr(ST, 4)}, s8 offen")
        a("s_branch L_nopf")
        a.label("L_pfsmall")
        a("v_lshlrev_b32 v209, 7, v0")
        srd(a, ST, P_B1, 2752)
        a(f"buffer_load_dword v210, v209, {sr(ST, 4)}, 0 offen")
        srd(a, ST, P_B2, 1024)
        a(f"buffer_load_dword v211, v209, {sr(ST, 4)}, 0 offen")
        if OPT.get("tlb", 0):
            srd(a, ST, P_OUT, 4)
            a(f"buffer_load_dword v212, v209, {sr(ST, 4)}, 0 offen")
            srd(a, ST, P_WS, WS_SIZE)
            a("v_lshlrev_b32 v209, 21, v0")
            a("v_add_u32 v209, 0x1fff80, v209")
            a(f"buffer_load_dword v213, v209, {sr(ST, 4)}, 0 offen")
        a.label("L_nopf")
        a.restore(st_)

    srd(a, SX, P_X, 2097152)
    if OPT.get("pf", 0) == 4:
        touch()
    t_x = []
    for i in range(8):
        a(f"s_add_u32 s8, s{S_ROT}, {i}")
        a("s_and_b32 s8, s8, 7")
        a("s_lshl_b32 s8, s8, 7")
        a("s_add_u32 s8, s8, s6")
        a(f"s_add_u32 m0, s7, {1024 * i}")
        t_x.append(a(f"buffer_load_dwordx4 v4, {sr(SX, 4)}, s8 offen lds"))
    srd(a, SWS, P_WS, WS_SIZE)
    a(f"s_mul_i32 s9, s{S_J}, 6")
    a(f"s_add_u32 s9, s9, s{S_ROLE}")
    a(f"s_cmp_gt_u32 s{S_J}, 3")
    a("s_cselect_b32 s10, 3, 2")
    a("s_sub_u32 s9, s9, s10")
    a("s_max_i32 s9, s9, 0")
    a("s_cmp_lt_u32 s9, 43")
    a(f"s_cselect_b32 s{S_KIND}, 0, 1")
    a(f"s_lshl_b32 s10, s{S_J}, 3")
    a(f"s_add_u32 s10, s10, s{S_ROLE}")
    a("s_cmp_eq_u32 s10, 31")
    a(f"s_cselect_b32 s{S_KIND}, 2, s{S_KIND}")
    a(f"s_lshl_b32 s10, s{S_J}, 1")
    a(f"s_add_u32 s10, s10, s{S_ROLE}")
    a(f"s_cmp_lt_u32 s{S_ROLE}, 2")
    a(f"s_cselect_b32 s{SW}, s{P_WQ}, s{P_W1}")
    a(f"s_cselect_b32 s{SW + 1}, s{P_WQ + 1}, s{P_W1 + 1}")
    csel(a, SW + 2, 524288, 1409024)
    a(f"s_mov_b32 s{SW + 3}, 0x00020000")
    csel(a, 11, 1024, 2752)
    a("s_cselect_b32 s15, s10, s9")
    a("s_lshl_b32 s15, s15, 6")
    a("s_lshl_b32 s13, s11, 4")
    a(f"s_lshl_b32 s12, s{S_ROT}, 2")
    a("s_mov_b32 s73, 31")
    a("v_mul_u32_u24 v8, s11, v6")
    a("v_lshl_add_u32 v8, v7, 4, v8")
    a(f"s_cmp_eq_u32 s{S_KIND}, 0")
    a("s_cbranch_scc1 L_stdw")
    a(f"s_cmp_lt_u32 s{S_ROLE}, 6")
    a(f"s_cselect_b32 s{SW}, s{P_WK}, s{P_WV}")
    a(f"s_cselect_b32 s{SW + 1}, s{P_WK + 1}, s{P_WV + 1}")
    a(f"s_cmp_eq_u32 s{S_KIND}, 2")
    a(f"s_cselect_b32 s{SW + 2}, 0, 16384")
    a(f"s_and_b32 s12, s{S_ROLE}, 1")
    a("s_lshl_b32 s12, s12, 2")
    a(f"s_add_u32 s12, s12, s{S_ROT}")
    a("s_lshl_b32 s12, s12, 1")
    a("s_mov_b32 s73, 15")
    a("s_mov_b32 s15, 0")
    a("s_mov_b32 s13, 1024")
    a("v_mov_b32 v8, v5")
    a.label("L_stdw")
    a(f"s_mul_i32 s14, s{S_WAVE}, {RS * 1024}")
    a(f"s_add_u32 s14, s14, {L_RING}")
    if OPT.get("pf", 0) in (2, 3):
        touch()
    a("s_barrier")
    dma = {}

    def issue_w(ks):
        a("s_and_b32 s74, s12, s73")
        a("s_mul_i32 s74, s74, s13")
        a("s_add_u32 s74, s74, s15")
        a(f"s_add_u32 m0, s14, {(ks % RS) * 1024}")
        a("s_add_u32 s12, s12, 1")
        dma[ks] = a(f"buffer_load_dwordx4 v8, {sr(SW, 4)}, s74 offen lds")

    for ks in range(PRE):
        issue_w(ks)
    if OPT.get("pf", 0) == 1:
        a(f"s_lshl_b32 s8, s{S_J}, 3")
        a(f"s_add_u32 s8, s8, s{S_ROLE}")
        a("s_sub_u32 s8, s8, 56")
        a("s_cmp_ge_u32 s8, 2")
        a("s_cbranch_scc1 L_nopf")
        st_ = a.snapshot()
        a(f"s_and_b32 s10, s{S_TG}, 3")
        a("s_lshl_b32 s10, s10, 1")
        a("s_add_u32 s8, s8, s10")
        a("s_lshl_b32 s8, s8, 16")
        a("s_add_u32 s8, s8, 384")
        a("v_lshlrev_b32 v209, 10, v0")
        a(f"buffer_load_dword v209, v209, {sr(SW, 4)}, s8 offen")
        a.label("L_nopf")
        a.restore(st_)
    a("v_lshlrev_b32 v9, 10, v6")
    a("v_lshl_add_u32 v9, v7, 4, v9")
    a(f"s_lshl_b32 s76, s{S_TG}, 3")
    a(f"s_add_u32 s76, s76, s{S_WAVE}")
    a("s_sub_u32 s77, s76, 172")
    a("s_cmp_lt_u32 s76, 172")
    a(f"s_cselect_b32 s{ST}, s{P_W2}, s{P_WO}")
    a(f"s_cselect_b32 s{ST + 1}, s{P_W2 + 1}, s{P_WO + 1}")
    csel(a, ST + 2, 1409024, 524288)
    a(f"s_mov_b32 s{ST + 3}, 0x00020000")
    a("s_cselect_b32 s77, s76, s77")
    csel(a, 78, HF_STRIDE, 65536)
    csel(a, 79, WS_W2T, WS_WOT)
    a("s_lshr_b32 s80, s77, 1")
    a("s_and_b32 s81, s77, 1")
    a("s_lshl_b32 s82, s80, 14")
    a("s_lshl_b32 s83, s81, 6")
    a("s_add_u32 s82, s82, s83")
    a(f"s_lshl_b32 s83, s{S_J}, 7")
    a("s_add_u32 s82, s82, s83")
    a(f"s_mul_i32 s83, s{S_J}, s78")
    a("s_add_u32 s79, s79, s83")
    a("s_lshl_b32 s83, s77, 10")
    a("s_add_u32 s79, s79, s83")
    a("s_cmp_lt_u32 s76, 236")
    a(f"s_cselect_b32 s79, s79, {WS_SIZE}")
    a("v_add_u32 v11, s7, v5")
    a(f"s_lshl_b32 s8, s{S_WAVE}, 5")
    a(f"s_add_u32 s8, s8, {L_STATS}")
    a("v_lshl_add_u32 v12, v2, 2, s8")
    a("v_and_b32 v13, 31, v0")
    a("v_lshrrev_b32 v14, 5, v0")
    a("v_bfe_u32 v52, v0, 1, 3")
    a("v_xor_b32 v52, v52, v14")
    a("v_bfe_u32 v53, v0, 3, 2")
    a("v_lshlrev_b32 v53, 13, v53")
    a("v_lshl_add_u32 v53, v3, 7, v53")
    for c in range(4):
        a(f"v_xor_b32 v15, {2 * c}, v52")
        a(f"v_lshl_add_u32 v{60 + c}, v15, 4, v53")
    a("v_bfe_u32 v52, v0, 2, 2")
    a("v_bfe_u32 v53, v0, 4, 1")
    a("v_lshlrev_b32 v15, 3, v7")
    a("v_lshl_add_u32 v15, v52, 6, v15")
    a("v_lshl_add_u32 v15, v53, 5, v15")
    a("v_add_u32 v15, s14, v15")
    a("v_and_b32 v7, 1, v0")
    a("v_bfe_u32 v6, v0, 1, 1")
    a("v_lshlrev_b32 v7, 4, v7")
    a("v_lshl_add_u32 v7, v6, 3, v7")
    a("v_lshl_add_u32 v7, v52, 6, v7")
    a("v_lshl_add_u32 v7, v53, 5, v7")
    a("v_add_u32 v7, s14, v7")
    a("v_lshl_add_u32 v7, v14, 8, v7")
    a("v_lshl_add_u32 v6, v14, 9, v15")
    a("v_lshlrev_b32 v57, 2, v13")
    a(f"v_add_u32 v57, {L_STATS}, v57")
    a(f"s_lshl_b32 s8, s{S_WAVE}, 7")
    a(f"s_add_u32 s8, s8, {L_CS}")
    a("v_and_b32 v52, 15, v0")
    a("v_lshrrev_b32 v53, 4, v0")
    a("v_lshlrev_b32 v54, 6, v52")
    a("v_lshl_add_u32 v54, v53, 4, v54")
    a("v_add_u32 v54, s8, v54")
    a("v_mov_b32 v15, 0x40000")
    a("v_cmp_gt_u32 vcc, 2, v52")
    a("v_cndmask_b32 v54, v15, v54, vcc")
    a("v_and_b32 v53, 1, v53")
    a("v_cmp_eq_u32 vcc, v53, v52")
    a("v_mov_b32 v15, 0x3f803f80")
    for r in range(4):
        a(f"v_cndmask_b32 v{200 + r}, 0, v15, vcc")
    a("v_lshl_add_u32 v55, v14, 4, s8")
    a("v_lshlrev_b32 v10, 7, v13")
    a(f"v_mov_b32 v15, {L_CNT}")
    a("v_mov_b32 v52, 0")
    a("ds_write2_b32 v15, v52, v52 offset0:0 offset1:1")
    a("s_mov_b32 s72, 0x3f803f80")
    srd(a, SB1, P_B1, 2752)
    a(f"s_mul_i32 s8, s{S_TG}, {HF_STRIDE}")
    a(f"s_add_u32 s8, s8, {WS_HF}")
    srd(a, SH, P_WS, 86 * 2048, "s8")
    attn_prep(a)
    for i in range(8):
        a.wait_tok(t_x[i])
        a(f"ds_read_b128 {vr(X + 4 * i, 4)}, v11 offset:{1024 * i}")
    stamp(a)
    if OPT.get("pf", 0) == 5:
        touch()
    nxt = PRE
    SH_ = OPT.get("shadow", 0)

    def stats_finish():
        for mod in ("quad_perm:[1,0,3,2]", "quad_perm:[2,3,0,1]", "row_half_mirror"):
            for r in (48, 49):
                a(f"v_add_f32_dpp v{r}, v{r}, v{r} {mod} row_mask:0xf bank_mask:0xf")
        a(f"v_mul_f32 v48, {f32(-1.0 / 512)}, v48")
        a(f"v_mul_f32 v49, {f32(1.0 / 512)}, v49")
        a("v_fma_f32 v49, -v48, v48, v49")
        a("v_max_f32 v49, 0, v49")
        a(f"v_add_f32 v50, {f32(1e-5)}, v49")
        a("v_rsq_f32 v50, v50")
        a("v_mul_f32 v51, v49, v50")
        a(f"v_fmaak_f32 v51, v51, v50, {f32(1e-5)}")
        a("v_rsq_f32 v51, v51")
        a("v_mul_f32 v51, v51, v50")
        a("ds_write2_b32 v12, v50, v51 offset0:0 offset1:64")
        a("ds_write_b32 v12, v48 offset:512")

    def stats_dot():
        for r in range(32):
            a(f"v_dot2_f32_bf16 v48, v{X + r}, s72, {'v48' if r else '0'}")
            a(f"v_dot2_f32_bf16 v49, v{X + r}, v{X + r}, {'v49' if r else '0'}")
        stats_finish()

    def stats_plain(r):
        a(f"v_lshlrev_b32 v52, 16, v{X + r}")
        a(f"v_and_b32 v53, 0xffff0000, v{X + r}")
        if r == 0:
            a("v_add_f32 v48, v52, v53")
            a("v_mul_f32 v49, v52, v52")
        else:
            a("v_add_f32 v48, v48, v52")
            a("v_fmac_f32 v49, v52, v52")
            a("v_add_f32 v48, v48, v53")
        a("v_fmac_f32 v49, v53, v53")

    if SH_:
        a(f"s_cmp_lg_u32 s{S_J}, 7")
        a("s_cbranch_scc1 L_nostat")
        st_ = a.snapshot()
        stats_dot()
        a.wait_all(vm=False)
        a.settle()
        a.label("L_nostat")
        a.restore(st_)
    else:
        stats_dot()
    NPRE = max(8, nxt) if OPT.get("late", 0) == 2 else RS
    for ks in range(nxt, NPRE):
        issue_w(ks)
    a(f"s_cmp_lg_u32 s{S_KIND}, 1")
    a("s_cbranch_scc1 L_nokvw")
    a.raw(f"    s_waitcnt vmcnt({NPRE - 8})")
    a.label("L_nokvw")
    a.wait_all(vm=False)
    stamp(a)
    a("s_barrier")
    stamp(a)

    for ks in range(NPRE, RS):
        issue_w(ks)
    a(f"v_mov_b32 v1, {WS_E}")
    a(f"buffer_load_dword v1, v1, {sr(SWS, 4)}, 0 offen sc1")

    def make_tag():
        a.comment("hand-off tag of this launch")
        a(f"v_readfirstlane_b32 s{S_TAG}, v1")
        a(f"s_mul_i32 s{S_TAG}, s{S_TAG}, 0x9e3779b1")
        a(f"s_add_u32 s{S_TAG}, s{S_TAG}, 0x7f4a7c15")

    def t_issue():
        a(f"s_add_u32 m0, s14, {(RS - 1) * 1024}")
        return a(f"buffer_load_dwordx4 v9, {sr(ST, 4)}, s82 offen lds")

    def t_task(t_tr):
        a.wait_tok(t_tr)
        a(f"ds_read_b64_tr_b16 v[128:129], v7 offset:{(RS - 1) * 1024}")
        a(f"ds_read_b64_tr_b16 v[130:131], v7 offset:{(RS - 1) * 1024 + 512}")
        a(f"buffer_store_dwordx4 v[128:131], v5, {sr(SWS, 4)}, s79 offen sc1")

    def poll1_issue():
        a(f"s_mov_b32 s85, {WS_FL1}")
        a(f"buffer_load_dword v132, v10, {sr(SWS, 4)}, s85 offen sc1")

    def colsum_finish():
        a("ds_write_b128 v54, v[204:207]")

    def colsum_spread(dst, n):
        for q in range(n):
            a(f"ds_read_b128 {vr(dst + 4 * q, 4)}, v55 offset:{32 * q}")

    def kv_dma():
        a(f"s_and_b32 s10, s{S_WAVE}, 1")
        a("s_lshl_b32 s10, s10, 15")
        a(f"s_lshr_b32 s12, s{S_WAVE}, 1")
        a("s_lshl_b32 s12, s12, 2")
        a(f"s_add_u32 s12, s12, s{S_KROT}")
        t = None
        for s in range(4):
            a(f"s_add_u32 s11, s12, {s}")
            a("s_and_b32 s11, s11, 31")
            a("s_lshl_b32 s11, s11, 10")
            a("s_add_u32 s11, s11, s10")
            a(f"s_add_u32 m0, s14, {s * KT}")
            a(f"s_add_u32 s13, s11, {WS_VF}")
            a(f"buffer_load_dwordx4 v5, {sr(SWS, 4)}, s11 offen sc1 lds")
            a(f"s_add_u32 m0, s14, {s * KT + 1024}")
            t = a(f"buffer_load_dwordx4 v5, {sr(SWS, 4)}, s13 offen sc1 lds")
        kv_ones()
        return t

    def kv_ones():
        for r in range(4):
            a(f"v_mov_b32 v{136 + r}, 0x3f803f80")
        a("v_and_b32 v140, 3, v0")
        a(f"v_mul_u32_u24 v140, {KT}, v140")
        a("v_add_u32 v140, s14, v140")
        a("ds_write_b128 v140, v[136:139] offset:2048")

    def gelu(packed):
        a("ds_read2_b32 v[58:59], v57 offset0:64 offset1:96")
        a("ds_read2_b32 v[160:161], v57 offset0:128 offset1:160")
        a("s_lshl_b32 s7, s9, 12")
        BI = 176
        for q in range(8):
            a(f"v_lshlrev_b32 v{BI + 2 * q}, 16, v{120 + q}")
            a(f"v_and_b32 v{BI + 2 * q + 1}, 0xffff0000, v{120 + q}")
        c0 = -2.0 * 0.7978845608028654 * LOG2E
        a(f"v_mov_b32 v168, {f32(c0 * 0.044715)}")
        if packed:
            a(f"v_mov_b32 v170, {f32(c0)}")
            a("v_mov_b32 v172, 1.0")
            a("v_mov_b32 v162, v59")
            a("v_mov_b32 v164, v161")
        for tt in range(2):
            for half in range(2):
                U = ACC + 16 * tt + 8 * half
                T = 192
                if (tt, half) == (1, 0):
                    t_task(t_tr)
                if packed:
                    rs, nm = ("v[58:59]", "v[160:161]") if tt == 0 else ("v[162:163]", "v[164:165]")
                    P = lambda b, r: vr(b + 2 * r, 2)
                    for r in range(4):
                        a(f"v_pk_fma_f32 {P(U, r)}, {P(144 + 8 * half, r)}, {nm}, {P(U, r)} op_sel_hi:[1,0,1]")
                    for r in range(4):
                        a(f"v_pk_fma_f32 {P(U, r)}, {P(U, r)}, {rs}, {P(BI + 8 * half, r)} op_sel_hi:[1,0,1]")
                    for r in range(4):
                        a(f"v_pk_mul_f32 {P(T, r)}, {P(U, r)}, {P(U, r)}")
                    for r in range(4):
                        a(f"v_pk_fma_f32 {P(T, r)}, {P(T, r)}, v[168:169], v[170:171] op_sel_hi:[1,0,0]")
                    for r in range(4):
                        a(f"v_pk_mul_f32 {P(T, r)}, {P(T, r)}, {P(U, r)}")
                    for r in range(8):
                        a(f"v_exp_f32 v{T + r}, v{T + r}")
                    for r in range(4):
                        a(f"v_pk_add_f32 {P(T, r)}, {P(T, r)}, v[172:173] op_sel_hi:[1,0]")
                    for r in range(8):
                        a(f"v_rcp_f32 v{T + r}, v{T + r}")
                    for r in range(4):
                        a(f"v_pk_mul_f32 {P(U, r)}, {P(U, r)}, {P(T, r)}")
                    d = 104 + 8 * tt + 4 * half
                    for r in range(4):
                        a(f"v_cvt_pk_bf16_f32 v{d + r}, v{U + 2 * r}, v{U + 2 * r + 1}")
                    a(f"buffer_store_dwordx4 {vr(d, 4)}, v5, {sr(SH, 4)}, s7 offen offset:{half * 2048 + tt * 1024} sc1")
                    continue
                for r in range(8):
                    a(f"v_fmac_f32 v{U + r}, v{144 + 8 * half + r}, v{160 + tt}")
                for r in range(8):
                    a(f"v_fma_f32 v{U + r}, v{U + r}, v{58 + tt}, v{BI + 8 * half + r}")
                for r in range(8):
                    a(f"v_mul_f32 v{T + r}, v{U + r}, v{U + r}")
                for r in range(8):
                    a(f"v_fmaak_f32 v{T + r}, v{T + r}, v168, {f32(c0)}")
                for r in range(8):
                    a(f"v_mul_f32 v{T + r}, v{T + r}, v{U + r}")
                for r in range(8):
                    a(f"v_exp_f32 v{T + r}, v{T + r}")
                for r in range(8):
                    a(f"v_add_f32 v{T + r}, 1.0, v{T + r}")
                for r in range(8):
                    a(f"v_rcp_f32 v{T + r}, v{T + r}")
                for r in range(8):
                    a(f"v_mul_f32 v{U + r}, v{U + r}, v{T + r}")
                d = 104 + 8 * tt + 4 * half
                for r in range(4):
                    a(f"v_cvt_pk_bf16_f32 v{d + r}, v{U + 2 * r}, v{U + 2 * r + 1}")
                a(f"buffer_store_dwordx4 {vr(d, 4)}, v5, {sr(SH, 4)}, s7 offen offset:{half * 2048 + tt * 1024} sc1")

    a(f"s_cmp_eq_u32 s{S_KIND}, 0")
    a.settle()
    a("s_cbranch_scc0 L_spare")
    snap0 = a.snapshot()

    def reads(ks):
        ab, bb = 96 + 4 * (ks & 1), 104 + 8 * (ks & 1)
        a.wait_tok(dma[ks])
        a(f"ds_read_b64_tr_b16 {vr(ab, 2)}, v6 offset:{(ks % RS) * 1024}")
        t = a(f"ds_read_b64_tr_b16 {vr(ab + 2, 2)}, v6 offset:{(ks % RS) * 1024 + 256}")
        for tt in range(2):
            a(f"ds_read_b128 {vr(bb + 4 * tt, 4)}, v{60 + (ks & 3)} offset:{tt * 32768 + (ks >> 2) * 1024}")
        return t

    a(f"s_cmp_lg_u32 s{S_J}, 7")
    a("s_cbranch_scc1 L_nohold")
    a("s_barrier")
    a.label("L_nohold")
    tk = {0: reads(0)}
    LOCK = OPT.get("lock", 0)
    nlock = 0
    for ks in range(32):
        if (LOCK and ks % LOCK == 0 and 0 < ks < 24) or (SH_ and ks == 11):
            a("s_barrier")
            nlock += 1
        if ks + 1 < 32:
            tk[ks + 1] = reads(ks + 1)
        ab, bb = 96 + 4 * (ks & 1), 104 + 8 * (ks & 1)
        a(f"v_mfma_f32_16x16x32_bf16 v[204:207], {vr(ab, 4)}, v[200:203], {'0' if ks == 0 else 'v[204:207]'}")
        for tt in range(2):
            acc = vr(ACC + 16 * tt, 16)
            a(f"v_mfma_f32_32x32x16_bf16 {acc}, {vr(ab, 4)}, {vr(bb + 4 * tt, 4)}, {'0' if ks == 0 else acc}")
            if tt == 0:
                a.wait_tok(tk[ks])
                if ks == 12:
                    make_tag()
                if SH_ and ks < 8:
                    for r in range(4 * ks, 4 * ks + 4):
                        stats_plain(r)
                if SH_ and ks == 8:
                    stats_finish()
                if ks == OPT.get("bks", 6):
                    a("s_lshl_b32 s7, s9, 6")
                    a("v_lshlrev_b32 v56, 3, v14")
                    for q in range(4):
                        a(f"buffer_load_dwordx2 {vr(120 + 2 * q, 2)}, v56, {sr(SB1, 4)}, s7 offen offset:{16 * q}")
                    if OPT.get("tpf", 1):
                        a(f"buffer_load_dword v210, v9, {sr(ST, 4)}, s82 offen")
                if ks + RS < 32:
                    issue_w(ks + RS)
                elif ks == OPT.get("pollks", 27):
                    a(f"s_cmp_ge_u32 s{S_WAVE}, 2")
                    a("s_cbranch_scc1 L_nopre")
                    st_ = a.snapshot()
                    poll1_issue()
                    a.label("L_nopre")
                    a.restore(st_)
                elif ks == 29:
                    t_tr = t_issue()
    stamp(a, 4)
    a("s_mov_b32 s73, 0")
    a(f"s_cmp_ge_u32 s{S_WAVE}, 2")
    a.settle()
    a("s_cbranch_scc1 L_noearly")
    st_ = a.snapshot()
    a.raw("    s_waitcnt vmcnt(1)")
    poll_check(a, 132, 1)
    a.settle()
    a("s_cbranch_scc0 L_noearly")
    stamp(a, 21)
    a("s_mov_b32 s73, 1")
    kv_dma()
    a.settle()
    a.label("L_noearly")
    a.restore(st_)
    colsum_finish()
    colsum_spread(144, 4)
    a(f"s_cmp_lt_u32 s{S_ROLE}, 2")
    a.settle()
    a("s_cbranch_scc0 L_mlp")
    snap = a.snapshot()
    a("ds_read2_b32 v[58:59], v57 offset0:0 offset1:32")
    a("ds_read2_b32 v[160:161], v57 offset0:128 offset1:160")
    a(f"s_lshl_b32 s8, s{S_ROLE}, 12")
    a(f"s_add_u32 s8, s8, {L_QF}")
    a("v_add_u32 v56, s8, v5")
    a(f"v_mul_f32 v58, {f32(0.25 * LOG2E)}, v58")
    a(f"v_mul_f32 v59, {f32(0.25 * LOG2E)}, v59")
    for tt in range(2):
        for r in range(16):
            a(f"v_fmac_f32 v{ACC + 16 * tt + r}, v{144 + r}, v{160 + tt}")
        for r in range(16):
            a(f"v_mul_f32 v{ACC + 16 * tt + r}, v{ACC + 16 * tt + r}, v{58 + tt}")
        for ab in range(2):
            d = 104 + 8 * tt + 4 * ab
            for r in range(4):
                s0 = ACC + 16 * tt + 8 * ab + 2 * r
                a(f"v_cvt_pk_bf16_f32 v{d + r}, v{s0}, v{s0 + 1}")
            a(f"ds_write_b128 v56, {vr(d, 4)} offset:{(2 * tt + ab) * 1024}")
    t_task(t_tr)
    a.settle()
    a("s_branch L_done")

    a.label("L_mlp")
    a.restore(snap)
    a(f"s_cmp_ge_u32 s{S_WAVE}, 4")
    a("s_cbranch_scc1 L_young")
    gelu(bool(LOCK))
    a.settle()
    a("s_branch L_done")
    a.label("L_young")
    a.restore(snap)
    gelu(True)
    a.settle()
    a("s_branch L_done")

    a.label("L_spare")
    a.restore(snap0)
    a(f"s_cmp_eq_u32 s{S_KIND}, 2")
    a("s_cbranch_scc1 L_idle")
    a("v_and_b32 v128, 15, v0")
    a("v_lshrrev_b32 v129, 4, v0")
    a(f"s_and_b32 s8, s{S_WAVE}, 1")
    a("s_lshl_b32 s7, s8, 15")
    a("v_lshrrev_b32 v130, 1, v128")
    a("v_xor_b32 v130, v130, v129")
    a("v_lshrrev_b32 v131, 3, v128")
    a("v_lshlrev_b32 v131, 13, v131")
    a("v_lshl_add_u32 v131, v3, 7, v131")
    a("v_add_u32 v131, s7, v131")
    a("v_lshl_add_u32 v60, v130, 4, v131")
    a("v_xor_b32 v61, 64, v60")
    a(f"s_and_b32 s7, s{S_WAVE}, 6")
    a(f"s_mul_i32 s7, s7, {RS * 1024}")
    a(f"s_add_u32 s7, s7, {L_RING}")
    a("v_lshlrev_b32 v6, 3, v128")
    a("v_lshl_add_u32 v6, v129, 8, v6")
    a("v_add_u32 v6, s7, v6")
    for r in range(4):
        a(f"v_mov_b32 v{200 + r}, 0x3f803f80")
    a(f"s_lshl_b32 s10, s{S_TG}, 1")
    a("s_add_u32 s10, s10, s8")
    a("s_lshl_b32 s10, s10, 10")
    a("s_lshl_b32 s7, s8, 7")
    a(f"s_add_u32 s7, s7, {L_STATS}")
    a(f"s_cmp_lt_u32 s{S_ROLE}, 6")
    a.settle()
    a("s_cbranch_scc0 L_doV")
    snap2 = a.snapshot()
    for isv in (0, 1):
        if isv:
            a.label("L_doV")
            a.restore(snap2)
        KB, ND = 144, 4

        def reads_kv(s_):
            b = KB + 12 * (s_ % ND)
            o = (s_ >> 3) * RS * 1024 + (s_ & 7) * 1024
            a(f"ds_read_b64_tr_b16 {vr(b, 2)}, v6 offset:{o}")
            a(f"ds_read_b64_tr_b16 {vr(b + 2, 2)}, v6 offset:{o + 128}")
            for u in range(2):
                a(f"ds_read_b128 {vr(b + 4 + 4 * u, 4)}, v{60 + (s_ & 1)} offset:{16384 * u + 1024 * (s_ >> 1)}")

        for s_ in range(ND - 1):
            reads_kv(s_)
        for s_ in range(16):
            if s_ + ND - 1 < 16:
                reads_kv(s_ + ND - 1)
            b = KB + 12 * (s_ % ND)
            for u, other in ((2, "v[200:203]"), (0, vr(b + 4, 4)), (1, vr(b + 8, 4))):
                acc = vr(ACC + 4 * u, 4)
                opa, opb = (other, vr(b, 4)) if isv else (vr(b, 4), other)
                a(f"v_mfma_f32_16x16x32_bf16 {acc}, {opa}, {opb}, {'0' if s_ == 0 else acc}")
            if s_ == 13:
                if isv:
                    a("v_lshl_add_u32 v57, v129, 4, s7")
                    for u in range(2):
                        a(f"ds_read_b128 {vr(96 + 4 * u, 4)}, v57 offset:{64 * u}")
                        a(f"ds_read_b128 {vr(104 + 4 * u, 4)}, v57 offset:{512 + 64 * u}")
                    a("v_lshrrev_b32 v130, 1, v129")
                    a("v_lshl_add_u32 v130, v130, 4, v128")
                    a("v_lshlrev_b32 v130, 4, v130")
                    a("v_and_b32 v131, 1, v129")
                    a("v_lshl_add_u32 v56, v131, 3, v130")
                    a(f"s_add_u32 s10, s10, {WS_VF}")
                else:
                    a("v_lshl_add_u32 v57, v128, 2, s7")
                    a("ds_read2_b32 v[96:97], v57 offset0:0 offset1:16")
                    a("ds_read2_b32 v[104:105], v57 offset0:128 offset1:144")
                    a("v_and_b32 v131, 1, v129")
                    a("v_lshl_add_u32 v130, v131, 5, v128")
                    a("v_lshlrev_b32 v130, 4, v130")
                    a("v_lshrrev_b32 v131, 1, v129")
                    a("v_lshl_add_u32 v56, v131, 3, v130")
        stamp(a, 13)
        for u in range(2):
            for r in range(4):
                nm = 104 + 4 * u + r if isv else 104 + u
                a(f"v_fmac_f32 v{ACC + 4 * u + r}, v{ACC + 8 + r}, v{nm}")
            for r in range(4):
                rs = 96 + 4 * u + r if isv else 96 + u
                a(f"v_mul_f32 v{ACC + 4 * u + r}, v{ACC + 4 * u + r}, v{rs}")
            a(f"v_cvt_pk_bf16_f32 v{112 + 2 * u}, v{ACC + 4 * u}, v{ACC + 4 * u + 1}")
            a(f"v_cvt_pk_bf16_f32 v{113 + 2 * u}, v{ACC + 4 * u + 2}, v{ACC + 4 * u + 3}")
            a(f"buffer_store_dwordx2 {vr(112 + 2 * u, 2)}, v56, {sr(SWS, 4)}, s10 offen offset:{(512 if isv else 256) * u} sc1")
        a.wait_all()
        a.settle()
        if not isv:
            a("s_branch L_kvpub")
    a.label("L_kvpub")
    stamp(a, 14)
    make_tag()
    a(f"v_mov_b32 v15, {L_CNT}")
    a("v_mov_b32 v52, 1")
    a("s_mov_b64 exec, 1")
    a("ds_add_rtn_u32 v53, v15, v52")
    a("s_mov_b64 exec, -1")
    a(f"s_lshl_b32 s8, s{S_TG}, 7")
    a(f"s_add_u32 s8, s8, {WS_FL1}")
    a("v_readfirstlane_b32 s7, v53")
    a("s_cmp_lg_u32 s7, 3")
    a.settle()
    a("s_cbranch_scc1 L_noflag1")
    flag_store(a, "s8", 136)
    a.settle()
    a.label("L_noflag1")
    a("s_barrier")
    a.label("L_idle")
    a.reset_state()
    a.wait_all()
    if SH_:
        stats_dot()
        a.wait_all(vm=False)
    make_tag()
    a("s_mov_b32 s73, 0")
    t_task(t_issue())
    for _ in range(nlock):
        a("s_barrier")
    a.settle()

    a.label("L_done")
    a.reset_state()
    stamp(a, 19)
    a(f"s_cmp_ge_u32 s{S_WAVE}, 2")
    a("s_cbranch_scc1 L_late")
    a("s_cmp_eq_u32 s73, 1")
    a("s_cbranch_scc1 L_kvdone")
    spin(a, "L_poll1", poll1_issue, 132, 1)
    a.reset_state()
    stamp(a, 21)
    kv_dma()
    a.wait_all()
    a.settle()
    a.label("L_kvdone")
    a.raw("    s_waitcnt vmcnt(1) lgkmcnt(0)")
    stamp(a, 5)
    a("s_barrier")
    stamp(a, 6)
    a.settle()
    a("s_branch L_attn")
    a.label("L_late")
    a.reset_state()
    kv_ones()
    a.wait_all(vm=False)
    stamp(a, 5)
    a("s_barrier")
    stamp(a, 6)
    a.settle()
    a.label("L_attn")
    a.reset_state()
    _stamp["n"] = 7


def attention(a):
    S0, O0, Q0, KR, V0R, V1R, IDX = 16, 212, 80, 88, 92, 96, 100
    M, BUF, XR, B2R = 104, 168, 200, 204
    L_WO = L_RING
    AK, AV0, AV1, AQ = 244, 245, 246, 247
    wo_reg = lambda n: 104 + 4 * n
    a(f"s_and_b32 s6, s{S_WAVE}, 3")
    a(f"s_lshr_b32 s7, s{S_WAVE}, 2")
    a(f"v_mov_b32 v{IDX}, 0xdddddddd")

    def kvoff(it):
        return ((it >> 2) & 1) * 20480 + (it & 3) * KT if it < 16 else (it - 16) * KT

    def rebase(it, r):
        if it == 8:
            a(f"v_add_u32 v{r}, 40960, v{r}")
        if it == 16:
            a(f"v_subrev_u32 v{r}, s87, v{r}")

    def rk(it):
        rebase(it, AK)
        a(f"ds_read_b128 {vr(KR, 4)}, v{AK} offset:{kvoff(it)}")

    def rv(it, p):
        rebase(it, AV0 + p)
        a(f"ds_read_b128 {vr((V0R, V1R)[p], 4)}, v{AV0 + p} offset:{kvoff(it)}")

    def kv_dma1(s_):
        a(f"s_cmp_lt_u32 s{S_WAVE}, 2")
        a(f"s_cbranch_scc1 L_skipkv{s_}")
        hist = list(a.hist)
        if s_ == 0:
            a(f"s_and_b32 s10, s{S_WAVE}, 1")
            a("s_lshl_b32 s10, s10, 15")
            a(f"s_lshr_b32 s12, s{S_WAVE}, 1")
            a("s_lshl_b32 s12, s12, 2")
            a(f"s_add_u32 s12, s12, s{S_KROT}")
        a(f"s_add_u32 s11, s12, {s_}")
        a("s_and_b32 s11, s11, 31")
        a("s_lshl_b32 s11, s11, 10")
        a("s_add_u32 s11, s11, s10")
        a(f"s_add_u32 m0, s14, {s_ * KT}")
        a(f"s_add_u32 s13, s11, {WS_VF}")
        a(f"buffer_load_dwordx4 v5, {sr(SWS, 4)}, s11 offen sc1 lds")
        a(f"s_add_u32 m0, s14, {s_ * KT + 1024}")
        a(f"buffer_load_dwordx4 v5, {sr(SWS, 4)}, s13 offen sc1 lds")
        a.label(f"L_skipkv{s_}")
        a.hist = hist

    def kv_dma2(n):
        s_, isv = n >> 1, n & 1
        if n == 0:
            a(f"s_mul_i32 s87, s7, {(10240 - 16 * KT) & 0xffffffff}")
            a(f"s_add_u32 s87, s87, {L_RING + 40960}")
            a("s_lshl_b32 s10, s7, 4")
            a("s_add_u32 s10, s10, s6")
            a(f"s_mul_i32 s14, s10, {KT}")
            a("s_lshl_b32 s10, s7, 15")
            a(f"s_add_u32 s12, s6, s{S_KROT}")
        if isv:
            a(f"s_add_u32 s11, s11, {WS_VF}")
        else:
            a(f"s_add_u32 s11, s12, {16 + 4 * s_}")
            a("s_and_b32 s11, s11, 31")
            a("s_lshl_b32 s11, s11, 10")
            a("s_add_u32 s11, s11, s10")
        a(f"s_add_u32 m0, s14, {4 * s_ * KT + 1024 * isv}")
        a(f"buffer_load_dwordx4 v5, {sr(SWS, 4)}, s11 offen sc1 lds")
        if n == 7:
            a("v_and_b32 v101, 3, v0")
            a(f"v_mul_u32_u24 v101, {4 * KT}, v101")
            a("v_add_u32 v101, s14, v101")
            a("ds_write_b128 v101, v[136:139] offset:2048")

    def mf(t):
        a(f"v_mfma_f32_32x32x16_bf16 {vr(S0 + 16 * (t & 1), 16)}, {vr(KR, 4)}, {vr(Q0 + 4 * (t & 1), 4)}, 0")

    def smf(t, p):
        a(f"v_smfmac_f32_32x32x32_bf16 {vr(O0 + 16 * (t & 1), 16)}, {vr((V0R, V1R)[p], 4)}, "
          f"{vr(S0 + 16 * (t & 1) + 8 * p, 8)}, v{IDX}")

    PN, PP = OPT.get("pn", 0), OPT.get("pp", 2)

    def ex(t, lo, hi, prio=True):
        for i in range(lo, hi):
            r = S0 + 16 * (t & 1) + i
            if PN and prio:
                pos = (t % PP) * 16 + i
                if pos == 0:
                    a("s_setprio 0")
                if pos == PN:
                    a("s_setprio 1")
            a(f"v_exp_f32 v{r}, v{r}")

    NT = 64
    hooks = {(t, p): [] for t in range(NT) for p in range(4)}

    def at(t, p, fn):
        hooks[(t, p)].append(fn)

    def setup_mlp2():
        a(f"s_mul_i32 s14, s{S_J}, {HF_STRIDE}")
        a(f"s_add_u32 s14, s14, {WS_W2T}")
        srd(a, SW2, P_WS, 86 * 2048, "s14")
        a(f"s_lshl_b32 s14, s{S_J}, 16")
        a(f"s_add_u32 s14, s14, {WS_WOT}")
        srd(a, SWO, P_WS, 65536, "s14")
        a(f"s_lshl_b32 s14, s{S_TG}, 16")
        a(f"s_add_u32 s14, s14, {WS_OF}")
        srd(a, SO, P_WS, 65536, "s14")
        srd(a, SB2, P_B2, 1024)
        srd(a, SOUT, P_OUT, 2097152)

    def setup_offsets():
        a(f"s_and_b32 s72, s{S_WAVE}, 1")
        a(f"s_lshr_b32 s73, s{S_WAVE}, 1")
        a(f"s_lshl_b32 s8, s{S_WAVE}, 11")
        a("s_lshl_b32 s10, s73, 14")
        a("s_lshl_b32 s11, s72, 10")
        a("s_add_u32 s11, s11, s10")
        a(f"s_lshl_b32 s12, s{S_TG}, 16")
        a(f"s_lshl_b32 s13, s{S_WAVE}, 13")
        a("s_add_u32 s12, s12, s13")
        a(f"s_lshl_b32 s13, s{S_J}, 7")
        a("s_add_u32 s12, s12, s13")

    def publish_h():
        a.wait_all()
        a("s_barrier")
        stamp(a, 17)
        a(f"s_cmp_lg_u32 s{S_WAVE}, 0")
        a("s_cbranch_scc1 L_noflag2")
        hist = list(a.hist)
        a(f"s_lshl_b32 s14, s{S_TG}, 3")
        a(f"s_add_u32 s14, s14, s{S_J}")
        a("s_lshl_b32 s14, s14, 7")
        a(f"s_add_u32 s14, s14, {WS_FL2}")
        flag_store(a, "s14", 101)
        a.label("L_noflag2")
        a.hist = hist

    def poll2_issue():
        a(f"s_mov_b32 s85, {WS_FL2}")
        a(f"buffer_load_dword v102, v248, {sr(SWS, 4)}, s85 offen sc1")

    def check_h():
        poll_check(a, 102, 1)
        a("s_cbranch_scc0 L_spin2")
        a.label("L_spin2_ret")
        stamp(a, 16)

    def mlp2_load(i, k):
        b = BUF + 16 * (i & 1) + 4 * k
        srd_, o = ((SW2, 0), (SH, 0), (SH, 1024), (SW2, 1024))[k]
        a(f"buffer_load_dwordx4 {vr(b, 4)}, v5, {sr(srd_, 4)}, s8 offen offset:{o} sc1")
        if k == 3:
            a("s_add_u32 s8, s8, 16384")

    def mlp2_mm(i, u):
        b = BUF + 16 * (i & 1)
        nt, tt = u >> 1, u & 1
        acc = vr(M + 16 * u, 16)
        a(f"v_mfma_f32_32x32x16_bf16 {acc}, {vr(b + 12 * nt, 4)}, {vr(b + 4 + 4 * tt, 4)}, {'0' if i == 0 else acc}")

    wo_tok = []

    def wo_load(n):
        if n == 0:
            a(f"s_lshl_b32 s10, s{S_WAVE}, 13")
        if n & 3 == 0:
            a(f"s_add_u32 m0, s10, {L_WO}")
        wo_tok.append(a(f"buffer_load_dwordx4 v5, {sr(SWO, 4)}, s10 offen offset:{(n & 3) * 1024} sc1 lds"))
        if n == 3:
            a("s_add_u32 s10, s10, 4096")

    def o_addr():
        a.comment("head index and destination of this wave's O fragment")
        a(f"s_lshl_b32 s14, s{S_J}, 2")
        a("s_and_b32 s15, s6, 2")
        a("s_add_u32 s14, s14, s15")
        a("s_add_u32 s14, s14, s7")
        a("s_and_b32 s15, s6, 1")
        a("s_lshl_b32 s90, s14, 11")
        a("s_lshl_b32 s91, s15, 10")
        a("s_add_u32 s90, s90, s91")
        a(f"s_lshl_b32 s91, s{S_TG}, 13")
        a(f"s_add_u32 s91, s91, {WS_FL3}")

    def tail_loads():
        a("v_and_b32 v101, 0x70, v251")
        a(f"buffer_load_dwordx4 {vr(XR, 4)}, v251, {sr(SX, 4)}, s12 offen")
        a(f"buffer_load_dwordx4 {vr(B2R, 4)}, v101, {sr(SB2, 4)}, s13 offen")

    TP = OPT.get("tp", 5)
    T0 = OPT.get("t0", 14)
    LAG = OPT.get("lag", 6)
    at(TP, 0, publish_h)
    for n in range(8):
        at(TP + n // 2, (1, 3)[n & 1], lambda n=n: kv_dma2(n))
    at(TP + 4, 2, setup_mlp2)
    at(TP + 5, 2, setup_offsets)
    for s_ in range(4):
        at(s_ // 2, (1, 3)[s_ & 1], lambda s_=s_: kv_dma1(s_))
    at(T0 - 3, 2, poll2_issue)
    at(T0 - 1, 3, check_h)
    at(28, 0, lambda: a("s_barrier"))
    for i in range(11):
        for k in range(4):
            at(T0 + 4 * i + k, 1, lambda i=i, k=k: mlp2_load(i, k))
            at(T0 + 4 * i + k + LAG, 2, lambda i=i, k=k: mlp2_mm(i, k))
    for tb in range(OPT.get("b0", 64), 64, OPT.get("bs", 8)):
        at(tb, 0, lambda: a("s_barrier"))
    if OPT.get("yp", 0):
        def raise_young():
            a(f"s_cmp_lt_u32 s{S_WAVE}, 4")
            a("s_cbranch_scc1 L_noyp")
            a("s_setprio 1")
            a.label("L_noyp")
        at(OPT["yp"], 0, raise_young)
    at(48, 0, lambda: stamp(a, 18))
    WT = OPT.get("wt", 35)
    at(34, 0, lambda: a("s_barrier"))
    for n in range(8):
        at(WT + 3 * n, 3, lambda n=n: wo_load(n))
    at(TP + 6, 2, o_addr)
    at(62, 1, tail_loads)

    a(f"ds_read_b128 {vr(Q0, 4)}, v{AQ}")
    rk(0)
    a(f"ds_read_b128 {vr(Q0 + 4, 4)}, v{AQ} offset:1024")
    rv(0, 0)
    rv(0, 1)
    mf(0)
    for t in range(NT):
        it = t >> 1
        for fn in hooks[(t, 0)]:
            fn()
        ex(t, 0, 2)
        if t > 0:
            smf(t - 1, 1)
            if t % 2 == 0:
                rv(it, 1)
        ex(t, 2, 5)
        if t + 1 < NT:
            mf(t + 1)
            if t % 2 == 0 and it + 1 < 32:
                rk(it + 1)
        ex(t, 5, 7)
        for fn in hooks[(t, 1)]:
            fn()
        ex(t, 7, 10)
        smf(t, 0)
        if t % 2 == 1 and it + 1 < 32:
            rv(it + 1, 0)
        ex(t, 10, 13)
        for fn in hooks[(t, 2)]:
            fn()
        ex(t, 13, 15)
        for fn in hooks[(t, 3)]:
            fn()
        ex(t, 15, 16)
    smf(NT - 1, 1)
    if PN:
        a("s_setprio 0")
    stamp(a)

    a.wait_tok(wo_tok[-1])
    a(f"s_mul_i32 s14, s{S_WAVE}, 2304")
    a(f"s_add_u32 s14, s14, {L_XCH}")
    a(f"s_xor_b32 s15, s{S_WAVE}, 4")
    a("s_mul_i32 s15, s15, 2304")
    a(f"s_add_u32 s15, s15, {L_XCH}")
    a("v_add_u32 v1, s14, v5")
    a("v_lshl_add_u32 v2, v0, 2, s14")
    a("v_add_u32 v3, s15, v5")
    a("v_lshl_add_u32 v4, v0, 2, s15")
    a("s_cmp_eq_u32 s7, 0")
    a.settle()
    a("s_cbranch_scc1 L_lo")
    snap = a.snapshot()
    for kh in (1, 0):
        if kh == 0:
            a.label("L_lo")
            a.restore(snap)
        give, keep = O0 + 16 * (1 - kh), O0 + 16 * kh
        a(f"ds_write_b128 v1, {vr(give, 4)}")
        a(f"ds_write_b128 v1, {vr(give + 4, 4)} offset:1024")
        a(f"ds_write_b32 v2, v{give + 8} offset:2048")
        for r in range(9):
            a(f"v_mov_b32 v{S0 + r}, v{keep + r}")
        for r in range(4):
            a(f"v_mov_b32 v{S0 + 28 + r}, v{Q0 + 4 * kh + r}")
        a.wait_all(vm=False)
        a.settle()
        if kh == 1:
            a("s_branch L_join")
    a.label("L_join")
    a("s_barrier")
    stamp(a)
    a(f"ds_read_b128 {vr(O0, 4)}, v3")
    a(f"ds_read_b128 {vr(O0 + 4, 4)}, v3 offset:1024")
    a(f"ds_read_b32 v{O0 + 8}, v4 offset:2048")
    for r in range(9):
        a(f"v_add_f32 v{O0 + r}, v{O0 + r}, v{S0 + r}")
    a(f"v_mov_b32 v101, v{O0 + 8}")
    a(f"v_permlane32_swap_b32 v{O0 + 8}, v101")
    a(f"v_max3_f32 v102, |v{O0}|, |v{O0 + 1}|, |v{O0 + 2}|")
    a(f"v_max3_f32 v102, |v{O0 + 3}|, |v{O0 + 4}|, v102")
    a(f"v_max3_f32 v102, |v{O0 + 5}|, |v{O0 + 6}|, v102")
    a(f"v_max3_f32 v102, |v{O0 + 7}|, v{O0 + 8}, v102")
    a(f"v_cmp_gt_f32 vcc, {f32(2.0 ** 100)}, v102")
    a(f"s_mov_b32 s74, {f32(2.0 ** -60)}")
    a(f"v_cmp_lt_f32 s[14:15], s74, v{O0 + 8}")
    a("s_and_b64 vcc, vcc, s[14:15]")
    a("s_cmp_eq_u64 vcc, exec")
    a.settle()
    a("s_cbranch_scc0 L_slow")
    a.label("L_fin")
    a(f"v_rcp_f32 v101, v{O0 + 8}")
    for r in range(8):
        a(f"v_mul_f32 v{O0 + r}, v{O0 + r}, v101")
    for r in range(4):
        a(f"v_cvt_pk_bf16_f32 v{S0 + r}, v{O0 + 2 * r}, v{O0 + 2 * r + 1}")
    t_o = a(f"buffer_store_dwordx4 {vr(S0, 4)}, v5, {sr(SO, 4)}, s90 offen sc1")
    R = 168
    a("v_and_b32 v1, 7, v0")
    a("v_lshrrev_b32 v2, 5, v0")
    a("v_xor_b32 v1, v1, v2")
    a("v_lshlrev_b32 v1, 4, v1")
    a("v_and_b32 v2, 31, v0")
    a("v_lshl_add_u32 v1, v2, 7, v1")
    a(f"s_lshl_b32 s15, s{S_WAVE}, 13")
    a("v_add_u32 v1, s15, v1")
    for x in range(1, 4):
        a(f"v_xor_b32 v{1 + x}, {x << 5}, v1")
    for u in range(4):
        nt, tt = u >> 1, u & 1
        for g in range(2):
            d = 48 + 8 * u + 4 * g
            for r in range(4):
                s0 = M + 16 * u + 8 * g + 2 * r
                a(f"v_cvt_pk_bf16_f32 v{d + r}, v{s0}, v{s0 + 1}")
            a(f"ds_write_b128 v{1 + 2 * nt + g}, {vr(d, 4)} offset:{tt * 4096}")
    a("s_lshl_b32 s15, s72, 13")
    a("v_add_u32 v14, s15, v249")
    a("v_xor_b32 v6, 16, v250")
    a("v_lshrrev_b32 v7, 3, v0")
    a("v_and_b32 v8, 7, v0")
    a("v_xor_b32 v8, v8, v7")
    a("v_lshlrev_b32 v8, 4, v8")
    a("v_lshl_add_u32 v7, v7, 7, v8")
    a(f"s_lshl_b32 s15, s{S_WAVE}, 10")
    a("v_add_u32 v7, s15, v7")
    a("s_lshl_b32 s15, s73, 14")
    a(f"s_add_u32 s15, s15, {L_WO}")
    a("v_add_u32 v8, s15, v5")
    G, XF, TG = 80, 88, 48
    SAD = (14, 1, 2, 3, 4, 9, 10, 11)
    for r in range(4):
        a(f"v_lshlrev_b32 v{G + 2 * r}, 16, v{B2R + r}")
        a(f"v_and_b32 v{G + 2 * r + 1}, 0xffff0000, v{B2R + r}")
    a.wait_tok(t_o)
    a.wait_all(vm=False)
    a("s_barrier")
    a(f"s_cmp_lg_u32 s{S_WAVE}, 7")
    a("s_cbranch_scc1 L_noflag3")
    hist = list(a.hist)
    a(f"v_mov_b32 v101, s{S_TAG}")
    a("s_mov_b64 exec, 0xff")
    a(f"buffer_store_dword v101, v253, {sr(SWS, 4)}, s91 offen sc1")
    a("s_mov_b64 exec, -1")
    a.label("L_noflag3")
    a.hist = hist
    for kq in range(8):
        a(f"ds_read_b128 {vr(R + 4 * kq, 4)}, v7 offset:{kq * 8192}")
    for n in range(16):
        a(f"ds_read_b128 {vr(wo_reg(n), 4)}, v8 offset:{n * 1024}")
    ops = []
    for kq in range(8):
        for r in range(4):
            ops.append(f"v_lshlrev_b32 v{56 + 2 * r}, 16, v{R + 4 * kq + r}")
            ops.append(f"v_and_b32 v{57 + 2 * r}, 0xffff0000, v{R + 4 * kq + r}")
        for r in range(8):
            ops.append(f"v_add_f32 v{G + r}, v{G + r}, v{56 + r}")
    for fmt in ("v_mul_f32 v{t}, " + f32(-LOG2E) + ", v{g}", "v_exp_f32 v{t}, v{t}", "v_add_f32 v{t}, 1.0, v{t}",
                "v_rcp_f32 v{t}, v{t}", "v_mul_f32 v{g}, v{g}, v{t}"):
        for r in range(8):
            ops.append(fmt.format(t=TG + r, g=G + r))
    for r in range(4):
        ops.append(f"v_lshlrev_b32 v{XF + 2 * r}, 16, v{XR + r}")
        ops.append(f"v_and_b32 v{XF + 2 * r + 1}, 0xffff0000, v{XR + r}")
    SB = OPT.get("sb", 1)
    if SB:
        ops.append(f"s_lshr_b32 s15, s{S_WAVE}, 1")
        ops.append(f"s_sub_u32 s15, s15, s{S_WAVE}")
        ops.append("s_lshl_b32 s15, s15, 13")
        ops.append("s_lshl_b32 s14, s72, 12")
        ops.append("s_add_u32 s15, s15, s14")
        for x in range(4):
            ops.append(f"v_add_u32 v{1 + x}, s15, v{1 + x}")
    else:
        for x in range(1, 8):
            ops.append(f"v_xor_b32 v{SAD[x]}, {((x >> 2) << 7) | (((x >> 1) & 1) << 6) | ((x & 1) << 4)}, v14")

    def some(n):
        for _ in range(n):
            if ops:
                a(ops.pop(0))

    some(OPT.get("g1", 64))
    a.wait_all(vm=False)
    stamp(a)
    a(f"s_cmp_lg_u32 s{S_WAVE}, 7")
    a.settle()
    a("s_cbranch_scc1 L_nopoll3")
    snap = a.snapshot()
    spin(a, "L_poll3", lambda: a(f"buffer_load_dword v103, v252, {sr(SWS, 4)}, s91 offen sc1"), 103, n=1)
    a.label("L_nopoll3")
    a.restore(snap)
    a("s_barrier")
    stamp(a)
    OF, SA = 212, 16
    for i in range(8):
        a(f"buffer_load_dwordx4 {vr(OF + 4 * i, 4)}, v5, {sr(SO, 4)}, s11 offen offset:{(i & 1) * 2048} sc1")
        if i & 1:
            a("s_add_u32 s11, s11, 4096")
    some(OPT.get("g0", 40))

    def wo_mm(i, u):
        acc = vr(SA + 16 * u, 16)
        a(f"v_mfma_f32_32x32x16_bf16 {acc}, {vr(wo_reg(2 * i + u), 4)}, {vr(OF + 4 * i, 4)}, {'0' if i == 0 else acc}")

    def s_write(u, q):
        ad = f"v{SAD[4 * u + q]}"
        a(f"ds_write_b128 {ad}, {vr(SA + 16 * u + 4 * q, 4)}")

    for i in range(8):
        for u in range(2):
            wo_mm(i, u)
            some(5)
    some(len(ops))
    if SB:
        for u in range(2):
            for g in range(2):
                d = 48 + 8 * u + 4 * g
                for r in range(4):
                    s0 = SA + 16 * u + 8 * g + 2 * r
                    a(f"v_cvt_pk_bf16_f32 v{d + r}, v{s0}, v{s0 + 1}")
                a(f"ds_write_b128 v{1 + 2 * u + g}, {vr(d, 4)}")
    else:
        for u in range(2):
            for q in range(4):
                s_write(u, q)
    a.wait_all(vm=False)
    stamp(a)
    a("s_barrier")
    if SB:
        for kq in range(4):
            a(f"ds_read_b128 {vr(104 + 4 * kq, 4)}, v7 offset:{kq * 8192}")
        for kq in range(4):
            for r in range(4):
                a(f"v_lshlrev_b32 v{R + 8 * kq + 2 * r}, 16, v{104 + 4 * kq + r}")
                a(f"v_and_b32 v{R + 8 * kq + 2 * r + 1}, 0xffff0000, v{104 + 4 * kq + r}")
    for kq in range(4):
        for i in range(0 if SB else 2):
            a(f"ds_read_b128 {vr(R + 8 * kq + 4 * i, 4)}, v{(250, 6)[i]} offset:{kq * 16384}")
    for kq in range(1, 4):
        for r in range(8):
            a(f"v_add_f32 v{R + r}, v{R + r}, v{R + 8 * kq + r}")
    for r in range(8):
        a(f"v_fmac_f32 v{XF + r}, v{R + r}, v{G + r}")
    for r in range(4):
        a(f"v_cvt_pk_bf16_f32 v{XR + r}, v{XF + 2 * r}, v{XF + 2 * r + 1}")
    a(f"buffer_store_dwordx4 {vr(XR, 4)}, v251, {sr(SOUT, 4)}, s12 offen {('', 'sc1', 'nt', 'sc0 sc1')[OPT.get('om', 0)]}")
    a(f"s_or_b32 s14, s2, s{S_WAVE}")
    a("s_cmp_lg_u32 s14, 0")
    a("s_cbranch_scc1 L_notag")
    a(f"s_mov_b32 s14, {WS_E}")
    flag_store(a, "s14", 101)
    a.label("L_notag")
    if STAMPS:
        a.wait_all()
        stamp_flush(a)
    a("s_endpgm")

    a.label("L_spin2")
    a.reset_state()
    spin(a, "L_poll2", poll2_issue, 102, 1)
    a("s_branch L_spin2_ret")

    a.label("L_slow")
    a.reset_state()
    QS, C0 = S0 + 28, O0 + 16
    a("v_and_b32 v6, 15, v0")
    a("v_lshrrev_b32 v7, 5, v0")
    a("v_lshlrev_b32 v6, 4, v6")
    a("v_lshl_add_u32 v6, v7, 8, v6")
    a("v_mov_b32 v101, 0xff800000")
    a("s_mov_b32 s74, 0")
    a.settle()
    a.label("L_p1")
    a(f"s_add_u32 s75, s74, {WS_KF}")
    a(f"buffer_load_dwordx4 {vr(KR, 4)}, v5, {sr(SWS, 4)}, s75 offen sc1")
    a(f"v_mfma_f32_32x32x16_bf16 {vr(S0, 16)}, {vr(KR, 4)}, {vr(QS, 4)}, 0")
    for r in range(8):
        a(f"v_max3_f32 v101, v{S0 + 2 * r}, v{S0 + 2 * r + 1}, v101")
    a("s_add_u32 s74, s74, 1024")
    a("s_cmp_lt_u32 s74, 65536")
    a.settle()
    a("s_cbranch_scc1 L_p1")
    a("v_mov_b32 v102, v101")
    a("v_permlane32_swap_b32 v101, v102")
    a("v_max_f32 v101, v101, v102")
    for r in range(16):
        a(f"v_sub_f32 v{C0 + r}, 0, v101")
        a(f"v_mov_b32 v{O0 + r}, 0")
    for r in range(8):
        a(f"v_mov_b32 v{V0R + r}, 0x3f803f80")
    a("s_mov_b32 s74, 0")
    a("s_mov_b32 s14, 0x0000ffff")
    a("s_mov_b32 s15, 0x0000ffff")
    a.settle()
    a.label("L_p2")
    a(f"s_add_u32 s75, s74, {WS_KF}")
    a(f"buffer_load_dwordx4 {vr(KR, 4)}, v5, {sr(SWS, 4)}, s75 offen sc1")
    a(f"s_add_u32 s75, s74, {WS_VF}")
    a("s_mov_b64 exec, s[14:15]")
    a(f"buffer_load_dwordx4 {vr(V0R, 4)}, v6, {sr(SWS, 4)}, s75 offen sc1")
    a(f"buffer_load_dwordx4 {vr(V1R, 4)}, v6, {sr(SWS, 4)}, s75 offen offset:512 sc1")
    a("s_mov_b64 exec, -1")
    a(f"v_mfma_f32_32x32x16_bf16 {vr(S0, 16)}, {vr(KR, 4)}, {vr(QS, 4)}, {vr(C0, 16)}")
    ex(0, 0, 16, False)
    smf(0, 0)
    smf(0, 1)
    a("s_add_u32 s74, s74, 1024")
    a("s_cmp_lt_u32 s74, 65536")
    a.wait_all()
    a.settle()
    a("s_cbranch_scc1 L_p2")
    a("s_branch L_fin")


def descriptor(name):
    return f""".section .rodata,"a"
.p2align 6
.amdhsa_kernel {name}
  .amdhsa_next_free_vgpr 256
  .amdhsa_next_free_sgpr 96
  .amdhsa_accum_offset 256
  .amdhsa_group_segment_fixed_size 0
  .amdhsa_kernarg_size 104
  .amdhsa_user_sgpr_count 2
  .amdhsa_user_sgpr_kernarg_segment_ptr 1
  .amdhsa_system_sgpr_workgroup_id_x 1
  .amdhsa_float_denorm_mode_32 3
.end_amdhsa_kernel
"""


def main(out):
    a = Asm()
    hdr = open("cdna_kernels/" + NAME + ".s.ref").read().split("; Override launch")[0]
    a.raw(hdr.rstrip())
    a.raw("; @launch grid=(256,1,1) block=(512,1,1) lds=163840")
    a.raw('.amdgcn_target "amdgcn-amd-amdhsa--gfx950"\n.text')
    gen(a)
    a.raw(descriptor(KN))
    open(out, "w").write(a.text())
    print("written", out, "nop states", a.nops, "stamps", _stamp["n"])


if __name__ == "__main__":
    STAMPS = len(sys.argv) > 2 and sys.argv[2] == "1"
    for kv in sys.argv[3:]:
        k_, v_ = kv.split("=")
        OPT[k_] = int(v_)
    main(sys.argv[1])
```

```python
import struct
import sys
from asmgen import Asm, vr, sr

NAME = "recurrent_scan__grouped_kv_mqa__mixer_channel_mlp__prompt"
KN = NAME + "_kernel"

WS_KF = 0x000000
WS_VF = 0x010000
WS_E = 0x020000
WS_FL1 = 0x021000
WS_FL2 = 0x028000
WS_FL3 = 0x080000
WS_HF = 0x400000
HF_STRIDE = 0x2C000
WS_W2T = 0xA00000
WS_WOT = 0xC00000
WS_OF = 0xD00000
WS_ST = 0xF00000
WS_SIZE = 0x1000000

P_X, P_WQ, P_WK, P_WV, P_WO, P_BX, P_W1, P_B1, P_W2, P_B2, P_OUT, P_DBG, P_WS = range(16, 42, 2)
S_WAVE, S_TG, S_J, S_TAG, S_ROLE, S_ROT, S_KROT, S_KIND = 3, 4, 5, 84, 42, 43, 75, 88
S_OOFF = 89
SX, SW, SKV, SWS, ST, SB1, SH = 44, 48, 52, 56, 60, 64, 68
SW2, SWO, SO, SOUT, SB2 = 52, 60, 64, 76, 80

KT = 2064
L_XC, L_RING, L_QF, L_STATS, L_CS = 0, 32 * KT, 147968, 156160, 157184
L_CNT = 158208
L_XCH = 131584
L_MP = L_RING
SPIN_LIMIT = 200000

LOG2E = 1.4426950408889634
STAMPS = False
OPT = dict(tp=5, pre=2, rot=0, map=1, pf=2, late=2, tl=1, tpf=1, pn=12, om=1, lock=2, lag=5, g1=96, sb=0, nd=0, swap=1, pq=1, t0=22, sl=84)
_stamp = {"n": 0}


def f32(x):
    return "0x%08x" % struct.unpack("<I", struct.pack("<f", x))[0]


def srd(a, dst, ptr, size, off=None):
    if off is None:
        a(f"s_mov_b32 s{dst}, s{ptr}")
        a(f"s_mov_b32 s{dst + 1}, s{ptr + 1}")
    else:
        a(f"s_add_u32 s{dst}, s{ptr}, {off}")
        a(f"s_addc_u32 s{dst + 1}, s{ptr + 1}, 0")
    a(f"s_mov_b32 s{dst + 2}, {size}")
    a(f"s_mov_b32 s{dst + 3}, 0x00020000")


def csel(a, dst, if_true, if_false):
    a(f"s_mov_b32 s{dst}, {if_false}")
    a(f"s_cselect_b32 s{dst}, {if_true}, s{dst}")


def stamp(a, n=None):
    if not STAMPS:
        return
    if n is None:
        n = _stamp["n"]
        _stamp["n"] += 1
    a("s_memrealtime s[92:93]")
    a("s_memtime s[94:95]")
    a.wait_all(vm=False)
    a(f"v_writelane_b32 v255, s92, {2 * n}")
    a(f"v_writelane_b32 v255, s94, {2 * n + 1}")


def stamp_flush(a):
    if not STAMPS:
        return
    stamp(a)
    a("s_lshl_b32 s92, s2, 3")
    a(f"s_add_u32 s92, s92, s{S_WAVE}")
    a("s_lshl_b32 s92, s92, 8")
    a(f"s_add_u32 s92, s92, {WS_ST}")
    a("v_lshlrev_b32 v254, 2, v0")
    a(f"buffer_store_dword v255, v254, {sr(SWS, 4)}, s92 offen")


def poll_issue(a, base, vt):
    t = None
    a(f"s_mov_b32 s85, {base}")
    for i in range(4):
        t = a(f"buffer_load_dword v{vt + i}, v5, {sr(SWS, 4)}, s85 offen offset:{1024 * i} sc1")
    return t


def poll_check(a, vt, n=4):
    for i in range(n):
        a(f"v_xor_b32 v{vt + i}, s{S_TAG}, v{vt + i}")
    if n == 2:
        a(f"v_or_b32 v{vt}, v{vt}, v{vt + 1}")
    if n == 4:
        a(f"v_or3_b32 v{vt}, v{vt}, v{vt + 1}, v{vt + 2}")
        a(f"v_or_b32 v{vt}, v{vt}, v{vt + 3}")
    a(f"v_cmp_eq_u32 vcc, 0, v{vt}")
    a("s_cmp_eq_u64 vcc, exec")


def spin(a, label, issue, vt, n=4):
    a("s_mov_b32 s86, 0")
    a.settle()
    a.label(label)
    issue()
    a("s_add_u32 s86, s86, 1")
    poll_check(a, vt, n)
    a.settle()
    a(f"s_cbranch_scc1 {label}_ok")
    a(f"s_sleep {OPT.get('slp', 2)}")
    a(f"s_cmp_lt_u32 s86, {SPIN_LIMIT}")
    a(f"s_cbranch_scc1 {label}")
    a.label(f"{label}_ok")


def flag_store(a, soff, vtmp):
    a(f"v_mov_b32 v{vtmp}, s{S_TAG}")
    a("s_mov_b64 exec, 1")
    a(f"buffer_store_dword v{vtmp}, v5, {sr(SWS, 4)}, {soff} offen sc1")
    a("s_mov_b64 exec, -1")


def gen(a):
    name = KN
    a.raw(f".globl {name}\n.p2align 8\n.type {name},@function\n{name}:")
    a("s_cmp_ge_u32 s2, 256")
    a("s_cbranch_scc1 L_end")
    stamp(a)
    a("s_load_dwordx16 s[16:31], s[0:1], 0")
    a("s_load_dwordx8 s[32:39], s[0:1], 64")
    a("s_load_dwordx2 s[40:41], s[0:1], 96")
    a("v_lshrrev_b32 v1, 6, v0")
    a("v_and_b32 v0, 63, v0")
    a(f"v_readfirstlane_b32 s{S_WAVE}, v1")
    if OPT.get("map", 0) == 0:
        a(f"s_and_b32 s{S_TG}, s2, 7")
        a(f"s_lshl_b32 s{S_TG}, s{S_TG}, 2")
        a("s_bfe_u32 s6, s2, 0x20003")
        a(f"s_add_u32 s{S_TG}, s{S_TG}, s6")
        a(f"s_lshr_b32 s{S_J}, s2, 5")
        a("s_lshl_b32 s6, s6, 1")
        a(f"s_add_u32 s{S_ROT}, s6, s{S_J}")
    else:
        a(f"s_bfe_u32 s{S_TG}, s2, 0x20001")
        a(f"s_lshl_b32 s{S_TG}, s{S_TG}, 3")
        a("s_bfe_u32 s6, s2, 0x30003")
        a(f"s_add_u32 s{S_TG}, s{S_TG}, s6")
        a(f"s_and_b32 s{S_J}, s2, 1")
        a(f"s_lshl_b32 s{S_J}, s{S_J}, 2")
        a("s_lshr_b32 s7, s2, 6")
        a(f"s_add_u32 s{S_J}, s{S_J}, s7")
        a("s_lshl_b32 s7, s7, 1")
        a(f"s_add_u32 s{S_ROT}, s6, s7")
        if OPT.get("swap", 0):
            a(f"s_cmp_eq_u32 s{S_J}, 2")
            a(f"s_cselect_b32 s7, 7, s{S_J}")
            a(f"s_cmp_eq_u32 s{S_J}, 7")
            a(f"s_cselect_b32 s{S_J}, 2, s7")
    a(f"s_and_b32 s{S_ROT}, s{S_ROT}, {7 if OPT.get('rot', 1) else 0}")
    a(f"s_lshr_b32 s{S_KROT}, s2, 3")
    a(f"s_and_b32 s{S_KROT}, s{S_KROT}, {31 if OPT.get('krot', 1) else 0}")
    a(f"s_cmp_eq_u32 s{S_J}, 7")
    a("s_cselect_b32 s6, 4, 0")
    a(f"s_xor_b32 s{S_ROLE}, s{S_WAVE}, s6")
    front(a)
    attention(a)
    a.label("L_end")
    a("s_endpgm")


def attn_prep(a):
    a(f"s_lshr_b32 s8, s{S_WAVE}, 2")
    a("s_mul_i32 s8, s8, 10240")
    a(f"s_add_u32 s8, s8, {L_RING}")
    a("v_add_u32 v244, s8, v5")
    a("v_and_b32 v52, 15, v0")
    a("v_lshlrev_b32 v52, 4, v52")
    a("v_lshl_add_u32 v52, v14, 8, v52")
    a("v_add_u32 v245, 1024, v52")
    a("v_add_u32 v246, 1536, v52")
    a("v_mov_b32 v53, 2048")
    a("v_cmp_eq_u32 vcc, 16, v13")
    a("v_cndmask_b32 v245, v245, v53, vcc")
    a("v_cndmask_b32 v246, v246, v53, vcc")
    a("v_mov_b32 v53, 0x40000")
    a("v_cmp_lt_u32 vcc, 16, v13")
    a("v_cndmask_b32 v245, v245, v53, vcc")
    a("v_cndmask_b32 v246, v246, v53, vcc")
    a("v_add_u32 v245, s8, v245")
    a("v_add_u32 v246, s8, v246")
    a(f"s_and_b32 s8, s{S_WAVE}, 3")
    a("s_lshl_b32 s8, s8, 11")
    a(f"s_add_u32 s8, s8, {L_QF}")
    a("v_add_u32 v247, s8, v5")
    for r in range(32):
        a(f"v_mov_b32 v{212 + r}, 0")
    a(f"v_lshl_add_u32 v248, v13, 3, s{S_J}")
    a(f"s_lshl_b32 s8, s{S_TG}, 3")
    a("v_add_u32 v52, s8, v3")
    a("v_cmp_eq_u32 vcc, 0, v14")
    a("v_cndmask_b32 v248, v52, v248, vcc")
    a("v_lshlrev_b32 v248, 7, v248")
    a(f"s_lshl_b32 s8, s{S_J}, 7")
    a("v_lshl_add_u32 v253, v3, 10, s8")
    a(f"s_lshl_b32 s8, s{S_J}, 10")
    a("v_lshl_add_u32 v252, v3, 7, s8")
    a(f"s_lshr_b32 s8, s{S_WAVE}, 1")
    a("s_lshl_b32 s8, s8, 14")
    a("v_and_b32 v52, 15, v0")
    a("v_lshlrev_b32 v53, 1, v14")
    a("v_xor_b32 v52, v52, v53")
    a("v_lshlrev_b32 v52, 4, v52")
    a("v_lshl_add_u32 v52, v13, 8, v52")
    a("v_add_u32 v249, s8, v52")
    a(f"s_lshl_b32 s8, s{S_WAVE}, 3")
    a("v_add_u32 v52, s8, v2")
    a("v_and_b32 v53, 15, v52")
    a("v_lshlrev_b32 v250, 1, v3")
    a("v_xor_b32 v53, v53, v250")
    a("v_lshlrev_b32 v53, 4, v53")
    a("v_lshl_add_u32 v250, v52, 8, v53")
    a("v_lshlrev_b32 v251, 10, v2")
    a("v_lshl_add_u32 v251, v3, 4, v251")


def front(a):
    ACC, X = 64, 16
    RS = 10
    PRE = OPT.get('pre', 4)
    a("v_lshrrev_b32 v2, 3, v0")
    a("v_and_b32 v3, 7, v0")
    a(f"s_and_b32 s7, s{S_WAVE}, 1")
    a("s_lshl_b32 s7, s7, 2")
    a("v_lshrrev_b32 v4, 4, v0")
    a("v_or_b32 v4, s7, v4")
    a("v_xor_b32 v4, v4, v3")
    a("v_lshlrev_b32 v4, 4, v4")
    a("v_lshl_add_u32 v4, v2, 10, v4")
    a(f"s_lshl_b32 s6, s{S_TG}, 16")
    a(f"s_lshl_b32 s7, s{S_WAVE}, 13")
    a("s_add_u32 s6, s6, s7")
    a("v_lshlrev_b32 v5, 4, v0")
    a("v_lshrrev_b32 v6, 2, v0")
    a("v_and_b32 v7, 3, v0")
    def touch():
        lvl = OPT.get("tl", 1)
        a(f"s_cmp_lt_u32 s{S_WAVE}, {8 - lvl}")
        a("s_cbranch_scc1 L_nopf")
        st_ = a.snapshot()
        a(f"s_cmp_eq_u32 s{S_WAVE}, 5")
        a("s_cbranch_scc1 L_pfsmall")
        a(f"s_cmp_eq_u32 s{S_WAVE}, 7")
        a(f"s_cselect_b32 s76, s{P_WQ}, s{P_WO}")
        a(f"s_cselect_b32 s77, s{P_WQ + 1}, s{P_WO + 1}")
        a(f"s_cselect_b32 s78, s{P_W1}, s{P_W2}")
        a(f"s_cselect_b32 s79, s{P_W1 + 1}, s{P_W2 + 1}")
        a("s_sub_u32 s10, s2, 64")
        a("s_cmp_lt_u32 s2, 64")
        a(f"s_cselect_b32 s{ST}, s76, s78")
        a(f"s_cselect_b32 s{ST + 1}, s77, s79")
        csel(a, ST + 2, 524288, 1409024)
        a(f"s_mov_b32 s{ST + 3}, 0x00020000")
        a("s_cselect_b32 s8, s2, s10")
        a("s_lshl_b32 s8, s8, 13")
        a("v_lshlrev_b32 v209, 7, v0")
        a(f"buffer_load_dword v209, v209, {sr(ST, 4)}, s8 offen")
        a("s_branch L_nopf")
        a.label("L_pfsmall")
        a("v_lshlrev_b32 v209, 7, v0")
        srd(a, ST, P_B1, 2752)
        a(f"buffer_load_dword v210, v209, {sr(ST, 4)}, 0 offen")
        srd(a, ST, P_B2, 1024)
        a(f"buffer_load_dword v211, v209, {sr(ST, 4)}, 0 offen")
        if OPT.get("tlb", 0):
            srd(a, ST, P_OUT, 4)
            a(f"buffer_load_dword v212, v209, {sr(ST, 4)}, 0 offen")
            srd(a, ST, P_WS, WS_SIZE)
            a("v_lshlrev_b32 v209, 21, v0")
            a("v_add_u32 v209, 0x1fff80, v209")
            a(f"buffer_load_dword v213, v209, {sr(ST, 4)}, 0 offen")
        a.label("L_nopf")
        a.restore(st_)

    srd(a, SX, P_X, 2097152)
    if OPT.get("pf", 0) == 4:
        touch()
    t_x = []
    for i in range(8):
        if OPT.get("xr", 0):
            if OPT["xr"] == 1:
                a(f"s_add_u32 s8, s{S_J}, {i}")
            else:
                a("s_lshr_b32 s8, s2, 6")
                a("s_lshl_b32 s8, s8, 1")
                a(f"s_add_u32 s8, s8, {i}")
            a("s_and_b32 s8, s8, 7")
            a("s_lshl_b32 s10, s8, 10")
            a("s_add_u32 m0, s7, s10")
            a("s_lshl_b32 s8, s8, 7")
            a("s_add_u32 s8, s8, s6")
        else:
            a(f"s_add_u32 s8, s{S_ROT}, {i}")
            a("s_and_b32 s8, s8, 7")
            a("s_lshl_b32 s8, s8, 7")
            a("s_add_u32 s8, s8, s6")
            a(f"s_add_u32 m0, s7, {1024 * i}")
        t_x.append(a(f"buffer_load_dwordx4 v4, {sr(SX, 4)}, s8 offen lds"))
    srd(a, SWS, P_WS, WS_SIZE)
    a(f"s_mul_i32 s9, s{S_J}, 6")
    a(f"s_add_u32 s9, s9, s{S_ROLE}")
    a(f"s_cmp_gt_u32 s{S_J}, 3")
    a("s_cselect_b32 s10, 3, 2")
    a("s_sub_u32 s9, s9, s10")
    a("s_max_i32 s9, s9, 0")
    a("s_cmp_lt_u32 s9, 43")
    a(f"s_cselect_b32 s{S_KIND}, 0, 1")
    a(f"s_lshl_b32 s10, s{S_J}, 3")
    a(f"s_add_u32 s10, s10, s{S_ROLE}")
    a("s_cmp_eq_u32 s10, 31")
    a(f"s_cselect_b32 s{S_KIND}, 2, s{S_KIND}")
    a(f"s_lshl_b32 s10, s{S_J}, 1")
    a(f"s_add_u32 s10, s10, s{S_ROLE}")
    a(f"s_cmp_lt_u32 s{S_ROLE}, 2")
    a(f"s_cselect_b32 s{SW}, s{P_WQ}, s{P_W1}")
    a(f"s_cselect_b32 s{SW + 1}, s{P_WQ + 1}, s{P_W1 + 1}")
    csel(a, SW + 2, 524288, 1409024)
    a(f"s_mov_b32 s{SW + 3}, 0x00020000")
    csel(a, 11, 1024, 2752)
    a("s_cselect_b32 s15, s10, s9")
    a("s_lshl_b32 s15, s15, 6")
    a("s_lshl_b32 s13, s11, 4")
    a(f"s_lshl_b32 s12, s{S_ROT}, 2")
    a("s_mov_b32 s73, 31")
    a("v_mul_u32_u24 v8, s11, v6")
    a("v_lshl_add_u32 v8, v7, 4, v8")
    a(f"s_cmp_eq_u32 s{S_KIND}, 0")
    a("s_cbranch_scc1 L_stdw")
    a(f"s_cmp_lt_u32 s{S_ROLE}, 6")
    a(f"s_cselect_b32 s{SW}, s{P_WK}, s{P_WV}")
    a(f"s_cselect_b32 s{SW + 1}, s{P_WK + 1}, s{P_WV + 1}")
    a(f"s_cmp_eq_u32 s{S_KIND}, 2")
    a(f"s_cselect_b32 s{SW + 2}, 0, 16384")
    a(f"s_and_b32 s12, s{S_ROLE}, 1")
    a("s_lshl_b32 s12, s12, 2")
    a(f"s_add_u32 s12, s12, s{S_ROT}")
    a("s_lshl_b32 s12, s12, 1")
    a("s_mov_b32 s73, 15")
    a("s_mov_b32 s15, 0")
    a("s_mov_b32 s13, 1024")
    a("v_mov_b32 v8, v5")
    a.label("L_stdw")
    a(f"s_mul_i32 s14, s{S_WAVE}, {RS * 1024}")
    a(f"s_add_u32 s14, s14, {L_RING}")
    if OPT.get("pf", 0) in (2, 3):
        touch()
    a("s_barrier")
    dma = {}

    def issue_w(ks):
        a("s_and_b32 s74, s12, s73")
        a("s_mul_i32 s74, s74, s13")
        a("s_add_u32 s74, s74, s15")
        a(f"s_add_u32 m0, s14, {(ks % RS) * 1024}")
        a("s_add_u32 s12, s12, 1")
        dma[ks] = a(f"buffer_load_dwordx4 v8, {sr(SW, 4)}, s74 offen lds")

    for ks in range(PRE):
        issue_w(ks)
    if OPT.get("pq", 0):
        a.comment("slice 7 pulls the wq column block of slice 3 into the shared cache")
        a(f"s_lshl_b32 s8, s{S_J}, 3")
        a(f"s_add_u32 s8, s8, s{S_ROLE}")
        a("s_cmp_lg_u32 s8, 56")
        a("s_cbranch_scc1 L_nopq")
        st_ = a.snapshot()
        a(f"s_and_b32 s8, s{S_TG}, 7")
        a("s_lshl_b32 s8, s8, 16")
        a("s_add_u32 s8, s8, 384")
        a("v_lshlrev_b32 v211, 10, v0")
        a(f"buffer_load_dword v211, v211, {sr(SW, 4)}, s8 offen")
        a.label("L_nopq")
        a.restore(st_)
    a("v_lshlrev_b32 v9, 10, v6")
    a("v_lshl_add_u32 v9, v7, 4, v9")
    a(f"s_lshl_b32 s76, s{S_TG}, 3")
    a(f"s_add_u32 s76, s76, s{S_WAVE}")
    a("s_sub_u32 s77, s76, 172")
    a("s_cmp_lt_u32 s76, 172")
    a(f"s_cselect_b32 s{ST}, s{P_W2}, s{P_WO}")
    a(f"s_cselect_b32 s{ST + 1}, s{P_W2 + 1}, s{P_WO + 1}")
    csel(a, ST + 2, 1409024, 524288)
    a(f"s_mov_b32 s{ST + 3}, 0x00020000")
    a("s_cselect_b32 s77, s76, s77")
    csel(a, 78, HF_STRIDE, 65536)
    csel(a, 79, WS_W2T, WS_WOT)
    a("s_lshr_b32 s80, s77, 1")
    a("s_and_b32 s81, s77, 1")
    a("s_lshl_b32 s82, s80, 14")
    a("s_lshl_b32 s83, s81, 6")
    a("s_add_u32 s82, s82, s83")
    a(f"s_lshl_b32 s83, s{S_J}, 7")
    a("s_add_u32 s82, s82, s83")
    a(f"s_mul_i32 s83, s{S_J}, s78")
    a("s_add_u32 s79, s79, s83")
    a("s_lshl_b32 s83, s77, 10")
    a("s_add_u32 s79, s79, s83")
    a("s_cmp_lt_u32 s76, 236")
    a(f"s_cselect_b32 s79, s79, {WS_SIZE}")
    a("v_add_u32 v11, s7, v5")
    a(f"s_lshl_b32 s8, s{S_WAVE}, 5")
    a(f"s_add_u32 s8, s8, {L_STATS}")
    a("v_lshl_add_u32 v12, v2, 2, s8")
    a("v_and_b32 v13, 31, v0")
    a("v_lshrrev_b32 v14, 5, v0")
    a("v_bfe_u32 v52, v0, 1, 3")
    a("v_xor_b32 v52, v52, v14")
    a("v_bfe_u32 v53, v0, 3, 2")
    a("v_lshlrev_b32 v53, 13, v53")
    a("v_lshl_add_u32 v53, v3, 7, v53")
    for c in range(4):
        a(f"v_xor_b32 v15, {2 * c}, v52")
        a(f"v_lshl_add_u32 v{60 + c}, v15, 4, v53")
    a("v_bfe_u32 v52, v0, 2, 2")
    a("v_bfe_u32 v53, v0, 4, 1")
    a("v_lshlrev_b32 v15, 3, v7")
    a("v_lshl_add_u32 v15, v52, 6, v15")
    a("v_lshl_add_u32 v15, v53, 5, v15")
    a("v_add_u32 v15, s14, v15")
    a("v_and_b32 v7, 1, v0")
    a("v_bfe_u32 v6, v0, 1, 1")
    a("v_lshlrev_b32 v7, 4, v7")
    a("v_lshl_add_u32 v7, v6, 3, v7")
    a("v_lshl_add_u32 v7, v52, 6, v7")
    a("v_lshl_add_u32 v7, v53, 5, v7")
    a("v_add_u32 v7, s14, v7")
    a("v_lshl_add_u32 v7, v14, 8, v7")
    a("v_lshl_add_u32 v6, v14, 9, v15")
    a("v_lshlrev_b32 v57, 2, v13")
    a(f"v_add_u32 v57, {L_STATS}, v57")
    a(f"s_lshl_b32 s8, s{S_WAVE}, 7")
    a(f"s_add_u32 s8, s8, {L_CS}")
    a("v_and_b32 v52, 15, v0")
    a("v_lshrrev_b32 v53, 4, v0")
    a("v_lshlrev_b32 v54, 6, v52")
    a("v_lshl_add_u32 v54, v53, 4, v54")
    a("v_add_u32 v54, s8, v54")
    a("v_mov_b32 v15, 0x40000")
    a("v_cmp_gt_u32 vcc, 2, v52")
    a("v_cndmask_b32 v54, v15, v54, vcc")
    a("v_and_b32 v53, 1, v53")
    a("v_cmp_eq_u32 vcc, v53, v52")
    a("v_mov_b32 v15, 0x3f803f80")
    for r in range(4):
        a(f"v_cndmask_b32 v{200 + r}, 0, v15, vcc")
    a("v_lshl_add_u32 v55, v14, 4, s8")
    a("v_lshlrev_b32 v10, 7, v13")
    a(f"v_mov_b32 v15, {L_CNT}")
    a("v_mov_b32 v52, 0")
    a("ds_write2_b32 v15, v52, v52 offset0:0 offset1:1")
    a("s_mov_b32 s72, 0x3f803f80")
    srd(a, SB1, P_B1, 2752)
    a(f"s_mul_i32 s8, s{S_TG}, {HF_STRIDE}")
    a(f"s_add_u32 s8, s8, {WS_HF}")
    srd(a, SH, P_WS, 86 * 2048, "s8")
    attn_prep(a)
    for i in range(8):
        a.wait_tok(t_x[7 if OPT.get("xr", 0) else i])
        a(f"ds_read_b128 {vr(X + 4 * i, 4)}, v11 offset:{1024 * i}")
    stamp(a)
    if OPT.get("pf", 0) == 5:
        touch()
    nxt = PRE
    SH_ = OPT.get("shadow", 0)

    def stats_finish():
        for mod in ("quad_perm:[1,0,3,2]", "quad_perm:[2,3,0,1]", "row_half_mirror"):
            for r in (48, 49):
                a(f"v_add_f32_dpp v{r}, v{r}, v{r} {mod} row_mask:0xf bank_mask:0xf")
        a(f"v_mul_f32 v48, {f32(-1.0 / 512)}, v48")
        a(f"v_mul_f32 v49, {f32(1.0 / 512)}, v49")
        a("v_fma_f32 v49, -v48, v48, v49")
        a("v_max_f32 v49, 0, v49")
        a(f"v_add_f32 v50, {f32(1e-5)}, v49")
        a("v_rsq_f32 v50, v50")
        a("v_mul_f32 v51, v49, v50")
        a(f"v_fmaak_f32 v51, v51, v50, {f32(1e-5)}")
        a("v_rsq_f32 v51, v51")
        a("v_mul_f32 v51, v51, v50")
        a("ds_write2_b32 v12, v50, v51 offset0:0 offset1:64")
        a("ds_write_b32 v12, v48 offset:512")

    def stats_dot():
        for r in range(32):
            a(f"v_dot2_f32_bf16 v48, v{X + r}, s72, {'v48' if r else '0'}")
            a(f"v_dot2_f32_bf16 v49, v{X + r}, v{X + r}, {'v49' if r else '0'}")
        stats_finish()

    def stats_plain(r):
        a(f"v_lshlrev_b32 v52, 16, v{X + r}")
        a(f"v_and_b32 v53, 0xffff0000, v{X + r}")
        if r == 0:
            a("v_add_f32 v48, v52, v53")
            a("v_mul_f32 v49, v52, v52")
        else:
            a("v_add_f32 v48, v48, v52")
            a("v_fmac_f32 v49, v52, v52")
            a("v_add_f32 v48, v48, v53")
        a("v_fmac_f32 v49, v53, v53")

    if SH_:
        a(f"s_cmp_lg_u32 s{S_J}, 7")
        a("s_cbranch_scc1 L_nostat")
        st_ = a.snapshot()
        stats_dot()
        a.wait_all(vm=False)
        a.settle()
        a.label("L_nostat")
        a.restore(st_)
    else:
        stats_dot()
    NPRE = max(8, nxt) if OPT.get("late", 0) == 2 else RS
    for ks in range(nxt, NPRE):
        issue_w(ks)
    a(f"s_cmp_lg_u32 s{S_KIND}, 1")
    a("s_cbranch_scc1 L_nokvw")
    a.raw(f"    s_waitcnt vmcnt({NPRE - 8})")
    a.label("L_nokvw")
    a.wait_all(vm=False)
    stamp(a)
    a("s_barrier")
    stamp(a)

    for ks in range(NPRE, RS):
        issue_w(ks)
    a(f"v_mov_b32 v1, {WS_E}")
    a(f"buffer_load_dword v1, v1, {sr(SWS, 4)}, 0 offen sc1")

    def make_tag():
        a.comment("hand-off tag of this launch")
        a(f"v_readfirstlane_b32 s{S_TAG}, v1")
        a(f"s_mul_i32 s{S_TAG}, s{S_TAG}, 0x9e3779b1")
        a(f"s_add_u32 s{S_TAG}, s{S_TAG}, 0x7f4a7c15")

    def t_issue():
        a(f"s_add_u32 m0, s14, {(RS - 1) * 1024}")
        return a(f"buffer_load_dwordx4 v9, {sr(ST, 4)}, s82 offen lds")

    def t_task(t_tr):
        a.wait_tok(t_tr)
        a(f"ds_read_b64_tr_b16 v[128:129], v7 offset:{(RS - 1) * 1024}")
        a(f"ds_read_b64_tr_b16 v[130:131], v7 offset:{(RS - 1) * 1024 + 512}")
        a(f"buffer_store_dwordx4 v[128:131], v5, {sr(SWS, 4)}, s79 offen sc1")

    def poll1_issue():
        a(f"s_mov_b32 s85, {WS_FL1}")
        a(f"buffer_load_dword v132, v10, {sr(SWS, 4)}, s85 offen sc1")

    def colsum_finish():
        a("ds_write_b128 v54, v[204:207]")

    def colsum_spread(dst, n):
        for q in range(n):
            a(f"ds_read_b128 {vr(dst + 4 * q, 4)}, v55 offset:{32 * q}")

    def kv_dma():
        a(f"s_and_b32 s10, s{S_WAVE}, 1")
        a("s_lshl_b32 s10, s10, 15")
        a(f"s_lshr_b32 s12, s{S_WAVE}, 1")
        a("s_lshl_b32 s12, s12, 2")
        a(f"s_add_u32 s12, s12, s{S_KROT}")
        t = None
        for s in range(4):
            a(f"s_add_u32 s11, s12, {s}")
            a("s_and_b32 s11, s11, 31")
            a("s_lshl_b32 s11, s11, 10")
            a("s_add_u32 s11, s11, s10")
            a(f"s_add_u32 m0, s14, {s * KT}")
            a(f"s_add_u32 s13, s11, {WS_VF}")
            a(f"buffer_load_dwordx4 v5, {sr(SWS, 4)}, s11 offen sc1 lds")
            a(f"s_add_u32 m0, s14, {s * KT + 1024}")
            t = a(f"buffer_load_dwordx4 v5, {sr(SWS, 4)}, s13 offen sc1 lds")
        kv_ones()
        return t

    def kv_ones():
        for r in range(4):
            a(f"v_mov_b32 v{136 + r}, 0x3f803f80")
        a("v_and_b32 v140, 3, v0")
        a(f"v_mul_u32_u24 v140, {KT}, v140")
        a("v_add_u32 v140, s14, v140")
        a("ds_write_b128 v140, v[136:139] offset:2048")

    def gelu(packed):
        a("ds_read2_b32 v[58:59], v57 offset0:64 offset1:96")
        a("ds_read2_b32 v[160:161], v57 offset0:128 offset1:160")
        a("s_lshl_b32 s7, s9, 12")
        BI = 176
        for q in range(8):
            a(f"v_lshlrev_b32 v{BI + 2 * q}, 16, v{120 + q}")
            a(f"v_and_b32 v{BI + 2 * q + 1}, 0xffff0000, v{120 + q}")
        c0 = -2.0 * 0.7978845608028654 * LOG2E
        a(f"v_mov_b32 v168, {f32(c0 * 0.044715)}")
        if packed:
            a(f"v_mov_b32 v170, {f32(c0)}")
            a("v_mov_b32 v172, 1.0")
            a("v_mov_b32 v162, v59")
            a("v_mov_b32 v164, v161")
        for tt in range(2):
            for half in range(2):
                U = ACC + 16 * tt + 8 * half
                T = 192
                if (tt, half) == (1, 0):
                    t_task(t_tr)
                if packed:
                    rs, nm = ("v[58:59]", "v[160:161]") if tt == 0 else ("v[162:163]", "v[164:165]")
                    P = lambda b, r: vr(b + 2 * r, 2)
                    for r in range(4):
                        a(f"v_pk_fma_f32 {P(U, r)}, {P(144 + 8 * half, r)}, {nm}, {P(U, r)} op_sel_hi:[1,0,1]")
                    for r in range(4):
                        a(f"v_pk_fma_f32 {P(U, r)}, {P(U, r)}, {rs}, {P(BI + 8 * half, r)} op_sel_hi:[1,0,1]")
                    for r in range(4):
                        a(f"v_pk_mul_f32 {P(T, r)}, {P(U, r)}, {P(U, r)}")
                    for r in range(4):
                        a(f"v_pk_fma_f32 {P(T, r)}, {P(T, r)}, v[168:169], v[170:171] op_sel_hi:[1,0,0]")
                    for r in range(4):
                        a(f"v_pk_mul_f32 {P(T, r)}, {P(T, r)}, {P(U, r)}")
                    for r in range(8):
                        a(f"v_exp_f32 v{T + r}, v{T + r}")
                    for r in range(4):
                        a(f"v_pk_add_f32 {P(T, r)}, {P(T, r)}, v[172:173] op_sel_hi:[1,0]")
                    for r in range(8):
                        a(f"v_rcp_f32 v{T + r}, v{T + r}")
                    for r in range(4):
                        a(f"v_pk_mul_f32 {P(U, r)}, {P(U, r)}, {P(T, r)}")
                    d = 104 + 8 * tt + 4 * half
                    for r in range(4):
                        a(f"v_cvt_pk_bf16_f32 v{d + r}, v{U + 2 * r}, v{U + 2 * r + 1}")
                    a(f"buffer_store_dwordx4 {vr(d, 4)}, v5, {sr(SH, 4)}, s7 offen offset:{half * 2048 + tt * 1024} sc1")
                    continue
                for r in range(8):
                    a(f"v_fmac_f32 v{U + r}, v{144 + 8 * half + r}, v{160 + tt}")
                for r in range(8):
                    a(f"v_fma_f32 v{U + r}, v{U + r}, v{58 + tt}, v{BI + 8 * half + r}")
                for r in range(8):
                    a(f"v_mul_f32 v{T + r}, v{U + r}, v{U + r}")
                for r in range(8):
                    a(f"v_fmaak_f32 v{T + r}, v{T + r}, v168, {f32(c0)}")
                for r in range(8):
                    a(f"v_mul_f32 v{T + r}, v{T + r}, v{U + r}")
                for r in range(8):
                    a(f"v_exp_f32 v{T + r}, v{T + r}")
                for r in range(8):
                    a(f"v_add_f32 v{T + r}, 1.0, v{T + r}")
                for r in range(8):
                    a(f"v_rcp_f32 v{T + r}, v{T + r}")
                for r in range(8):
                    a(f"v_mul_f32 v{U + r}, v{U + r}, v{T + r}")
                d = 104 + 8 * tt + 4 * half
                for r in range(4):
                    a(f"v_cvt_pk_bf16_f32 v{d + r}, v{U + 2 * r}, v{U + 2 * r + 1}")
                a(f"buffer_store_dwordx4 {vr(d, 4)}, v5, {sr(SH, 4)}, s7 offen offset:{half * 2048 + tt * 1024} sc1")

    a(f"s_cmp_eq_u32 s{S_KIND}, 0")
    a.settle()
    a("s_cbranch_scc0 L_spare")
    snap0 = a.snapshot()

    def reads(ks):
        ab, bb = 96 + 4 * (ks & 1), 104 + 8 * (ks & 1)
        a.wait_tok(dma[ks])
        a(f"ds_read_b64_tr_b16 {vr(ab, 2)}, v6 offset:{(ks % RS) * 1024}")
        t = a(f"ds_read_b64_tr_b16 {vr(ab + 2, 2)}, v6 offset:{(ks % RS) * 1024 + 256}")
        for tt in range(2):
            a(f"ds_read_b128 {vr(bb + 4 * tt, 4)}, v{60 + (ks & 3)} offset:{tt * 32768 + (ks >> 2) * 1024}")
        return t

    a(f"s_cmp_lg_u32 s{S_J}, 7")
    a("s_cbranch_scc1 L_nohold")
    a("s_barrier")
    a.label("L_nohold")
    tk = {0: reads(0)}
    LOCK = OPT.get("lock", 0)
    nlock = 0
    for ks in range(32):
        if (LOCK and ks % LOCK == 0 and 0 < ks < 24) or (SH_ and ks == 11):
            a("s_barrier")
            nlock += 1
        if ks + 1 < 32:
            tk[ks + 1] = reads(ks + 1)
        ab, bb = 96 + 4 * (ks & 1), 104 + 8 * (ks & 1)
        a(f"v_mfma_f32_16x16x32_bf16 v[204:207], {vr(ab, 4)}, v[200:203], {'0' if ks == 0 else 'v[204:207]'}")
        for tt in range(2):
            acc = vr(ACC + 16 * tt, 16)
            a(f"v_mfma_f32_32x32x16_bf16 {acc}, {vr(ab, 4)}, {vr(bb + 4 * tt, 4)}, {'0' if ks == 0 else acc}")
            if tt == 0:
                a.wait_tok(tk[ks])
                if ks == 12:
                    make_tag()
                if SH_ and ks < 8:
                    for r in range(4 * ks, 4 * ks + 4):
                        stats_plain(r)
                if SH_ and ks == 8:
                    stats_finish()
                if ks == OPT.get("bks", 6):
                    a("s_lshl_b32 s7, s9, 6")
                    a("v_lshlrev_b32 v56, 3, v14")
                    for q in range(4):
                        a(f"buffer_load_dwordx2 {vr(120 + 2 * q, 2)}, v56, {sr(SB1, 4)}, s7 offen offset:{16 * q}")
                    if OPT.get("tpf", 1):
                        a(f"buffer_load_dword v210, v9, {sr(ST, 4)}, s82 offen")
                if ks + RS < 32:
                    issue_w(ks + RS)
                elif ks == OPT.get("pollks", 27):
                    a(f"s_cmp_ge_u32 s{S_WAVE}, 2")
                    a("s_cbranch_scc1 L_nopre")
                    st_ = a.snapshot()
                    poll1_issue()
                    a.label("L_nopre")
                    a.restore(st_)
                elif ks == 29:
                    t_tr = t_issue()
    stamp(a, 4)
    a("s_mov_b32 s73, 0")
    a(f"s_cmp_ge_u32 s{S_WAVE}, 2")
    a.settle()
    a("s_cbranch_scc1 L_noearly")
    st_ = a.snapshot()
    a.raw("    s_waitcnt vmcnt(1)")
    poll_check(a, 132, 1)
    a.settle()
    a("s_cbranch_scc0 L_noearly")
    stamp(a, 21)
    a("s_mov_b32 s73, 1")
    kv_dma()
    a.settle()
    a.label("L_noearly")
    a.restore(st_)
    colsum_finish()
    colsum_spread(144, 4)
    a(f"s_cmp_lt_u32 s{S_ROLE}, 2")
    a.settle()
    a("s_cbranch_scc0 L_mlp")
    snap = a.snapshot()
    a("ds_read2_b32 v[58:59], v57 offset0:0 offset1:32")
    a("ds_read2_b32 v[160:161], v57 offset0:128 offset1:160")
    a(f"s_lshl_b32 s8, s{S_ROLE}, 12")
    a(f"s_add_u32 s8, s8, {L_QF}")
    a("v_add_u32 v56, s8, v5")
    a(f"v_mul_f32 v58, {f32(0.25 * LOG2E)}, v58")
    a(f"v_mul_f32 v59, {f32(0.25 * LOG2E)}, v59")
    for tt in range(2):
        for r in range(16):
            a(f"v_fmac_f32 v{ACC + 16 * tt + r}, v{144 + r}, v{160 + tt}")
        for r in range(16):
            a(f"v_mul_f32 v{ACC + 16 * tt + r}, v{ACC + 16 * tt + r}, v{58 + tt}")
        for ab in range(2):
            d = 104 + 8 * tt + 4 * ab
            for r in range(4):
                s0 = ACC + 16 * tt + 8 * ab + 2 * r
                a(f"v_cvt_pk_bf16_f32 v{d + r}, v{s0}, v{s0 + 1}")
            a(f"ds_write_b128 v56, {vr(d, 4)} offset:{(2 * tt + ab) * 1024}")
    t_task(t_tr)
    a.settle()
    a("s_branch L_done")

    a.label("L_mlp")
    a.restore(snap)
    a(f"s_cmp_ge_u32 s{S_WAVE}, 4")
    a("s_cbranch_scc1 L_young")
    gelu(bool(LOCK))
    a.settle()
    a("s_branch L_done")
    a.label("L_young")
    a.restore(snap)
    gelu(True)
    a.settle()
    a("s_branch L_done")

    a.label("L_spare")
    a.restore(snap0)
    a(f"s_cmp_eq_u32 s{S_KIND}, 2")
    a("s_cbranch_scc1 L_idle")
    a("v_and_b32 v128, 15, v0")
    a("v_lshrrev_b32 v129, 4, v0")
    a(f"s_and_b32 s8, s{S_WAVE}, 1")
    a("s_lshl_b32 s7, s8, 15")
    a("v_lshrrev_b32 v130, 1, v128")
    a("v_xor_b32 v130, v130, v129")
    a("v_lshrrev_b32 v131, 3, v128")
    a("v_lshlrev_b32 v131, 13, v131")
    a("v_lshl_add_u32 v131, v3, 7, v131")
    a("v_add_u32 v131, s7, v131")
    a("v_lshl_add_u32 v60, v130, 4, v131")
    a("v_xor_b32 v61, 64, v60")
    a(f"s_and_b32 s7, s{S_WAVE}, 6")
    a(f"s_mul_i32 s7, s7, {RS * 1024}")
    a(f"s_add_u32 s7, s7, {L_RING}")
    a("v_lshlrev_b32 v6, 3, v128")
    a("v_lshl_add_u32 v6, v129, 8, v6")
    a("v_add_u32 v6, s7, v6")
    for r in range(4):
        a(f"v_mov_b32 v{200 + r}, 0x3f803f80")
    a(f"s_lshl_b32 s10, s{S_TG}, 1")
    a("s_add_u32 s10, s10, s8")
    a("s_lshl_b32 s10, s10, 10")
    a("s_lshl_b32 s7, s8, 7")
    a(f"s_add_u32 s7, s7, {L_STATS}")
    a(f"s_cmp_lt_u32 s{S_ROLE}, 6")
    a.settle()
    a("s_cbranch_scc0 L_doV")
    snap2 = a.snapshot()
    for isv in (0, 1):
        if isv:
            a.label("L_doV")
            a.restore(snap2)
        KB, ND = 144, 4

        def reads_kv(s_):
            b = KB + 12 * (s_ % ND)
            o = (s_ >> 3) * RS * 1024 + (s_ & 7) * 1024
            a(f"ds_read_b64_tr_b16 {vr(b, 2)}, v6 offset:{o}")
            a(f"ds_read_b64_tr_b16 {vr(b + 2, 2)}, v6 offset:{o + 128}")
            for u in range(2):
                a(f"ds_read_b128 {vr(b + 4 + 4 * u, 4)}, v{60 + (s_ & 1)} offset:{16384 * u + 1024 * (s_ >> 1)}")

        for s_ in range(ND - 1):
            reads_kv(s_)
        for s_ in range(16):
            if s_ + ND - 1 < 16:
                reads_kv(s_ + ND - 1)
            b = KB + 12 * (s_ % ND)
            for u, other in ((2, "v[200:203]"), (0, vr(b + 4, 4)), (1, vr(b + 8, 4))):
                acc = vr(ACC + 4 * u, 4)
                opa, opb = (other, vr(b, 4)) if isv else (vr(b, 4), other)
                a(f"v_mfma_f32_16x16x32_bf16 {acc}, {opa}, {opb}, {'0' if s_ == 0 else acc}")
            if s_ == 13:
                if isv:
                    a("v_lshl_add_u32 v57, v129, 4, s7")
                    for u in range(2):
                        a(f"ds_read_b128 {vr(96 + 4 * u, 4)}, v57 offset:{64 * u}")
                        a(f"ds_read_b128 {vr(104 + 4 * u, 4)}, v57 offset:{512 + 64 * u}")
                    a("v_lshrrev_b32 v130, 1, v129")
                    a("v_lshl_add_u32 v130, v130, 4, v128")
                    a("v_lshlrev_b32 v130, 4, v130")
                    a("v_and_b32 v131, 1, v129")
                    a("v_lshl_add_u32 v56, v131, 3, v130")
                    a(f"s_add_u32 s10, s10, {WS_VF}")
                else:
                    a("v_lshl_add_u32 v57, v128, 2, s7")
                    a("ds_read2_b32 v[96:97], v57 offset0:0 offset1:16")
                    a("ds_read2_b32 v[104:105], v57 offset0:128 offset1:144")
                    a("v_and_b32 v131, 1, v129")
                    a("v_lshl_add_u32 v130, v131, 5, v128")
                    a("v_lshlrev_b32 v130, 4, v130")
                    a("v_lshrrev_b32 v131, 1, v129")
                    a("v_lshl_add_u32 v56, v131, 3, v130")
        stamp(a, 13)
        for u in range(2):
            for r in range(4):
                nm = 104 + 4 * u + r if isv else 104 + u
                a(f"v_fmac_f32 v{ACC + 4 * u + r}, v{ACC + 8 + r}, v{nm}")
            for r in range(4):
                rs = 96 + 4 * u + r if isv else 96 + u
                a(f"v_mul_f32 v{ACC + 4 * u + r}, v{ACC + 4 * u + r}, v{rs}")
            a(f"v_cvt_pk_bf16_f32 v{112 + 2 * u}, v{ACC + 4 * u}, v{ACC + 4 * u + 1}")
            a(f"v_cvt_pk_bf16_f32 v{113 + 2 * u}, v{ACC + 4 * u + 2}, v{ACC + 4 * u + 3}")
            a(f"buffer_store_dwordx2 {vr(112 + 2 * u, 2)}, v56, {sr(SWS, 4)}, s10 offen offset:{(512 if isv else 256) * u} sc1")
        a.wait_all()
        a.settle()
        if not isv:
            a("s_branch L_kvpub")
    a.label("L_kvpub")
    stamp(a, 14)
    make_tag()
    a(f"v_mov_b32 v15, {L_CNT}")
    a("v_mov_b32 v52, 1")
    a("s_mov_b64 exec, 1")
    a("ds_add_rtn_u32 v53, v15, v52")
    a("s_mov_b64 exec, -1")
    a(f"s_lshl_b32 s8, s{S_TG}, 7")
    a(f"s_add_u32 s8, s8, {WS_FL1}")
    a("v_readfirstlane_b32 s7, v53")
    a("s_cmp_lg_u32 s7, 3")
    a.settle()
    a("s_cbranch_scc1 L_noflag1")
    flag_store(a, "s8", 136)
    a.settle()
    a.label("L_noflag1")
    a("s_barrier")
    a.label("L_idle")
    a.reset_state()
    a.wait_all()
    if SH_:
        stats_dot()
        a.wait_all(vm=False)
    make_tag()
    a("s_mov_b32 s73, 0")
    t_task(t_issue())
    for _ in range(nlock):
        a("s_barrier")
    a.settle()

    a.label("L_done")
    a.reset_state()
    stamp(a, 19)
    a(f"s_cmp_ge_u32 s{S_WAVE}, 2")
    a("s_cbranch_scc1 L_late")
    a("s_cmp_eq_u32 s73, 1")
    a("s_cbranch_scc1 L_kvdone")
    spin(a, "L_poll1", poll1_issue, 132, 1)
    a.reset_state()
    stamp(a, 21)
    kv_dma()
    a.wait_all()
    a.settle()
    a.label("L_kvdone")
    a.raw("    s_waitcnt vmcnt(1) lgkmcnt(0)")
    stamp(a, 5)
    a("s_barrier")
    stamp(a, 6)
    a.settle()
    a("s_branch L_attn")
    a.label("L_late")
    a.reset_state()
    kv_ones()
    a.wait_all(vm=False)
    stamp(a, 5)
    a("s_barrier")
    stamp(a, 6)
    a.settle()
    a.label("L_attn")
    a.reset_state()
    _stamp["n"] = 7


def attention(a):
    S0, O0, Q0, KR, V0R, V1R, IDX = 16, 212, 80, 88, 92, 96, 100
    M, BUF, XR, B2R = 104, 168, 200, 204
    L_WO = L_RING
    AK, AV0, AV1, AQ = 244, 245, 246, 247
    wo_reg = lambda n: 104 + 4 * n
    a(f"s_and_b32 s6, s{S_WAVE}, 3")
    a(f"s_lshr_b32 s7, s{S_WAVE}, 2")
    a(f"v_mov_b32 v{IDX}, 0xdddddddd")

    def kvoff(it):
        return ((it >> 2) & 1) * 20480 + (it & 3) * KT if it < 16 else (it - 16) * KT

    def rebase(it, r):
        if it == 8:
            a(f"v_add_u32 v{r}, 40960, v{r}")
        if it == 16:
            a(f"v_subrev_u32 v{r}, s87, v{r}")

    def rk(it):
        rebase(it, AK)
        a(f"ds_read_b128 {vr(KR, 4)}, v{AK} offset:{kvoff(it)}")

    def rv(it, p):
        rebase(it, AV0 + p)
        a(f"ds_read_b128 {vr((V0R, V1R)[p], 4)}, v{AV0 + p} offset:{kvoff(it)}")

    def kv_dma1(s_):
        a(f"s_cmp_lt_u32 s{S_WAVE}, 2")
        a(f"s_cbranch_scc1 L_skipkv{s_}")
        hist = list(a.hist)
        if s_ == 0:
            a(f"s_and_b32 s10, s{S_WAVE}, 1")
            a("s_lshl_b32 s10, s10, 15")
            a(f"s_lshr_b32 s12, s{S_WAVE}, 1")
            a("s_lshl_b32 s12, s12, 2")
            a(f"s_add_u32 s12, s12, s{S_KROT}")
        a(f"s_add_u32 s11, s12, {s_}")
        a("s_and_b32 s11, s11, 31")
        a("s_lshl_b32 s11, s11, 10")
        a("s_add_u32 s11, s11, s10")
        a(f"s_add_u32 m0, s14, {s_ * KT}")
        a(f"s_add_u32 s13, s11, {WS_VF}")
        a(f"buffer_load_dwordx4 v5, {sr(SWS, 4)}, s11 offen sc1 lds")
        a(f"s_add_u32 m0, s14, {s_ * KT + 1024}")
        a(f"buffer_load_dwordx4 v5, {sr(SWS, 4)}, s13 offen sc1 lds")
        a.label(f"L_skipkv{s_}")
        a.hist = hist

    def kv_dma2(n):
        s_, isv = n >> 1, n & 1
        if n == 0:
            a(f"s_mul_i32 s87, s7, {(10240 - 16 * KT) & 0xffffffff}")
            a(f"s_add_u32 s87, s87, {L_RING + 40960}")
            a("s_lshl_b32 s10, s7, 4")
            a("s_add_u32 s10, s10, s6")
            a(f"s_mul_i32 s14, s10, {KT}")
            a("s_lshl_b32 s10, s7, 15")
            a(f"s_add_u32 s12, s6, s{S_KROT}")
        if isv:
            a(f"s_add_u32 s11, s11, {WS_VF}")
        else:
            a(f"s_add_u32 s11, s12, {16 + 4 * s_}")
            a("s_and_b32 s11, s11, 31")
            a("s_lshl_b32 s11, s11, 10")
            a("s_add_u32 s11, s11, s10")
        a(f"s_add_u32 m0, s14, {4 * s_ * KT + 1024 * isv}")
        a(f"buffer_load_dwordx4 v5, {sr(SWS, 4)}, s11 offen sc1 lds")
        if n == 7:
            a("v_and_b32 v101, 3, v0")
            a(f"v_mul_u32_u24 v101, {4 * KT}, v101")
            a("v_add_u32 v101, s14, v101")
            a("ds_write_b128 v101, v[136:139] offset:2048")

    def mf(t):
        a(f"v_mfma_f32_32x32x16_bf16 {vr(S0 + 16 * (t & 1), 16)}, {vr(KR, 4)}, {vr(Q0 + 4 * (t & 1), 4)}, 0")

    def smf(t, p):
        a(f"v_smfmac_f32_32x32x32_bf16 {vr(O0 + 16 * (t & 1), 16)}, {vr((V0R, V1R)[p], 4)}, "
          f"{vr(S0 + 16 * (t & 1) + 8 * p, 8)}, v{IDX}")

    PN, PP = OPT.get("pn", 0), OPT.get("pp", 2)

    def ex(t, lo, hi, prio=True):
        for i in range(lo, hi):
            r = S0 + 16 * (t & 1) + i
            if PN and prio:
                pos = (t % PP) * 16 + i
                if pos == 0:
                    a("s_setprio 0")
                if pos == PN:
                    a("s_setprio 1")
            a(f"v_exp_f32 v{r}, v{r}")

    NT = 64
    hooks = {(t, p): [] for t in range(NT) for p in range(4)}

    def at(t, p, fn):
        hooks[(t, p)].append(fn)

    def setup_mlp2():
        a(f"s_mul_i32 s14, s{S_J}, {HF_STRIDE}")
        a(f"s_add_u32 s14, s14, {WS_W2T}")
        srd(a, SW2, P_WS, 86 * 2048, "s14")
        a(f"s_lshl_b32 s14, s{S_J}, 16")
        a(f"s_add_u32 s14, s14, {WS_WOT}")
        srd(a, SWO, P_WS, 65536, "s14")
        a(f"s_lshl_b32 s14, s{S_TG}, 16")
        a(f"s_add_u32 s14, s14, {WS_OF}")
        srd(a, SO, P_WS, 65536, "s14")
        srd(a, SB2, P_B2, 1024)
        srd(a, SOUT, P_OUT, 2097152)

    def setup_offsets():
        a(f"s_and_b32 s72, s{S_WAVE}, 1")
        a(f"s_lshr_b32 s73, s{S_WAVE}, 1")
        a(f"s_lshl_b32 s8, s{S_WAVE}, 11")
        a("s_lshl_b32 s10, s73, 14")
        a("s_lshl_b32 s11, s72, 10")
        a("s_add_u32 s11, s11, s10")
        a(f"s_lshl_b32 s12, s{S_TG}, 16")
        a(f"s_lshl_b32 s13, s{S_WAVE}, 13")
        a("s_add_u32 s12, s12, s13")
        a(f"s_lshl_b32 s13, s{S_J}, 7")
        a("s_add_u32 s12, s12, s13")

    def publish_h():
        a.wait_all()
        a("s_barrier")
        stamp(a, 17)
        a(f"s_cmp_lg_u32 s{S_WAVE}, 0")
        a("s_cbranch_scc1 L_noflag2")
        hist = list(a.hist)
        a(f"s_lshl_b32 s14, s{S_TG}, 3")
        a(f"s_add_u32 s14, s14, s{S_J}")
        a("s_lshl_b32 s14, s14, 7")
        a(f"s_add_u32 s14, s14, {WS_FL2}")
        flag_store(a, "s14", 101)
        a.label("L_noflag2")
        a.hist = hist

    def poll2_issue():
        a(f"s_mov_b32 s85, {WS_FL2}")
        a(f"buffer_load_dword v102, v248, {sr(SWS, 4)}, s85 offen sc1")

    def check_h():
        poll_check(a, 102, 1)
        a("s_cbranch_scc0 L_spin2")
        a.label("L_spin2_ret")
        stamp(a, 16)

    ND = OPT.get("nd", 4)

    def buf_of(i):
        return 48 + 16 * (i - 9) if (i >= 9 and ND > 2) else BUF + 16 * (i & 1)

    def mlp2_load(i, k):
        b = buf_of(i) + 4 * k
        srd_, o = ((SW2, 0), (SH, 0), (SH, 1024), (SW2, 1024))[k]
        a(f"buffer_load_dwordx4 {vr(b, 4)}, v5, {sr(srd_, 4)}, s8 offen offset:{o} sc1")
        if k == 3:
            a("s_add_u32 s8, s8, 16384")

    def mlp2_mm(i, u):
        b = buf_of(i)
        nt, tt = u >> 1, u & 1
        acc = vr(M + 16 * u, 16)
        a(f"v_mfma_f32_32x32x16_bf16 {acc}, {vr(b + 12 * nt, 4)}, {vr(b + 4 + 4 * tt, 4)}, {'0' if i == 0 else acc}")

    wo_tok = []

    def wo_load(n):
        if n == 0:
            a(f"s_lshl_b32 s10, s{S_WAVE}, 13")
        if n & 3 == 0:
            a(f"s_add_u32 m0, s10, {L_WO}")
        wo_tok.append(a(f"buffer_load_dwordx4 v5, {sr(SWO, 4)}, s10 offen offset:{(n & 3) * 1024} sc1 lds"))
        if n == 3:
            a("s_add_u32 s10, s10, 4096")

    def o_addr():
        a.comment("head index and destination of this wave's O fragment")
        a(f"s_lshl_b32 s14, s{S_J}, 2")
        a("s_and_b32 s15, s6, 2")
        a("s_add_u32 s14, s14, s15")
        a("s_add_u32 s14, s14, s7")
        a("s_and_b32 s15, s6, 1")
        a("s_lshl_b32 s90, s14, 11")
        a("s_lshl_b32 s91, s15, 10")
        a("s_add_u32 s90, s90, s91")
        a(f"s_lshl_b32 s91, s{S_TG}, 13")
        a(f"s_add_u32 s91, s91, {WS_FL3}")

    def tail_loads():
        a("v_and_b32 v101, 0x70, v251")
        a(f"buffer_load_dwordx4 {vr(XR, 4)}, v251, {sr(SX, 4)}, s12 offen")
        a(f"buffer_load_dwordx4 {vr(B2R, 4)}, v101, {sr(SB2, 4)}, s13 offen")

    TP = OPT.get("tp", 5)
    T0 = OPT.get("t0", 14)
    LAG = OPT.get("lag", 6)
    at(TP, 0, publish_h)
    for n in range(8):
        at(TP + n // 2, (1, 3)[n & 1], lambda n=n: kv_dma2(n))
    at(TP + 4, 2, setup_mlp2)
    at(TP + 5, 2, setup_offsets)
    for s_ in range(4):
        at(s_ // 2, (1, 3)[s_ & 1], lambda s_=s_: kv_dma1(s_))
    at(T0 - 3, 2, poll2_issue)
    at(T0 - 1, 3, check_h)
    at(28, 0, lambda: a("s_barrier"))
    slot = OPT.get("sl", 100) / 100.0
    for i in range(11):
        for k in range(4):
            tau = T0 + (4 * i + k) * slot
            at(int(tau), 1 if tau % 1 < 0.5 else 3, lambda i=i, k=k: mlp2_load(i, k))
            if i < 11 - ND:
                tau = T0 + (4 * i + k + LAG) * slot
                if tau % 1 < 0.5:
                    at(int(tau), 2, lambda i=i, k=k: mlp2_mm(i, k))
                else:
                    at(int(tau) + 1, 0, lambda i=i, k=k: mlp2_mm(i, k))
    for tb in range(OPT.get("b0", 64), 64, OPT.get("bs", 8)):
        at(tb, 0, lambda: a("s_barrier"))
    if OPT.get("yp", 0):
        def raise_young():
            a(f"s_cmp_lt_u32 s{S_WAVE}, 4")
            a("s_cbranch_scc1 L_noyp")
            a("s_setprio 1")
            a.label("L_noyp")
        at(OPT["yp"], 0, raise_young)
    at(48, 0, lambda: stamp(a, 18))
    WT = OPT.get("wt", 35)
    at(34, 0, lambda: a("s_barrier"))
    for n in range(8):
        at(WT + 3 * n, 3, lambda n=n: wo_load(n))
    at(TP + 6, 2, o_addr)
    at(62, 1, tail_loads)

    a(f"ds_read_b128 {vr(Q0, 4)}, v{AQ}")
    rk(0)
    a(f"ds_read_b128 {vr(Q0 + 4, 4)}, v{AQ} offset:1024")
    rv(0, 0)
    rv(0, 1)
    mf(0)
    for t in range(NT):
        it = t >> 1
        for fn in hooks[(t, 0)]:
            fn()
        ex(t, 0, 2)
        if t > 0:
            smf(t - 1, 1)
            if t % 2 == 0:
                rv(it, 1)
        ex(t, 2, 5)
        if t + 1 < NT:
            mf(t + 1)
            if t % 2 == 0 and it + 1 < 32:
                rk(it + 1)
        ex(t, 5, 7)
        for fn in hooks[(t, 1)]:
            fn()
        ex(t, 7, 10)
        smf(t, 0)
        if t % 2 == 1 and it + 1 < 32:
            rv(it + 1, 0)
        ex(t, 10, 13)
        for fn in hooks[(t, 2)]:
            fn()
        ex(t, 13, 15)
        for fn in hooks[(t, 3)]:
            fn()
        ex(t, 15, 16)
    smf(NT - 1, 1)
    if PN:
        a("s_setprio 0")
    stamp(a)

    a.wait_tok(wo_tok[-1])
    a(f"s_mul_i32 s14, s{S_WAVE}, 2304")
    a(f"s_add_u32 s14, s14, {L_XCH}")
    a(f"s_xor_b32 s15, s{S_WAVE}, 4")
    a("s_mul_i32 s15, s15, 2304")
    a(f"s_add_u32 s15, s15, {L_XCH}")
    a("v_add_u32 v1, s14, v5")
    a("v_lshl_add_u32 v2, v0, 2, s14")
    a("v_add_u32 v3, s15, v5")
    a("v_lshl_add_u32 v4, v0, 2, s15")
    a("s_cmp_eq_u32 s7, 0")
    a.settle()
    a("s_cbranch_scc1 L_lo")
    snap = a.snapshot()
    for kh in (1, 0):
        if kh == 0:
            a.label("L_lo")
            a.restore(snap)
        give, keep = O0 + 16 * (1 - kh), O0 + 16 * kh
        a(f"ds_write_b128 v1, {vr(give, 4)}")
        a(f"ds_write_b128 v1, {vr(give + 4, 4)} offset:1024")
        a(f"ds_write_b32 v2, v{give + 8} offset:2048")
        for r in range(9):
            a(f"v_mov_b32 v{S0 + r}, v{keep + r}")
        for r in range(4):
            a(f"v_mov_b32 v{S0 + 28 + r}, v{Q0 + 4 * kh + r}")
        a.wait_all(vm=False)
        a.settle()
        if kh == 1:
            a("s_branch L_join")
    a.label("L_join")
    a("s_barrier")
    stamp(a)
    a(f"ds_read_b128 {vr(O0, 4)}, v3")
    a(f"ds_read_b128 {vr(O0 + 4, 4)}, v3 offset:1024")
    a(f"ds_read_b32 v{O0 + 8}, v4 offset:2048")
    for r in range(9):
        a(f"v_add_f32 v{O0 + r}, v{O0 + r}, v{S0 + r}")
    a(f"v_mov_b32 v101, v{O0 + 8}")
    a(f"v_permlane32_swap_b32 v{O0 + 8}, v101")
    a(f"v_max3_f32 v102, |v{O0}|, |v{O0 + 1}|, |v{O0 + 2}|")
    a(f"v_max3_f32 v102, |v{O0 + 3}|, |v{O0 + 4}|, v102")
    a(f"v_max3_f32 v102, |v{O0 + 5}|, |v{O0 + 6}|, v102")
    a(f"v_max3_f32 v102, |v{O0 + 7}|, v{O0 + 8}, v102")
    a(f"v_cmp_gt_f32 vcc, {f32(2.0 ** 100)}, v102")
    a(f"s_mov_b32 s74, {f32(2.0 ** -60)}")
    a(f"v_cmp_lt_f32 s[14:15], s74, v{O0 + 8}")
    a("s_and_b64 vcc, vcc, s[14:15]")
    a("s_cmp_eq_u64 vcc, exec")
    a.settle()
    a("s_cbranch_scc0 L_slow")
    a.label("L_fin")
    a(f"v_rcp_f32 v101, v{O0 + 8}")
    for r in range(8):
        a(f"v_mul_f32 v{O0 + r}, v{O0 + r}, v101")
    for r in range(4):
        a(f"v_cvt_pk_bf16_f32 v{S0 + r}, v{O0 + 2 * r}, v{O0 + 2 * r + 1}")
    t_o = a(f"buffer_store_dwordx4 {vr(S0, 4)}, v5, {sr(SO, 4)}, s90 offen sc1")
    R = 168
    a("v_and_b32 v1, 7, v0")
    a("v_lshrrev_b32 v2, 5, v0")
    a("v_xor_b32 v1, v1, v2")
    a("v_lshlrev_b32 v1, 4, v1")
    a("v_and_b32 v2, 31, v0")
    a("v_lshl_add_u32 v1, v2, 7, v1")
    a(f"s_lshl_b32 s15, s{S_WAVE}, 13")
    a("v_add_u32 v1, s15, v1")
    for x in range(1, 4):
        a(f"v_xor_b32 v{1 + x}, {x << 5}, v1")
    for i in range(11 - ND, 11):
        for u in range(4):
            mlp2_mm(i, u)

    def m_out():
        for u in range(4):
            nt, tt = u >> 1, u & 1
            for g in range(2):
                d = 48 + 8 * u + 4 * g
                for r in range(4):
                    s0 = M + 16 * u + 8 * g + 2 * r
                    a(f"v_cvt_pk_bf16_f32 v{d + r}, v{s0}, v{s0 + 1}")
                a(f"ds_write_b128 v{1 + 2 * nt + g}, {vr(d, 4)} offset:{tt * 4096}")

    if ND == 0:
        m_out()
    a("s_lshl_b32 s15, s72, 13")
    a("v_add_u32 v14, s15, v249")
    a("v_xor_b32 v6, 16, v250")
    a("v_lshrrev_b32 v7, 3, v0")
    a("v_and_b32 v8, 7, v0")
    a("v_xor_b32 v8, v8, v7")
    a("v_lshlrev_b32 v8, 4, v8")
    a("v_lshl_add_u32 v7, v7, 7, v8")
    a(f"s_lshl_b32 s15, s{S_WAVE}, 10")
    a("v_add_u32 v7, s15, v7")
    a("s_lshl_b32 s15, s73, 14")
    a(f"s_add_u32 s15, s15, {L_WO}")
    a("v_add_u32 v8, s15, v5")
    G, XF, TG = 80, 88, 48
    SAD = (14, 1, 2, 3, 4, 9, 10, 11)
    for r in range(4):
        a(f"v_lshlrev_b32 v{G + 2 * r}, 16, v{B2R + r}")
        a(f"v_and_b32 v{G + 2 * r + 1}, 0xffff0000, v{B2R + r}")
    a.wait_tok(t_o)
    a.wait_all(vm=False)
    a("s_barrier")
    a(f"s_cmp_lg_u32 s{S_WAVE}, 7")
    a("s_cbranch_scc1 L_noflag3")
    hist = list(a.hist)
    a(f"v_mov_b32 v101, s{S_TAG}")
    a("s_mov_b64 exec, 0xff")
    a(f"buffer_store_dword v101, v253, {sr(SWS, 4)}, s91 offen sc1")
    a("s_mov_b64 exec, -1")
    a.label("L_noflag3")
    a.hist = hist
    if ND:
        m_out()
        a.wait_all(vm=False)
        a("s_barrier")
    for kq in range(8):
        a(f"ds_read_b128 {vr(R + 4 * kq, 4)}, v7 offset:{kq * 8192}")
    for n in range(16):
        a(f"ds_read_b128 {vr(wo_reg(n), 4)}, v8 offset:{n * 1024}")
    ops = []
    for kq in range(8):
        for r in range(4):
            ops.append(f"v_lshlrev_b32 v{56 + 2 * r}, 16, v{R + 4 * kq + r}")
            ops.append(f"v_and_b32 v{57 + 2 * r}, 0xffff0000, v{R + 4 * kq + r}")
        for r in range(8):
            ops.append(f"v_add_f32 v{G + r}, v{G + r}, v{56 + r}")
    for fmt in ("v_mul_f32 v{t}, " + f32(-LOG2E) + ", v{g}", "v_exp_f32 v{t}, v{t}", "v_add_f32 v{t}, 1.0, v{t}",
                "v_rcp_f32 v{t}, v{t}", "v_mul_f32 v{g}, v{g}, v{t}"):
        for r in range(8):
            ops.append(fmt.format(t=TG + r, g=G + r))
    for r in range(4):
        ops.append(f"v_lshlrev_b32 v{XF + 2 * r}, 16, v{XR + r}")
        ops.append(f"v_and_b32 v{XF + 2 * r + 1}, 0xffff0000, v{XR + r}")
    SB = OPT.get("sb", 1)
    if SB:
        ops.append(f"s_lshr_b32 s15, s{S_WAVE}, 1")
        ops.append(f"s_sub_u32 s15, s15, s{S_WAVE}")
        ops.append("s_lshl_b32 s15, s15, 13")
        ops.append("s_lshl_b32 s14, s72, 12")
        ops.append("s_add_u32 s15, s15, s14")
        for x in range(4):
            ops.append(f"v_add_u32 v{1 + x}, s15, v{1 + x}")
    else:
        for x in range(1, 8):
            ops.append(f"v_xor_b32 v{SAD[x]}, {((x >> 2) << 7) | (((x >> 1) & 1) << 6) | ((x & 1) << 4)}, v14")

    def some(n):
        for _ in range(n):
            if ops:
                a(ops.pop(0))

    OF, SA = 212, 16

    def o_loads():
        for i in range(8):
            a(f"s_add_u32 s14, s11, {(i >> 1) * 4096}")
            a(f"buffer_load_dwordx4 {vr(OF + 4 * i, 4)}, v5, {sr(SO, 4)}, s14 offen offset:{(i & 1) * 2048} sc1")

    a(f"s_cmp_lg_u32 s{S_WAVE}, 7")
    a.settle()
    a("s_cbranch_scc1 L_nopoll3")
    snap = a.snapshot()
    n0 = _stamp["n"]
    stamp(a)
    spin(a, "L_poll3", lambda: a(f"buffer_load_dword v103, v252, {sr(SWS, 4)}, s91 offen sc1"), 103, n=1)
    a.wait_all(vm=False)
    a("s_barrier")
    stamp(a)
    o_loads()
    keep = list(ops)
    some(len(ops))
    a.settle()
    a("s_branch L_womm")
    a.label("L_nopoll3")
    a.restore(snap)
    ops.extend(keep)
    some(len(ops))
    a.wait_all(vm=False)
    _stamp["n"] = n0
    stamp(a)
    a("s_barrier")
    stamp(a)
    o_loads()
    a.settle()
    a.label("L_womm")

    def wo_mm(i, u):
        acc = vr(SA + 16 * u, 16)
        a(f"v_mfma_f32_32x32x16_bf16 {acc}, {vr(wo_reg(2 * i + u), 4)}, {vr(OF + 4 * i, 4)}, {'0' if i == 0 else acc}")

    def s_write(u, q):
        ad = f"v{SAD[4 * u + q]}"
        a(f"ds_write_b128 {ad}, {vr(SA + 16 * u + 4 * q, 4)}")

    for i in range(8):
        for u in range(2):
            wo_mm(i, u)
            some(5)
    some(len(ops))
    if SB:
        for u in range(2):
            for g in range(2):
                d = 48 + 8 * u + 4 * g
                for r in range(4):
                    s0 = SA + 16 * u + 8 * g + 2 * r
                    a(f"v_cvt_pk_bf16_f32 v{d + r}, v{s0}, v{s0 + 1}")
                a(f"ds_write_b128 v{1 + 2 * u + g}, {vr(d, 4)}")
    else:
        for u in range(2):
            for q in range(4):
                s_write(u, q)
    a.wait_all(vm=False)
    stamp(a)
    a("s_barrier")
    if SB:
        for kq in range(4):
            a(f"ds_read_b128 {vr(104 + 4 * kq, 4)}, v7 offset:{kq * 8192}")
        for kq in range(4):
            for r in range(4):
                a(f"v_lshlrev_b32 v{R + 8 * kq + 2 * r}, 16, v{104 + 4 * kq + r}")
                a(f"v_and_b32 v{R + 8 * kq + 2 * r + 1}, 0xffff0000, v{104 + 4 * kq + r}")
    for kq in range(4):
        for i in range(0 if SB else 2):
            a(f"ds_read_b128 {vr(R + 8 * kq + 4 * i, 4)}, v{(250, 6)[i]} offset:{kq * 16384}")
    for kq in range(1, 4):
        for r in range(8):
            a(f"v_add_f32 v{R + r}, v{R + r}, v{R + 8 * kq + r}")
    for r in range(8):
        a(f"v_fmac_f32 v{XF + r}, v{R + r}, v{G + r}")
    for r in range(4):
        a(f"v_cvt_pk_bf16_f32 v{XR + r}, v{XF + 2 * r}, v{XF + 2 * r + 1}")
    a(f"buffer_store_dwordx4 {vr(XR, 4)}, v251, {sr(SOUT, 4)}, s12 offen {('', 'sc1', 'nt', 'sc0 sc1')[OPT.get('om', 0)]}")
    a(f"s_or_b32 s14, s2, s{S_WAVE}")
    a("s_cmp_lg_u32 s14, 0")
    a("s_cbranch_scc1 L_notag")
    a(f"s_mov_b32 s14, {WS_E}")
    flag_store(a, "s14", 101)
    a.label("L_notag")
    if STAMPS:
        a.wait_all()
        stamp_flush(a)
    a("s_endpgm")

    a.label("L_spin2")
    a.reset_state()
    spin(a, "L_poll2", poll2_issue, 102, 1)
    a("s_branch L_spin2_ret")

    a.label("L_slow")
    a.reset_state()
    QS, C0 = S0 + 28, O0 + 16
    a("v_and_b32 v6, 15, v0")
    a("v_lshrrev_b32 v7, 5, v0")
    a("v_lshlrev_b32 v6, 4, v6")
    a("v_lshl_add_u32 v6, v7, 8, v6")
    a("v_mov_b32 v101, 0xff800000")
    a("s_mov_b32 s74, 0")
    a.settle()
    a.label("L_p1")
    a(f"s_add_u32 s75, s74, {WS_KF}")
    a(f"buffer_load_dwordx4 {vr(KR, 4)}, v5, {sr(SWS, 4)}, s75 offen sc1")
    a(f"v_mfma_f32_32x32x16_bf16 {vr(S0, 16)}, {vr(KR, 4)}, {vr(QS, 4)}, 0")
    for r in range(8):
        a(f"v_max3_f32 v101, v{S0 + 2 * r}, v{S0 + 2 * r + 1}, v101")
    a("s_add_u32 s74, s74, 1024")
    a("s_cmp_lt_u32 s74, 65536")
    a.settle()
    a("s_cbranch_scc1 L_p1")
    a("v_mov_b32 v102, v101")
    a("v_permlane32_swap_b32 v101, v102")
    a("v_max_f32 v101, v101, v102")
    for r in range(16):
        a(f"v_sub_f32 v{C0 + r}, 0, v101")
        a(f"v_mov_b32 v{O0 + r}, 0")
    for r in range(8):
        a(f"v_mov_b32 v{V0R + r}, 0x3f803f80")
    a("s_mov_b32 s74, 0")
    a("s_mov_b32 s14, 0x0000ffff")
    a("s_mov_b32 s15, 0x0000ffff")
    a.settle()
    a.label("L_p2")
    a(f"s_add_u32 s75, s74, {WS_KF}")
    a(f"buffer_load_dwordx4 {vr(KR, 4)}, v5, {sr(SWS, 4)}, s75 offen sc1")
    a(f"s_add_u32 s75, s74, {WS_VF}")
    a("s_mov_b64 exec, s[14:15]")
    a(f"buffer_load_dwordx4 {vr(V0R, 4)}, v6, {sr(SWS, 4)}, s75 offen sc1")
    a(f"buffer_load_dwordx4 {vr(V1R, 4)}, v6, {sr(SWS, 4)}, s75 offen offset:512 sc1")
    a("s_mov_b64 exec, -1")
    a(f"v_mfma_f32_32x32x16_bf16 {vr(S0, 16)}, {vr(KR, 4)}, {vr(QS, 4)}, {vr(C0, 16)}")
    ex(0, 0, 16, False)
    smf(0, 0)
    smf(0, 1)
    a("s_add_u32 s74, s74, 1024")
    a("s_cmp_lt_u32 s74, 65536")
    a.wait_all()
    a.settle()
    a("s_cbranch_scc1 L_p2")
    a("s_branch L_fin")


def descriptor(name):
    return f""".section .rodata,"a"
.p2align 6
.amdhsa_kernel {name}
  .amdhsa_next_free_vgpr 256
  .amdhsa_next_free_sgpr 96
  .amdhsa_accum_offset 256
  .amdhsa_group_segment_fixed_size 0
  .amdhsa_kernarg_size 104
  .amdhsa_user_sgpr_count 2
  .amdhsa_user_sgpr_kernarg_segment_ptr 1
  .amdhsa_system_sgpr_workgroup_id_x 1
  .amdhsa_float_denorm_mode_32 3
.end_amdhsa_kernel
"""


def main(out):
    a = Asm()
    hdr = open("cdna_kernels/" + NAME + ".s.ref").read().split("; Override launch")[0]
    a.raw(hdr.rstrip())
    a.raw("; @launch grid=(256,1,1) block=(512,1,1) lds=163840")
    a.raw('.amdgcn_target "amdgcn-amd-amdhsa--gfx950"\n.text')
    gen(a)
    a.raw(descriptor(KN))
    open(out, "w").write(a.text())
    print("written", out, "nop states", a.nops, "stamps", _stamp["n"])


if __name__ == "__main__":
    STAMPS = len(sys.argv) > 2 and sys.argv[2] == "1"
    for kv in sys.argv[3:]:
        k_, v_ = kv.split("=")
        OPT[k_] = int(v_)
    main(sys.argv[1])
```

```python
import struct
import sys
from asmgen import Asm, vr, sr

NAME = "recurrent_scan__grouped_kv_mqa__mixer_channel_mlp__prompt"
KN = NAME + "_kernel"

WS_KF = 0x000000
WS_VF = 0x010000
WS_E = 0x020000
WS_FL1 = 0x021000
WS_FL2 = 0x028000
WS_FL3 = 0x080000
WS_HF = 0x400000
HF_STRIDE = 0x2C000
WS_W2T = 0xA00000
WS_WOT = 0xC00000
WS_OF = 0xD00000
WS_ST = 0xF00000
WS_SIZE = 0x1000000

P_X, P_WQ, P_WK, P_WV, P_WO, P_BX, P_W1, P_B1, P_W2, P_B2, P_OUT, P_DBG, P_WS = range(16, 42, 2)
S_WAVE, S_TG, S_J, S_TAG, S_ROLE, S_ROT, S_KROT, S_KIND = 3, 4, 5, 84, 42, 43, 75, 88
S_OOFF = 89
SX, SW, SKV, SWS, ST, SB1, SH = 44, 48, 52, 56, 60, 64, 68
SW2, SWO, SO, SOUT, SB2 = 52, 60, 64, 76, 80

KT = 2064
L_XC, L_RING, L_QF, L_STATS, L_CS = 0, 32 * KT, 147968, 156160, 157184
L_CNT = 158208
L_XCH = 131584
L_MP = L_RING
SPIN_LIMIT = 200000

LOG2E = 1.4426950408889634
STAMPS = False
LIGHT = False
OPT = dict(tp=5, pre=2, rot=0, map=1, pf=2, late=2, tl=2, tpf=0, pn=12, om=1, lock=2, lag=5, g1=96, sb=0, nd=0, swap=1, pq=1, t0=22, sl=84, xr=1, s3=1)
_stamp = {"n": 0}


def f32(x):
    return "0x%08x" % struct.unpack("<I", struct.pack("<f", x))[0]


def srd(a, dst, ptr, size, off=None):
    if off is None:
        a(f"s_mov_b32 s{dst}, s{ptr}")
        a(f"s_mov_b32 s{dst + 1}, s{ptr + 1}")
    else:
        a(f"s_add_u32 s{dst}, s{ptr}, {off}")
        a(f"s_addc_u32 s{dst + 1}, s{ptr + 1}, 0")
    a(f"s_mov_b32 s{dst + 2}, {size}")
    a(f"s_mov_b32 s{dst + 3}, 0x00020000")


def csel(a, dst, if_true, if_false):
    a(f"s_mov_b32 s{dst}, {if_false}")
    a(f"s_cselect_b32 s{dst}, {if_true}, s{dst}")


def stamp(a, n=None):
    if not STAMPS:
        return
    if n is None:
        n = _stamp["n"]
        _stamp["n"] += 1
    if LIGHT and n not in (0, 12):
        return
    a("s_memrealtime s[92:93]")
    a("s_memtime s[94:95]")
    a.wait_all(vm=False)
    a(f"v_writelane_b32 v255, s92, {2 * n}")
    a(f"v_writelane_b32 v255, s94, {2 * n + 1}")


def stamp_flush(a):
    if not STAMPS:
        return
    stamp(a)
    a("s_lshl_b32 s92, s2, 3")
    a(f"s_add_u32 s92, s92, s{S_WAVE}")
    a("s_lshl_b32 s92, s92, 8")
    a(f"s_add_u32 s92, s92, {WS_ST}")
    a("v_lshlrev_b32 v254, 2, v0")
    a(f"buffer_store_dword v255, v254, {sr(SWS, 4)}, s92 offen")


def poll_issue(a, base, vt):
    t = None
    a(f"s_mov_b32 s85, {base}")
    for i in range(4):
        t = a(f"buffer_load_dword v{vt + i}, v5, {sr(SWS, 4)}, s85 offen offset:{1024 * i} sc1")
    return t


def poll_check(a, vt, n=4):
    for i in range(n):
        a(f"v_xor_b32 v{vt + i}, s{S_TAG}, v{vt + i}")
    if n == 2:
        a(f"v_or_b32 v{vt}, v{vt}, v{vt + 1}")
    if n == 4:
        a(f"v_or3_b32 v{vt}, v{vt}, v{vt + 1}, v{vt + 2}")
        a(f"v_or_b32 v{vt}, v{vt}, v{vt + 3}")
    a(f"v_cmp_eq_u32 vcc, 0, v{vt}")
    a("s_cmp_eq_u64 vcc, exec")


def spin(a, label, issue, vt, n=4):
    a("s_mov_b32 s86, 0")
    a.settle()
    a.label(label)
    issue()
    a("s_add_u32 s86, s86, 1")
    poll_check(a, vt, n)
    a.settle()
    a(f"s_cbranch_scc1 {label}_ok")
    a(f"s_sleep {OPT.get('slp', 2)}")
    a(f"s_cmp_lt_u32 s86, {SPIN_LIMIT}")
    a(f"s_cbranch_scc1 {label}")
    a.label(f"{label}_ok")


def flag_store(a, soff, vtmp):
    a(f"v_mov_b32 v{vtmp}, s{S_TAG}")
    a("s_mov_b64 exec, 1")
    a(f"buffer_store_dword v{vtmp}, v5, {sr(SWS, 4)}, {soff} offen sc1")
    a("s_mov_b64 exec, -1")


def gen(a):
    name = KN
    a.raw(f".globl {name}\n.p2align 8\n.type {name},@function\n{name}:")
    a("s_cmp_ge_u32 s2, 256")
    a("s_cbranch_scc1 L_end")
    if STAMPS:
        a("v_mov_b32 v255, 0")
    stamp(a)
    a("s_load_dwordx16 s[16:31], s[0:1], 0")
    a("s_load_dwordx8 s[32:39], s[0:1], 64")
    a("s_load_dwordx2 s[40:41], s[0:1], 96")
    a("v_lshrrev_b32 v1, 6, v0")
    a("v_and_b32 v0, 63, v0")
    a(f"v_readfirstlane_b32 s{S_WAVE}, v1")
    if OPT.get("map", 0) == 0:
        a(f"s_and_b32 s{S_TG}, s2, 7")
        a(f"s_lshl_b32 s{S_TG}, s{S_TG}, 2")
        a("s_bfe_u32 s6, s2, 0x20003")
        a(f"s_add_u32 s{S_TG}, s{S_TG}, s6")
        a(f"s_lshr_b32 s{S_J}, s2, 5")
        a("s_lshl_b32 s6, s6, 1")
        a(f"s_add_u32 s{S_ROT}, s6, s{S_J}")
    else:
        a(f"s_bfe_u32 s{S_TG}, s2, 0x20001")
        a(f"s_lshl_b32 s{S_TG}, s{S_TG}, 3")
        a("s_bfe_u32 s6, s2, 0x30003")
        a(f"s_add_u32 s{S_TG}, s{S_TG}, s6")
        a(f"s_and_b32 s{S_J}, s2, 1")
        a(f"s_lshl_b32 s{S_J}, s{S_J}, 2")
        a("s_lshr_b32 s7, s2, 6")
        a(f"s_add_u32 s{S_J}, s{S_J}, s7")
        a("s_lshl_b32 s7, s7, 1")
        a(f"s_add_u32 s{S_ROT}, s6, s7")
        if OPT.get("swap", 0):
            a(f"s_cmp_eq_u32 s{S_J}, 2")
            a(f"s_cselect_b32 s7, 7, s{S_J}")
            a(f"s_cmp_eq_u32 s{S_J}, 7")
            a(f"s_cselect_b32 s{S_J}, 2, s7")
    a(f"s_and_b32 s{S_ROT}, s{S_ROT}, {7 if OPT.get('rot', 1) else 0}")
    a(f"s_lshr_b32 s{S_KROT}, s2, 3")
    a(f"s_and_b32 s{S_KROT}, s{S_KROT}, {31 if OPT.get('krot', 1) else 0}")
    a(f"s_cmp_eq_u32 s{S_J}, 7")
    a("s_cselect_b32 s6, 4, 0")
    a(f"s_xor_b32 s{S_ROLE}, s{S_WAVE}, s6")
    front(a)
    attention(a)
    a.label("L_end")
    a("s_endpgm")


def attn_prep(a):
    a(f"s_lshr_b32 s8, s{S_WAVE}, 2")
    a("s_mul_i32 s8, s8, 10240")
    a(f"s_add_u32 s8, s8, {L_RING}")
    a("v_add_u32 v244, s8, v5")
    a("v_and_b32 v52, 15, v0")
    a("v_lshlrev_b32 v52, 4, v52")
    a("v_lshl_add_u32 v52, v14, 8, v52")
    a("v_add_u32 v245, 1024, v52")
    a("v_add_u32 v246, 1536, v52")
    a("v_mov_b32 v53, 2048")
    a("v_cmp_eq_u32 vcc, 16, v13")
    a("v_cndmask_b32 v245, v245, v53, vcc")
    a("v_cndmask_b32 v246, v246, v53, vcc")
    a("v_mov_b32 v53, 0x40000")
    a("v_cmp_lt_u32 vcc, 16, v13")
    a("v_cndmask_b32 v245, v245, v53, vcc")
    a("v_cndmask_b32 v246, v246, v53, vcc")
    a("v_add_u32 v245, s8, v245")
    a("v_add_u32 v246, s8, v246")
    a(f"s_and_b32 s8, s{S_WAVE}, 3")
    a("s_lshl_b32 s8, s8, 11")
    a(f"s_add_u32 s8, s8, {L_QF}")
    a("v_add_u32 v247, s8, v5")
    for r in range(32):
        a(f"v_mov_b32 v{212 + r}, 0")
    a(f"v_lshl_add_u32 v248, v13, 3, s{S_J}")
    a(f"s_lshl_b32 s8, s{S_TG}, 3")
    a("v_add_u32 v52, s8, v3")
    a("v_cmp_eq_u32 vcc, 0, v14")
    a("v_cndmask_b32 v248, v52, v248, vcc")
    a("v_lshlrev_b32 v248, 7, v248")
    a(f"s_lshl_b32 s8, s{S_J}, 7")
    a("v_lshl_add_u32 v253, v3, 10, s8")
    a(f"s_lshl_b32 s8, s{S_J}, 10")
    a("v_lshl_add_u32 v252, v3, 7, s8")
    a(f"s_lshr_b32 s8, s{S_WAVE}, 1")
    a("s_lshl_b32 s8, s8, 14")
    a("v_and_b32 v52, 15, v0")
    a("v_lshlrev_b32 v53, 1, v14")
    a("v_xor_b32 v52, v52, v53")
    a("v_lshlrev_b32 v52, 4, v52")
    a("v_lshl_add_u32 v52, v13, 8, v52")
    a("v_add_u32 v249, s8, v52")
    a(f"s_lshl_b32 s8, s{S_WAVE}, 3")
    a("v_add_u32 v52, s8, v2")
    a("v_and_b32 v53, 15, v52")
    a("v_lshlrev_b32 v250, 1, v3")
    a("v_xor_b32 v53, v53, v250")
    a("v_lshlrev_b32 v53, 4, v53")
    a("v_lshl_add_u32 v250, v52, 8, v53")
    a("v_lshlrev_b32 v251, 10, v2")
    a("v_lshl_add_u32 v251, v3, 4, v251")


def front(a):
    ACC, X = 64, 16
    RS = 10
    PRE = OPT.get('pre', 4)
    a("v_lshrrev_b32 v2, 3, v0")
    a("v_and_b32 v3, 7, v0")
    a(f"s_and_b32 s7, s{S_WAVE}, 1")
    a("s_lshl_b32 s7, s7, 2")
    a("v_lshrrev_b32 v4, 4, v0")
    a("v_or_b32 v4, s7, v4")
    a("v_xor_b32 v4, v4, v3")
    a("v_lshlrev_b32 v4, 4, v4")
    a("v_lshl_add_u32 v4, v2, 10, v4")
    a(f"s_lshl_b32 s6, s{S_TG}, 16")
    a(f"s_lshl_b32 s7, s{S_WAVE}, 13")
    a("s_add_u32 s6, s6, s7")
    a("v_lshlrev_b32 v5, 4, v0")
    a("v_lshrrev_b32 v6, 2, v0")
    a("v_and_b32 v7, 3, v0")
    def touch():
        lvl = OPT.get("tl", 1)
        a(f"s_cmp_lt_u32 s{S_WAVE}, {8 - lvl}")
        a("s_cbranch_scc1 L_nopf")
        st_ = a.snapshot()
        a(f"s_cmp_eq_u32 s{S_WAVE}, 5")
        a("s_cbranch_scc1 L_pfsmall")
        a(f"s_cmp_eq_u32 s{S_WAVE}, 7")
        a(f"s_cselect_b32 s76, s{P_WQ}, s{P_WO}")
        a(f"s_cselect_b32 s77, s{P_WQ + 1}, s{P_WO + 1}")
        a(f"s_cselect_b32 s78, s{P_W1}, s{P_W2}")
        a(f"s_cselect_b32 s79, s{P_W1 + 1}, s{P_W2 + 1}")
        a("s_sub_u32 s10, s2, 64")
        a("s_cmp_lt_u32 s2, 64")
        a(f"s_cselect_b32 s{ST}, s76, s78")
        a(f"s_cselect_b32 s{ST + 1}, s77, s79")
        csel(a, ST + 2, 524288, 1409024)
        a(f"s_mov_b32 s{ST + 3}, 0x00020000")
        a("s_cselect_b32 s8, s2, s10")
        a("s_lshl_b32 s8, s8, 13")
        a("v_lshlrev_b32 v209, 7, v0")
        a(f"buffer_load_dword v209, v209, {sr(ST, 4)}, s8 offen")
        a("s_branch L_nopf")
        a.label("L_pfsmall")
        a("v_lshlrev_b32 v209, 7, v0")
        srd(a, ST, P_B1, 2752)
        a(f"buffer_load_dword v210, v209, {sr(ST, 4)}, 0 offen")
        srd(a, ST, P_B2, 1024)
        a(f"buffer_load_dword v211, v209, {sr(ST, 4)}, 0 offen")
        if OPT.get("tlb", 0):
            srd(a, ST, P_OUT, 4)
            a(f"buffer_load_dword v212, v209, {sr(ST, 4)}, 0 offen")
            srd(a, ST, P_WS, WS_SIZE)
            a("v_lshlrev_b32 v209, 21, v0")
            a("v_add_u32 v209, 0x1fff80, v209")
            a(f"buffer_load_dword v213, v209, {sr(ST, 4)}, 0 offen")
        a.label("L_nopf")
        a.restore(st_)

    srd(a, SX, P_X, 2097152)
    if OPT.get("pf", 0) == 4:
        touch()
    t_x = []
    for i in range(8):
        if OPT.get("xr", 0):
            if OPT["xr"] == 1:
                a(f"s_add_u32 s8, s{S_J}, {i}")
            else:
                a("s_lshr_b32 s8, s2, 6")
                a("s_lshl_b32 s8, s8, 1")
                a(f"s_add_u32 s8, s8, {i}")
            a("s_and_b32 s8, s8, 7")
            a("s_lshl_b32 s10, s8, 10")
            a("s_add_u32 m0, s7, s10")
            a("s_lshl_b32 s8, s8, 7")
            a("s_add_u32 s8, s8, s6")
        else:
            a(f"s_add_u32 s8, s{S_ROT}, {i}")
            a("s_and_b32 s8, s8, 7")
            a("s_lshl_b32 s8, s8, 7")
            a("s_add_u32 s8, s8, s6")
            a(f"s_add_u32 m0, s7, {1024 * i}")
        t_x.append(a(f"buffer_load_dwordx4 v4, {sr(SX, 4)}, s8 offen lds"))
    srd(a, SWS, P_WS, WS_SIZE)
    a(f"s_mul_i32 s9, s{S_J}, 6")
    a(f"s_add_u32 s9, s9, s{S_ROLE}")
    a(f"s_cmp_gt_u32 s{S_J}, 3")
    a("s_cselect_b32 s10, 3, 2")
    a("s_sub_u32 s9, s9, s10")
    a("s_max_i32 s9, s9, 0")
    a("s_cmp_lt_u32 s9, 43")
    a(f"s_cselect_b32 s{S_KIND}, 0, 1")
    a(f"s_lshl_b32 s10, s{S_J}, 3")
    a(f"s_add_u32 s10, s10, s{S_ROLE}")
    a("s_cmp_eq_u32 s10, 31")
    a(f"s_cselect_b32 s{S_KIND}, 2, s{S_KIND}")
    a(f"s_lshl_b32 s10, s{S_J}, 1")
    a(f"s_add_u32 s10, s10, s{S_ROLE}")
    a(f"s_cmp_lt_u32 s{S_ROLE}, 2")
    a(f"s_cselect_b32 s{SW}, s{P_WQ}, s{P_W1}")
    a(f"s_cselect_b32 s{SW + 1}, s{P_WQ + 1}, s{P_W1 + 1}")
    csel(a, SW + 2, 524288, 1409024)
    a(f"s_mov_b32 s{SW + 3}, 0x00020000")
    csel(a, 11, 1024, 2752)
    a("s_cselect_b32 s15, s10, s9")
    a("s_lshl_b32 s15, s15, 6")
    a("s_lshl_b32 s13, s11, 4")
    a(f"s_lshl_b32 s12, s{S_ROT}, 2")
    a("s_mov_b32 s73, 31")
    a("v_mul_u32_u24 v8, s11, v6")
    a("v_lshl_add_u32 v8, v7, 4, v8")
    a(f"s_cmp_eq_u32 s{S_KIND}, 0")
    a("s_cbranch_scc1 L_stdw")
    a(f"s_cmp_lt_u32 s{S_ROLE}, 6")
    a(f"s_cselect_b32 s{SW}, s{P_WK}, s{P_WV}")
    a(f"s_cselect_b32 s{SW + 1}, s{P_WK + 1}, s{P_WV + 1}")
    a(f"s_cmp_eq_u32 s{S_KIND}, 2")
    a(f"s_cselect_b32 s{SW + 2}, 0, 16384")
    a(f"s_and_b32 s12, s{S_ROLE}, 1")
    a("s_lshl_b32 s12, s12, 2")
    a(f"s_add_u32 s12, s12, s{S_ROT}")
    a("s_lshl_b32 s12, s12, 1")
    a("s_mov_b32 s73, 15")
    a("s_mov_b32 s15, 0")
    a("s_mov_b32 s13, 1024")
    a("v_mov_b32 v8, v5")
    a.label("L_stdw")
    a(f"s_mul_i32 s14, s{S_WAVE}, {RS * 1024}")
    a(f"s_add_u32 s14, s14, {L_RING}")
    if OPT.get("pf", 0) in (2, 3):
        touch()
    a("s_barrier")
    dma = {}

    def issue_w(ks):
        a("s_and_b32 s74, s12, s73")
        a("s_mul_i32 s74, s74, s13")
        a("s_add_u32 s74, s74, s15")
        a(f"s_add_u32 m0, s14, {(ks % RS) * 1024}")
        a("s_add_u32 s12, s12, 1")
        dma[ks] = a(f"buffer_load_dwordx4 v8, {sr(SW, 4)}, s74 offen lds")

    for ks in range(PRE):
        issue_w(ks)
    if OPT.get("pq", 0):
        a.comment("slice 7 pulls the wq column block of slice 3 into the shared cache")
        a(f"s_lshl_b32 s8, s{S_J}, 3")
        a(f"s_add_u32 s8, s8, s{S_ROLE}")
        a("s_cmp_lg_u32 s8, 56")
        a("s_cbranch_scc1 L_nopq")
        st_ = a.snapshot()
        a(f"s_and_b32 s8, s{S_TG}, 7")
        a("s_lshl_b32 s8, s8, 16")
        a("s_add_u32 s8, s8, 384")
        a("v_lshlrev_b32 v211, 10, v0")
        a(f"buffer_load_dword v211, v211, {sr(SW, 4)}, s8 offen")
        a.label("L_nopq")
        a.restore(st_)
    a("v_lshlrev_b32 v9, 10, v6")
    a("v_lshl_add_u32 v9, v7, 4, v9")
    a(f"s_lshl_b32 s76, s{S_TG}, 3")
    a(f"s_add_u32 s76, s76, s{S_WAVE}")
    a("s_sub_u32 s77, s76, 172")
    a("s_cmp_lt_u32 s76, 172")
    a(f"s_cselect_b32 s{ST}, s{P_W2}, s{P_WO}")
    a(f"s_cselect_b32 s{ST + 1}, s{P_W2 + 1}, s{P_WO + 1}")
    csel(a, ST + 2, 1409024, 524288)
    a(f"s_mov_b32 s{ST + 3}, 0x00020000")
    a("s_cselect_b32 s77, s76, s77")
    csel(a, 78, HF_STRIDE, 65536)
    csel(a, 79, WS_W2T, WS_WOT)
    a("s_lshr_b32 s80, s77, 1")
    a("s_and_b32 s81, s77, 1")
    a("s_lshl_b32 s82, s80, 14")
    a("s_lshl_b32 s83, s81, 6")
    a("s_add_u32 s82, s82, s83")
    a(f"s_lshl_b32 s83, s{S_J}, 7")
    a("s_add_u32 s82, s82, s83")
    a(f"s_mul_i32 s83, s{S_J}, s78")
    a("s_add_u32 s79, s79, s83")
    a("s_lshl_b32 s83, s77, 10")
    a("s_add_u32 s79, s79, s83")
    a("s_cmp_lt_u32 s76, 236")
    a(f"s_cselect_b32 s79, s79, {WS_SIZE}")
    a("v_add_u32 v11, s7, v5")
    a(f"s_lshl_b32 s8, s{S_WAVE}, 5")
    a(f"s_add_u32 s8, s8, {L_STATS}")
    a("v_lshl_add_u32 v12, v2, 2, s8")
    a("v_and_b32 v13, 31, v0")
    a("v_lshrrev_b32 v14, 5, v0")
    a("v_bfe_u32 v52, v0, 1, 3")
    a("v_xor_b32 v52, v52, v14")
    a("v_bfe_u32 v53, v0, 3, 2")
    a("v_lshlrev_b32 v53, 13, v53")
    a("v_lshl_add_u32 v53, v3, 7, v53")
    for c in range(4):
        a(f"v_xor_b32 v15, {2 * c}, v52")
        a(f"v_lshl_add_u32 v{60 + c}, v15, 4, v53")
    a("v_bfe_u32 v52, v0, 2, 2")
    a("v_bfe_u32 v53, v0, 4, 1")
    a("v_lshlrev_b32 v15, 3, v7")
    a("v_lshl_add_u32 v15, v52, 6, v15")
    a("v_lshl_add_u32 v15, v53, 5, v15")
    a("v_add_u32 v15, s14, v15")
    a("v_and_b32 v7, 1, v0")
    a("v_bfe_u32 v6, v0, 1, 1")
    a("v_lshlrev_b32 v7, 4, v7")
    a("v_lshl_add_u32 v7, v6, 3, v7")
    a("v_lshl_add_u32 v7, v52, 6, v7")
    a("v_lshl_add_u32 v7, v53, 5, v7")
    a("v_add_u32 v7, s14, v7")
    a("v_lshl_add_u32 v7, v14, 8, v7")
    a("v_lshl_add_u32 v6, v14, 9, v15")
    a("v_lshlrev_b32 v57, 2, v13")
    a(f"v_add_u32 v57, {L_STATS}, v57")
    a(f"s_lshl_b32 s8, s{S_WAVE}, 7")
    a(f"s_add_u32 s8, s8, {L_CS}")
    a("v_and_b32 v52, 15, v0")
    a("v_lshrrev_b32 v53, 4, v0")
    a("v_lshlrev_b32 v54, 6, v52")
    a("v_lshl_add_u32 v54, v53, 4, v54")
    a("v_add_u32 v54, s8, v54")
    a("v_mov_b32 v15, 0x40000")
    a("v_cmp_gt_u32 vcc, 2, v52")
    a("v_cndmask_b32 v54, v15, v54, vcc")
    a("v_and_b32 v53, 1, v53")
    a("v_cmp_eq_u32 vcc, v53, v52")
    a("v_mov_b32 v15, 0x3f803f80")
    for r in range(4):
        a(f"v_cndmask_b32 v{200 + r}, 0, v15, vcc")
    a("v_lshl_add_u32 v55, v14, 4, s8")
    a("v_lshlrev_b32 v10, 7, v13")
    a(f"v_mov_b32 v15, {L_CNT}")
    a("v_mov_b32 v52, 0")
    a("ds_write2_b32 v15, v52, v52 offset0:0 offset1:1")
    a("s_mov_b32 s72, 0x3f803f80")
    srd(a, SB1, P_B1, 2752)
    a(f"s_mul_i32 s8, s{S_TG}, {HF_STRIDE}")
    a(f"s_add_u32 s8, s8, {WS_HF}")
    srd(a, SH, P_WS, 86 * 2048, "s8")
    attn_prep(a)
    for i in range(8):
        a.wait_tok(t_x[7 if OPT.get("xr", 0) else i])
        a(f"ds_read_b128 {vr(X + 4 * i, 4)}, v11 offset:{1024 * i}")
    stamp(a)
    if OPT.get("pf", 0) == 5:
        touch()
    nxt = PRE
    SH_ = OPT.get("shadow", 0)

    def stats_finish():
        for mod in ("quad_perm:[1,0,3,2]", "quad_perm:[2,3,0,1]", "row_half_mirror"):
            for r in (48, 49):
                a(f"v_add_f32_dpp v{r}, v{r}, v{r} {mod} row_mask:0xf bank_mask:0xf")
        a(f"v_mul_f32 v48, {f32(-1.0 / 512)}, v48")
        a(f"v_mul_f32 v49, {f32(1.0 / 512)}, v49")
        a("v_fma_f32 v49, -v48, v48, v49")
        a("v_max_f32 v49, 0, v49")
        a(f"v_add_f32 v50, {f32(1e-5)}, v49")
        a("v_rsq_f32 v50, v50")
        a("v_mul_f32 v51, v49, v50")
        a(f"v_fmaak_f32 v51, v51, v50, {f32(1e-5)}")
        a("v_rsq_f32 v51, v51")
        a("v_mul_f32 v51, v51, v50")
        a("ds_write2_b32 v12, v50, v51 offset0:0 offset1:64")
        a("ds_write_b32 v12, v48 offset:512")

    def stats_dot():
        for r in range(32):
            a(f"v_dot2_f32_bf16 v48, v{X + r}, s72, {'v48' if r else '0'}")
            a(f"v_dot2_f32_bf16 v49, v{X + r}, v{X + r}, {'v49' if r else '0'}")
        stats_finish()

    def stats_plain(r):
        a(f"v_lshlrev_b32 v52, 16, v{X + r}")
        a(f"v_and_b32 v53, 0xffff0000, v{X + r}")
        if r == 0:
            a("v_add_f32 v48, v52, v53")
            a("v_mul_f32 v49, v52, v52")
        else:
            a("v_add_f32 v48, v48, v52")
            a("v_fmac_f32 v49, v52, v52")
            a("v_add_f32 v48, v48, v53")
        a("v_fmac_f32 v49, v53, v53")

    if SH_:
        a(f"s_cmp_lg_u32 s{S_J}, 7")
        a("s_cbranch_scc1 L_nostat")
        st_ = a.snapshot()
        stats_dot()
        a.wait_all(vm=False)
        a.settle()
        a.label("L_nostat")
        a.restore(st_)
    else:
        stats_dot()
    NPRE = max(8, nxt) if OPT.get("late", 0) == 2 else RS
    for ks in range(nxt, NPRE):
        issue_w(ks)
    a(f"s_cmp_lg_u32 s{S_KIND}, 1")
    a("s_cbranch_scc1 L_nokvw")
    a.raw(f"    s_waitcnt vmcnt({NPRE - 8})")
    a.label("L_nokvw")
    a.wait_all(vm=False)
    stamp(a)
    a("s_barrier")
    stamp(a)

    for ks in range(NPRE, RS):
        issue_w(ks)
    a(f"v_mov_b32 v1, {WS_E}")
    a(f"buffer_load_dword v1, v1, {sr(SWS, 4)}, 0 offen sc1")

    def make_tag():
        a.comment("hand-off tag of this launch")
        a(f"v_readfirstlane_b32 s{S_TAG}, v1")
        a(f"s_mul_i32 s{S_TAG}, s{S_TAG}, 0x9e3779b1")
        a(f"s_add_u32 s{S_TAG}, s{S_TAG}, 0x7f4a7c15")

    def t_issue():
        a(f"s_add_u32 m0, s14, {(RS - 1) * 1024}")
        return a(f"buffer_load_dwordx4 v9, {sr(ST, 4)}, s82 offen lds")

    def t_task(t_tr):
        a.wait_tok(t_tr)
        a(f"ds_read_b64_tr_b16 v[128:129], v7 offset:{(RS - 1) * 1024}")
        a(f"ds_read_b64_tr_b16 v[130:131], v7 offset:{(RS - 1) * 1024 + 512}")
        a(f"buffer_store_dwordx4 v[128:131], v5, {sr(SWS, 4)}, s79 offen sc1")

    def poll1_issue():
        a(f"s_mov_b32 s85, {WS_FL1}")
        a(f"buffer_load_dword v132, v10, {sr(SWS, 4)}, s85 offen sc1")

    def colsum_finish():
        a("ds_write_b128 v54, v[204:207]")

    def colsum_spread(dst, n):
        for q in range(n):
            a(f"ds_read_b128 {vr(dst + 4 * q, 4)}, v55 offset:{32 * q}")

    def kv_dma():
        a(f"s_and_b32 s10, s{S_WAVE}, 1")
        a("s_lshl_b32 s10, s10, 15")
        a(f"s_lshr_b32 s12, s{S_WAVE}, 1")
        a("s_lshl_b32 s12, s12, 2")
        a(f"s_add_u32 s12, s12, s{S_KROT}")
        t = None
        for s in range(4):
            a(f"s_add_u32 s11, s12, {s}")
            a("s_and_b32 s11, s11, 31")
            a("s_lshl_b32 s11, s11, 10")
            a("s_add_u32 s11, s11, s10")
            a(f"s_add_u32 m0, s14, {s * KT}")
            a(f"s_add_u32 s13, s11, {WS_VF}")
            a(f"buffer_load_dwordx4 v5, {sr(SWS, 4)}, s11 offen sc1 lds")
            a(f"s_add_u32 m0, s14, {s * KT + 1024}")
            t = a(f"buffer_load_dwordx4 v5, {sr(SWS, 4)}, s13 offen sc1 lds")
        kv_ones()
        return t

    def kv_ones():
        for r in range(4):
            a(f"v_mov_b32 v{136 + r}, 0x3f803f80")
        a("v_and_b32 v140, 3, v0")
        a(f"v_mul_u32_u24 v140, {KT}, v140")
        a("v_add_u32 v140, s14, v140")
        a("ds_write_b128 v140, v[136:139] offset:2048")

    def gelu(packed):
        a("ds_read2_b32 v[58:59], v57 offset0:64 offset1:96")
        a("ds_read2_b32 v[160:161], v57 offset0:128 offset1:160")
        a("s_lshl_b32 s7, s9, 12")
        BI = 176
        for q in range(8):
            a(f"v_lshlrev_b32 v{BI + 2 * q}, 16, v{120 + q}")
            a(f"v_and_b32 v{BI + 2 * q + 1}, 0xffff0000, v{120 + q}")
        c0 = -2.0 * 0.7978845608028654 * LOG2E
        a(f"v_mov_b32 v168, {f32(c0 * 0.044715)}")
        if packed:
            a(f"v_mov_b32 v170, {f32(c0)}")
            a("v_mov_b32 v172, 1.0")
            a("v_mov_b32 v162, v59")
            a("v_mov_b32 v164, v161")
        for tt in range(2):
            for half in range(2):
                U = ACC + 16 * tt + 8 * half
                T = 192
                if (tt, half) == (1, 0):
                    t_task(t_tr)
                if packed:
                    rs, nm = ("v[58:59]", "v[160:161]") if tt == 0 else ("v[162:163]", "v[164:165]")
                    P = lambda b, r: vr(b + 2 * r, 2)
                    for r in range(4):
                        a(f"v_pk_fma_f32 {P(U, r)}, {P(144 + 8 * half, r)}, {nm}, {P(U, r)} op_sel_hi:[1,0,1]")
                    for r in range(4):
                        a(f"v_pk_fma_f32 {P(U, r)}, {P(U, r)}, {rs}, {P(BI + 8 * half, r)} op_sel_hi:[1,0,1]")
                    for r in range(4):
                        a(f"v_pk_mul_f32 {P(T, r)}, {P(U, r)}, {P(U, r)}")
                    for r in range(4):
                        a(f"v_pk_fma_f32 {P(T, r)}, {P(T, r)}, v[168:169], v[170:171] op_sel_hi:[1,0,0]")
                    for r in range(4):
                        a(f"v_pk_mul_f32 {P(T, r)}, {P(T, r)}, {P(U, r)}")
                    for r in range(8):
                        a(f"v_exp_f32 v{T + r}, v{T + r}")
                    for r in range(4):
                        a(f"v_pk_add_f32 {P(T, r)}, {P(T, r)}, v[172:173] op_sel_hi:[1,0]")
                    for r in range(8):
                        a(f"v_rcp_f32 v{T + r}, v{T + r}")
                    for r in range(4):
                        a(f"v_pk_mul_f32 {P(U, r)}, {P(U, r)}, {P(T, r)}")
                    d = 104 + 8 * tt + 4 * half
                    for r in range(4):
                        a(f"v_cvt_pk_bf16_f32 v{d + r}, v{U + 2 * r}, v{U + 2 * r + 1}")
                    a(f"buffer_store_dwordx4 {vr(d, 4)}, v5, {sr(SH, 4)}, s7 offen offset:{half * 2048 + tt * 1024} sc1")
                    continue
                for r in range(8):
                    a(f"v_fmac_f32 v{U + r}, v{144 + 8 * half + r}, v{160 + tt}")
                for r in range(8):
                    a(f"v_fma_f32 v{U + r}, v{U + r}, v{58 + tt}, v{BI + 8 * half + r}")
                for r in range(8):
                    a(f"v_mul_f32 v{T + r}, v{U + r}, v{U + r}")
                for r in range(8):
                    a(f"v_fmaak_f32 v{T + r}, v{T + r}, v168, {f32(c0)}")
                for r in range(8):
                    a(f"v_mul_f32 v{T + r}, v{T + r}, v{U + r}")
                for r in range(8):
                    a(f"v_exp_f32 v{T + r}, v{T + r}")
                for r in range(8):
                    a(f"v_add_f32 v{T + r}, 1.0, v{T + r}")
                for r in range(8):
                    a(f"v_rcp_f32 v{T + r}, v{T + r}")
                for r in range(8):
                    a(f"v_mul_f32 v{U + r}, v{U + r}, v{T + r}")
                d = 104 + 8 * tt + 4 * half
                for r in range(4):
                    a(f"v_cvt_pk_bf16_f32 v{d + r}, v{U + 2 * r}, v{U + 2 * r + 1}")
                a(f"buffer_store_dwordx4 {vr(d, 4)}, v5, {sr(SH, 4)}, s7 offen offset:{half * 2048 + tt * 1024} sc1")

    a(f"s_cmp_eq_u32 s{S_KIND}, 0")
    a.settle()
    a("s_cbranch_scc0 L_spare")
    snap0 = a.snapshot()

    def reads(ks):
        ab, bb = 96 + 4 * (ks & 1), 104 + 8 * (ks & 1)
        a.wait_tok(dma[ks])
        a(f"ds_read_b64_tr_b16 {vr(ab, 2)}, v6 offset:{(ks % RS) * 1024}")
        t = a(f"ds_read_b64_tr_b16 {vr(ab + 2, 2)}, v6 offset:{(ks % RS) * 1024 + 256}")
        for tt in range(2):
            a(f"ds_read_b128 {vr(bb + 4 * tt, 4)}, v{60 + (ks & 3)} offset:{tt * 32768 + (ks >> 2) * 1024}")
        return t

    a(f"s_cmp_lg_u32 s{S_J}, 7")
    a("s_cbranch_scc1 L_nohold")
    a("s_barrier")
    a.label("L_nohold")
    tk = {0: reads(0)}
    LOCK = OPT.get("lock", 0)
    nlock = 0
    for ks in range(32):
        if (LOCK and ks % LOCK == 0 and 0 < ks < 24) or (SH_ and ks == 11):
            a("s_barrier")
            nlock += 1
        if ks + 1 < 32:
            tk[ks + 1] = reads(ks + 1)
        ab, bb = 96 + 4 * (ks & 1), 104 + 8 * (ks & 1)
        a(f"v_mfma_f32_16x16x32_bf16 v[204:207], {vr(ab, 4)}, v[200:203], {'0' if ks == 0 else 'v[204:207]'}")
        for tt in range(2):
            acc = vr(ACC + 16 * tt, 16)
            a(f"v_mfma_f32_32x32x16_bf16 {acc}, {vr(ab, 4)}, {vr(bb + 4 * tt, 4)}, {'0' if ks == 0 else acc}")
            if tt == 0:
                a.wait_tok(tk[ks])
                if ks == 12:
                    make_tag()
                if SH_ and ks < 8:
                    for r in range(4 * ks, 4 * ks + 4):
                        stats_plain(r)
                if SH_ and ks == 8:
                    stats_finish()
                if ks == OPT.get("bks", 6):
                    a("s_lshl_b32 s7, s9, 6")
                    a("v_lshlrev_b32 v56, 3, v14")
                    for q in range(4):
                        a(f"buffer_load_dwordx2 {vr(120 + 2 * q, 2)}, v56, {sr(SB1, 4)}, s7 offen offset:{16 * q}")
                    if OPT.get("tpf", 1):
                        a(f"buffer_load_dword v210, v9, {sr(ST, 4)}, s82 offen")
                if ks + RS < 32:
                    issue_w(ks + RS)
                elif ks == OPT.get("pollks", 27):
                    a(f"s_cmp_ge_u32 s{S_WAVE}, 2")
                    a("s_cbranch_scc1 L_nopre")
                    st_ = a.snapshot()
                    poll1_issue()
                    a.label("L_nopre")
                    a.restore(st_)
                elif ks == 29:
                    t_tr = t_issue()
    stamp(a, 4)
    a("s_mov_b32 s73, 0")
    a(f"s_cmp_ge_u32 s{S_WAVE}, 2")
    a.settle()
    a("s_cbranch_scc1 L_noearly")
    st_ = a.snapshot()
    a.raw("    s_waitcnt vmcnt(1)")
    poll_check(a, 132, 1)
    a.settle()
    a("s_cbranch_scc0 L_noearly")
    stamp(a, 21)
    a("s_mov_b32 s73, 1")
    kv_dma()
    a.settle()
    a.label("L_noearly")
    a.restore(st_)
    colsum_finish()
    colsum_spread(144, 4)
    a(f"s_cmp_lt_u32 s{S_ROLE}, 2")
    a.settle()
    a("s_cbranch_scc0 L_mlp")
    snap = a.snapshot()
    a("ds_read2_b32 v[58:59], v57 offset0:0 offset1:32")
    a("ds_read2_b32 v[160:161], v57 offset0:128 offset1:160")
    a(f"s_lshl_b32 s8, s{S_ROLE}, 12")
    a(f"s_add_u32 s8, s8, {L_QF}")
    a("v_add_u32 v56, s8, v5")
    a(f"v_mul_f32 v58, {f32(0.25 * LOG2E)}, v58")
    a(f"v_mul_f32 v59, {f32(0.25 * LOG2E)}, v59")
    for tt in range(2):
        for r in range(16):
            a(f"v_fmac_f32 v{ACC + 16 * tt + r}, v{144 + r}, v{160 + tt}")
        for r in range(16):
            a(f"v_mul_f32 v{ACC + 16 * tt + r}, v{ACC + 16 * tt + r}, v{58 + tt}")
        for ab in range(2):
            d = 104 + 8 * tt + 4 * ab
            for r in range(4):
                s0 = ACC + 16 * tt + 8 * ab + 2 * r
                a(f"v_cvt_pk_bf16_f32 v{d + r}, v{s0}, v{s0 + 1}")
            a(f"ds_write_b128 v56, {vr(d, 4)} offset:{(2 * tt + ab) * 1024}")
    t_task(t_tr)
    a.settle()
    a("s_branch L_done")

    a.label("L_mlp")
    a.restore(snap)
    a(f"s_cmp_ge_u32 s{S_WAVE}, 4")
    a("s_cbranch_scc1 L_young")
    gelu(bool(LOCK))
    a.settle()
    a("s_branch L_done")
    a.label("L_young")
    a.restore(snap)
    gelu(True)
    a.settle()
    a("s_branch L_done")

    a.label("L_spare")
    a.restore(snap0)
    a(f"s_cmp_eq_u32 s{S_KIND}, 2")
    a("s_cbranch_scc1 L_idle")
    a("v_and_b32 v128, 15, v0")
    a("v_lshrrev_b32 v129, 4, v0")
    a(f"s_and_b32 s8, s{S_WAVE}, 1")
    a("s_lshl_b32 s7, s8, 15")
    a("v_lshrrev_b32 v130, 1, v128")
    a("v_xor_b32 v130, v130, v129")
    a("v_lshrrev_b32 v131, 3, v128")
    a("v_lshlrev_b32 v131, 13, v131")
    a("v_lshl_add_u32 v131, v3, 7, v131")
    a("v_add_u32 v131, s7, v131")
    a("v_lshl_add_u32 v60, v130, 4, v131")
    a("v_xor_b32 v61, 64, v60")
    a(f"s_and_b32 s7, s{S_WAVE}, 6")
    a(f"s_mul_i32 s7, s7, {RS * 1024}")
    a(f"s_add_u32 s7, s7, {L_RING}")
    a("v_lshlrev_b32 v6, 3, v128")
    a("v_lshl_add_u32 v6, v129, 8, v6")
    a("v_add_u32 v6, s7, v6")
    for r in range(4):
        a(f"v_mov_b32 v{200 + r}, 0x3f803f80")
    a(f"s_lshl_b32 s10, s{S_TG}, 1")
    a("s_add_u32 s10, s10, s8")
    a("s_lshl_b32 s10, s10, 10")
    a("s_lshl_b32 s7, s8, 7")
    a(f"s_add_u32 s7, s7, {L_STATS}")
    a(f"s_cmp_lt_u32 s{S_ROLE}, 6")
    a.settle()
    a("s_cbranch_scc0 L_doV")
    snap2 = a.snapshot()
    for isv in (0, 1):
        if isv:
            a.label("L_doV")
            a.restore(snap2)
        KB, ND = 144, 4

        def reads_kv(s_):
            b = KB + 12 * (s_ % ND)
            o = (s_ >> 3) * RS * 1024 + (s_ & 7) * 1024
            a(f"ds_read_b64_tr_b16 {vr(b, 2)}, v6 offset:{o}")
            a(f"ds_read_b64_tr_b16 {vr(b + 2, 2)}, v6 offset:{o + 128}")
            for u in range(2):
                a(f"ds_read_b128 {vr(b + 4 + 4 * u, 4)}, v{60 + (s_ & 1)} offset:{16384 * u + 1024 * (s_ >> 1)}")

        for s_ in range(ND - 1):
            reads_kv(s_)
        for s_ in range(16):
            if s_ + ND - 1 < 16:
                reads_kv(s_ + ND - 1)
            b = KB + 12 * (s_ % ND)
            for u, other in ((2, "v[200:203]"), (0, vr(b + 4, 4)), (1, vr(b + 8, 4))):
                acc = vr(ACC + 4 * u, 4)
                opa, opb = (other, vr(b, 4)) if isv else (vr(b, 4), other)
                a(f"v_mfma_f32_16x16x32_bf16 {acc}, {opa}, {opb}, {'0' if s_ == 0 else acc}")
            if s_ == 13:
                if isv:
                    a("v_lshl_add_u32 v57, v129, 4, s7")
                    for u in range(2):
                        a(f"ds_read_b128 {vr(96 + 4 * u, 4)}, v57 offset:{64 * u}")
                        a(f"ds_read_b128 {vr(104 + 4 * u, 4)}, v57 offset:{512 + 64 * u}")
                    a("v_lshrrev_b32 v130, 1, v129")
                    a("v_lshl_add_u32 v130, v130, 4, v128")
                    a("v_lshlrev_b32 v130, 4, v130")
                    a("v_and_b32 v131, 1, v129")
                    a("v_lshl_add_u32 v56, v131, 3, v130")
                    a(f"s_add_u32 s10, s10, {WS_VF}")
                else:
                    a("v_lshl_add_u32 v57, v128, 2, s7")
                    a("ds_read2_b32 v[96:97], v57 offset0:0 offset1:16")
                    a("ds_read2_b32 v[104:105], v57 offset0:128 offset1:144")
                    a("v_and_b32 v131, 1, v129")
                    a("v_lshl_add_u32 v130, v131, 5, v128")
                    a("v_lshlrev_b32 v130, 4, v130")
                    a("v_lshrrev_b32 v131, 1, v129")
                    a("v_lshl_add_u32 v56, v131, 3, v130")
        stamp(a, 13)
        for u in range(2):
            for r in range(4):
                nm = 104 + 4 * u + r if isv else 104 + u
                a(f"v_fmac_f32 v{ACC + 4 * u + r}, v{ACC + 8 + r}, v{nm}")
            for r in range(4):
                rs = 96 + 4 * u + r if isv else 96 + u
                a(f"v_mul_f32 v{ACC + 4 * u + r}, v{ACC + 4 * u + r}, v{rs}")
            a(f"v_cvt_pk_bf16_f32 v{112 + 2 * u}, v{ACC + 4 * u}, v{ACC + 4 * u + 1}")
            a(f"v_cvt_pk_bf16_f32 v{113 + 2 * u}, v{ACC + 4 * u + 2}, v{ACC + 4 * u + 3}")
            a(f"buffer_store_dwordx2 {vr(112 + 2 * u, 2)}, v56, {sr(SWS, 4)}, s10 offen offset:{(512 if isv else 256) * u} sc1")
        a.wait_all()
        a.settle()
        if not isv:
            a("s_branch L_kvpub")
    a.label("L_kvpub")
    stamp(a, 14)
    make_tag()
    a(f"v_mov_b32 v15, {L_CNT}")
    a("v_mov_b32 v52, 1")
    a("s_mov_b64 exec, 1")
    a("ds_add_rtn_u32 v53, v15, v52")
    a("s_mov_b64 exec, -1")
    a(f"s_lshl_b32 s8, s{S_TG}, 7")
    a(f"s_add_u32 s8, s8, {WS_FL1}")
    a("v_readfirstlane_b32 s7, v53")
    a("s_cmp_lg_u32 s7, 3")
    a.settle()
    a("s_cbranch_scc1 L_noflag1")
    flag_store(a, "s8", 136)
    a.settle()
    a.label("L_noflag1")
    a("s_barrier")
    a.label("L_idle")
    a.reset_state()
    a.wait_all()
    if SH_:
        stats_dot()
        a.wait_all(vm=False)
    make_tag()
    a("s_mov_b32 s73, 0")
    t_task(t_issue())
    for _ in range(nlock):
        a("s_barrier")
    a.settle()

    a.label("L_done")
    a.reset_state()
    stamp(a, 19)
    a(f"s_cmp_ge_u32 s{S_WAVE}, 2")
    a("s_cbranch_scc1 L_late")
    a("s_cmp_eq_u32 s73, 1")
    a("s_cbranch_scc1 L_kvdone")
    spin(a, "L_poll1", poll1_issue, 132, 1)
    a.reset_state()
    stamp(a, 21)
    kv_dma()
    a.wait_all()
    a.settle()
    a.label("L_kvdone")
    a.raw("    s_waitcnt vmcnt(1) lgkmcnt(0)")
    stamp(a, 5)
    a("s_barrier")
    stamp(a, 6)
    a.settle()
    a("s_branch L_attn")
    a.label("L_late")
    a.reset_state()
    kv_ones()
    a.wait_all(vm=False)
    stamp(a, 5)
    a("s_barrier")
    stamp(a, 6)
    a.settle()
    a.label("L_attn")
    a.reset_state()
    _stamp["n"] = 7


def attention(a):
    S0, O0, Q0, KR, V0R, V1R, IDX = 16, 212, 80, 88, 92, 96, 100
    M, BUF, XR, B2R = 104, 168, 200, 204
    L_WO = L_RING
    AK, AV0, AV1, AQ = 244, 245, 246, 247
    wo_reg = lambda n: 104 + 4 * n
    a(f"s_and_b32 s6, s{S_WAVE}, 3")
    a(f"s_lshr_b32 s7, s{S_WAVE}, 2")
    a(f"v_mov_b32 v{IDX}, 0xdddddddd")

    def kvoff(it):
        return ((it >> 2) & 1) * 20480 + (it & 3) * KT if it < 16 else (it - 16) * KT

    def rebase(it, r):
        if it == 8:
            a(f"v_add_u32 v{r}, 40960, v{r}")
        if it == 16:
            a(f"v_subrev_u32 v{r}, s87, v{r}")

    def rk(it):
        rebase(it, AK)
        a(f"ds_read_b128 {vr(KR, 4)}, v{AK} offset:{kvoff(it)}")

    def rv(it, p):
        rebase(it, AV0 + p)
        a(f"ds_read_b128 {vr((V0R, V1R)[p], 4)}, v{AV0 + p} offset:{kvoff(it)}")

    def kv_dma1(s_):
        a(f"s_cmp_lt_u32 s{S_WAVE}, 2")
        a(f"s_cbranch_scc1 L_skipkv{s_}")
        hist = list(a.hist)
        if s_ == 0:
            a(f"s_and_b32 s10, s{S_WAVE}, 1")
            a("s_lshl_b32 s10, s10, 15")
            a(f"s_lshr_b32 s12, s{S_WAVE}, 1")
            a("s_lshl_b32 s12, s12, 2")
            a(f"s_add_u32 s12, s12, s{S_KROT}")
        a(f"s_add_u32 s11, s12, {s_}")
        a("s_and_b32 s11, s11, 31")
        a("s_lshl_b32 s11, s11, 10")
        a("s_add_u32 s11, s11, s10")
        a(f"s_add_u32 m0, s14, {s_ * KT}")
        a(f"s_add_u32 s13, s11, {WS_VF}")
        a(f"buffer_load_dwordx4 v5, {sr(SWS, 4)}, s11 offen sc1 lds")
        a(f"s_add_u32 m0, s14, {s_ * KT + 1024}")
        a(f"buffer_load_dwordx4 v5, {sr(SWS, 4)}, s13 offen sc1 lds")
        a.label(f"L_skipkv{s_}")
        a.hist = hist

    def kv_dma2(n):
        s_, isv = n >> 1, n & 1
        if n == 0:
            a(f"s_mul_i32 s87, s7, {(10240 - 16 * KT) & 0xffffffff}")
            a(f"s_add_u32 s87, s87, {L_RING + 40960}")
            a("s_lshl_b32 s10, s7, 4")
            a("s_add_u32 s10, s10, s6")
            a(f"s_mul_i32 s14, s10, {KT}")
            a("s_lshl_b32 s10, s7, 15")
            a(f"s_add_u32 s12, s6, s{S_KROT}")
        if isv:
            a(f"s_add_u32 s11, s11, {WS_VF}")
        else:
            a(f"s_add_u32 s11, s12, {16 + 4 * s_}")
            a("s_and_b32 s11, s11, 31")
            a("s_lshl_b32 s11, s11, 10")
            a("s_add_u32 s11, s11, s10")
        a(f"s_add_u32 m0, s14, {4 * s_ * KT + 1024 * isv}")
        a(f"buffer_load_dwordx4 v5, {sr(SWS, 4)}, s11 offen sc1 lds")
        if n == 7:
            a("v_and_b32 v101, 3, v0")
            a(f"v_mul_u32_u24 v101, {4 * KT}, v101")
            a("v_add_u32 v101, s14, v101")
            a("ds_write_b128 v101, v[136:139] offset:2048")

    def mf(t):
        a(f"v_mfma_f32_32x32x16_bf16 {vr(S0 + 16 * (t & 1), 16)}, {vr(KR, 4)}, {vr(Q0 + 4 * (t & 1), 4)}, 0")

    def smf(t, p):
        a(f"v_smfmac_f32_32x32x32_bf16 {vr(O0 + 16 * (t & 1), 16)}, {vr((V0R, V1R)[p], 4)}, "
          f"{vr(S0 + 16 * (t & 1) + 8 * p, 8)}, v{IDX}")

    PN, PP = OPT.get("pn", 0), OPT.get("pp", 2)

    def ex(t, lo, hi, prio=True):
        for i in range(lo, hi):
            r = S0 + 16 * (t & 1) + i
            if PN and prio:
                pos = (t % PP) * 16 + i
                if pos == 0:
                    a("s_setprio 0")
                if pos == PN:
                    a("s_setprio 1")
            a(f"v_exp_f32 v{r}, v{r}")

    NT = 64
    hooks = {(t, p): [] for t in range(NT) for p in range(4)}

    def at(t, p, fn):
        hooks[(t, p)].append(fn)

    def setup_mlp2():
        a(f"s_mul_i32 s14, s{S_J}, {HF_STRIDE}")
        a(f"s_add_u32 s14, s14, {WS_W2T}")
        srd(a, SW2, P_WS, 86 * 2048, "s14")
        a(f"s_lshl_b32 s14, s{S_J}, 16")
        a(f"s_add_u32 s14, s14, {WS_WOT}")
        srd(a, SWO, P_WS, 65536, "s14")
        a(f"s_lshl_b32 s14, s{S_TG}, 16")
        a(f"s_add_u32 s14, s14, {WS_OF}")
        srd(a, SO, P_WS, 65536, "s14")
        srd(a, SB2, P_B2, 1024)
        srd(a, SOUT, P_OUT, 2097152)

    def setup_offsets():
        a(f"s_and_b32 s72, s{S_WAVE}, 1")
        a(f"s_lshr_b32 s73, s{S_WAVE}, 1")
        a(f"s_lshl_b32 s8, s{S_WAVE}, 11")
        a("s_lshl_b32 s10, s73, 14")
        a("s_lshl_b32 s11, s72, 10")
        a("s_add_u32 s11, s11, s10")
        a(f"s_lshl_b32 s12, s{S_TG}, 16")
        a(f"s_lshl_b32 s13, s{S_WAVE}, 13")
        a("s_add_u32 s12, s12, s13")
        a(f"s_lshl_b32 s13, s{S_J}, 7")
        a("s_add_u32 s12, s12, s13")

    def publish_h():
        a.wait_all()
        a("s_barrier")
        stamp(a, 17)
        a(f"s_cmp_lg_u32 s{S_WAVE}, 0")
        a("s_cbranch_scc1 L_noflag2")
        hist = list(a.hist)
        a(f"s_lshl_b32 s14, s{S_TG}, 3")
        a(f"s_add_u32 s14, s14, s{S_J}")
        a("s_lshl_b32 s14, s14, 7")
        a(f"s_add_u32 s14, s14, {WS_FL2}")
        flag_store(a, "s14", 101)
        a.label("L_noflag2")
        a.hist = hist

    def poll2_issue():
        a(f"s_mov_b32 s85, {WS_FL2}")
        a(f"buffer_load_dword v102, v248, {sr(SWS, 4)}, s85 offen sc1")

    def check_h():
        poll_check(a, 102, 1)
        a("s_cbranch_scc0 L_spin2")
        a.label("L_spin2_ret")
        stamp(a, 16)

    ND = OPT.get("nd", 4)

    def buf_of(i):
        return 48 + 16 * (i - 9) if (i >= 9 and ND > 2) else BUF + 16 * (i & 1)

    def mlp2_load(i, k):
        b = buf_of(i) + 4 * k
        srd_, o = ((SW2, 0), (SH, 0), (SH, 1024), (SW2, 1024))[k]
        a(f"buffer_load_dwordx4 {vr(b, 4)}, v5, {sr(srd_, 4)}, s8 offen offset:{o} sc1")
        if k == 3:
            a("s_add_u32 s8, s8, 16384")

    def mlp2_mm(i, u):
        b = buf_of(i)
        nt, tt = u >> 1, u & 1
        acc = vr(M + 16 * u, 16)
        a(f"v_mfma_f32_32x32x16_bf16 {acc}, {vr(b + 12 * nt, 4)}, {vr(b + 4 + 4 * tt, 4)}, {'0' if i == 0 else acc}")

    wo_tok = []

    def wo_load(n):
        if n == 0:
            a(f"s_lshl_b32 s10, s{S_WAVE}, 13")
        if n & 3 == 0:
            a(f"s_add_u32 m0, s10, {L_WO}")
        wo_tok.append(a(f"buffer_load_dwordx4 v5, {sr(SWO, 4)}, s10 offen offset:{(n & 3) * 1024} sc1 lds"))
        if n == 3:
            a("s_add_u32 s10, s10, 4096")

    def o_addr():
        a.comment("head index and destination of this wave's O fragment")
        a(f"s_lshl_b32 s14, s{S_J}, 2")
        a("s_and_b32 s15, s6, 2")
        a("s_add_u32 s14, s14, s15")
        a("s_add_u32 s14, s14, s7")
        a("s_and_b32 s15, s6, 1")
        a("s_lshl_b32 s90, s14, 11")
        a("s_lshl_b32 s91, s15, 10")
        a("s_add_u32 s90, s90, s91")
        a(f"s_lshl_b32 s91, s{S_TG}, 13")
        a(f"s_add_u32 s91, s91, {WS_FL3}")

    def tail_loads():
        a("v_and_b32 v101, 0x70, v251")
        a(f"buffer_load_dwordx4 {vr(XR, 4)}, v251, {sr(SX, 4)}, s12 offen")
        a(f"buffer_load_dwordx4 {vr(B2R, 4)}, v101, {sr(SB2, 4)}, s13 offen")

    TP = OPT.get("tp", 5)
    T0 = OPT.get("t0", 14)
    LAG = OPT.get("lag", 6)
    at(TP, 0, publish_h)
    for n in range(8):
        at(TP + n // 2, (1, 3)[n & 1], lambda n=n: kv_dma2(n))
    at(TP + 4, 2, setup_mlp2)
    at(TP + 5, 2, setup_offsets)
    for s_ in range(4):
        at(s_ // 2, (1, 3)[s_ & 1], lambda s_=s_: kv_dma1(s_))
    at(T0 - 3, 2, poll2_issue)
    at(T0 - 1, 3, check_h)
    at(28, 0, lambda: a("s_barrier"))
    slot = OPT.get("sl", 100) / 100.0
    for i in range(11):
        for k in range(4):
            tau = T0 + (4 * i + k) * slot
            at(int(tau), 1 if tau % 1 < 0.5 else 3, lambda i=i, k=k: mlp2_load(i, k))
            if i < 11 - ND:
                tau = T0 + (4 * i + k + LAG) * slot
                if tau % 1 < 0.5:
                    at(int(tau), 2, lambda i=i, k=k: mlp2_mm(i, k))
                else:
                    at(int(tau) + 1, 0, lambda i=i, k=k: mlp2_mm(i, k))
    for tb in range(OPT.get("b0", 64), 64, OPT.get("bs", 8)):
        at(tb, 0, lambda: a("s_barrier"))
    if OPT.get("yp", 0):
        def raise_young():
            a(f"s_cmp_lt_u32 s{S_WAVE}, 4")
            a("s_cbranch_scc1 L_noyp")
            a("s_setprio 1")
            a.label("L_noyp")
        at(OPT["yp"], 0, raise_young)
    at(48, 0, lambda: stamp(a, 18))
    WT = OPT.get("wt", 35)
    at(34, 0, lambda: a("s_barrier"))
    for n in range(8):
        at(WT + 3 * n, 3, lambda n=n: wo_load(n))
    S3 = OPT.get("s3", 0)

    def o_mark():
        a(f"s_lshl_b32 s15, s{S_TG}, 16")
        a("s_add_u32 s15, s15, s90")
        a(f"s_add_u32 s15, s15, {WS_OF}")
        for r in range(4):
            a(f"v_mov_b32 v{48 + r}, -1")
        a(f"buffer_store_dwordx4 v[48:51], v5, {sr(SWS, 4)}, s15 offen sc1")
        a("v_lshlrev_b32 v252, 10, v0")

    if S3:
        at(2, 2, o_addr)
        at(2, 3, o_mark)
    else:
        at(TP + 6, 2, o_addr)
    at(62, 1, tail_loads)

    a(f"ds_read_b128 {vr(Q0, 4)}, v{AQ}")
    rk(0)
    a(f"ds_read_b128 {vr(Q0 + 4, 4)}, v{AQ} offset:1024")
    rv(0, 0)
    rv(0, 1)
    mf(0)
    for t in range(NT):
        it = t >> 1
        for fn in hooks[(t, 0)]:
            fn()
        ex(t, 0, 2)
        if t > 0:
            smf(t - 1, 1)
            if t % 2 == 0:
                rv(it, 1)
        ex(t, 2, 5)
        if t + 1 < NT:
            mf(t + 1)
            if t % 2 == 0 and it + 1 < 32:
                rk(it + 1)
        ex(t, 5, 7)
        for fn in hooks[(t, 1)]:
            fn()
        ex(t, 7, 10)
        smf(t, 0)
        if t % 2 == 1 and it + 1 < 32:
            rv(it + 1, 0)
        ex(t, 10, 13)
        for fn in hooks[(t, 2)]:
            fn()
        ex(t, 13, 15)
        for fn in hooks[(t, 3)]:
            fn()
        ex(t, 15, 16)
    smf(NT - 1, 1)
    if PN:
        a("s_setprio 0")
    stamp(a)

    a.wait_tok(wo_tok[-1])
    a(f"s_mul_i32 s14, s{S_WAVE}, 2304")
    a(f"s_add_u32 s14, s14, {L_XCH}")
    a(f"s_xor_b32 s15, s{S_WAVE}, 4")
    a("s_mul_i32 s15, s15, 2304")
    a(f"s_add_u32 s15, s15, {L_XCH}")
    a("v_add_u32 v1, s14, v5")
    a("v_lshl_add_u32 v2, v0, 2, s14")
    a("v_add_u32 v3, s15, v5")
    a("v_lshl_add_u32 v4, v0, 2, s15")
    a("s_cmp_eq_u32 s7, 0")
    a.settle()
    a("s_cbranch_scc1 L_lo")
    snap = a.snapshot()
    for kh in (1, 0):
        if kh == 0:
            a.label("L_lo")
            a.restore(snap)
        give, keep = O0 + 16 * (1 - kh), O0 + 16 * kh
        a(f"ds_write_b128 v1, {vr(give, 4)}")
        a(f"ds_write_b128 v1, {vr(give + 4, 4)} offset:1024")
        a(f"ds_write_b32 v2, v{give + 8} offset:2048")
        for r in range(9):
            a(f"v_mov_b32 v{S0 + r}, v{keep + r}")
        for r in range(4):
            a(f"v_mov_b32 v{S0 + 28 + r}, v{Q0 + 4 * kh + r}")
        a.wait_all(vm=False)
        a.settle()
        if kh == 1:
            a("s_branch L_join")
    a.label("L_join")
    a("s_barrier")
    stamp(a)
    a(f"ds_read_b128 {vr(O0, 4)}, v3")
    a(f"ds_read_b128 {vr(O0 + 4, 4)}, v3 offset:1024")
    a(f"ds_read_b32 v{O0 + 8}, v4 offset:2048")
    for r in range(9):
        a(f"v_add_f32 v{O0 + r}, v{O0 + r}, v{S0 + r}")
    a(f"v_mov_b32 v101, v{O0 + 8}")
    a(f"v_permlane32_swap_b32 v{O0 + 8}, v101")
    a(f"v_max3_f32 v102, |v{O0}|, |v{O0 + 1}|, |v{O0 + 2}|")
    a(f"v_max3_f32 v102, |v{O0 + 3}|, |v{O0 + 4}|, v102")
    a(f"v_max3_f32 v102, |v{O0 + 5}|, |v{O0 + 6}|, v102")
    a(f"v_max3_f32 v102, |v{O0 + 7}|, v{O0 + 8}, v102")
    a(f"v_cmp_gt_f32 vcc, {f32(2.0 ** 100)}, v102")
    a(f"s_mov_b32 s74, {f32(2.0 ** -60)}")
    a(f"v_cmp_lt_f32 s[14:15], s74, v{O0 + 8}")
    a("s_and_b64 vcc, vcc, s[14:15]")
    a("s_cmp_eq_u64 vcc, exec")
    a.settle()
    a("s_cbranch_scc0 L_slow")
    a.label("L_fin")
    a(f"v_rcp_f32 v101, v{O0 + 8}")
    for r in range(8):
        a(f"v_mul_f32 v{O0 + r}, v{O0 + r}, v101")
    for r in range(4):
        a(f"v_cvt_pk_bf16_f32 v{S0 + r}, v{O0 + 2 * r}, v{O0 + 2 * r + 1}")
    if S3:
        for r in range(4):
            a(f"v_min_u32 v{S0 + r}, -2, v{S0 + r}")
    t_o = a(f"buffer_store_dwordx4 {vr(S0, 4)}, v5, {sr(SO, 4)}, s90 offen sc1")
    R = 168
    a("v_and_b32 v1, 7, v0")
    a("v_lshrrev_b32 v2, 5, v0")
    a("v_xor_b32 v1, v1, v2")
    a("v_lshlrev_b32 v1, 4, v1")
    a("v_and_b32 v2, 31, v0")
    a("v_lshl_add_u32 v1, v2, 7, v1")
    a(f"s_lshl_b32 s15, s{S_WAVE}, 13")
    a("v_add_u32 v1, s15, v1")
    for x in range(1, 4):
        a(f"v_xor_b32 v{1 + x}, {x << 5}, v1")
    for i in range(11 - ND, 11):
        for u in range(4):
            mlp2_mm(i, u)

    def m_out():
        for u in range(4):
            nt, tt = u >> 1, u & 1
            for g in range(2):
                d = 48 + 8 * u + 4 * g
                for r in range(4):
                    s0 = M + 16 * u + 8 * g + 2 * r
                    a(f"v_cvt_pk_bf16_f32 v{d + r}, v{s0}, v{s0 + 1}")
                a(f"ds_write_b128 v{1 + 2 * nt + g}, {vr(d, 4)} offset:{tt * 4096}")

    if ND == 0:
        m_out()
    a("s_lshl_b32 s15, s72, 13")
    a(f"s_add_u32 s15, s15, {L_WO}")
    a("v_add_u32 v14, s15, v249")
    a(f"v_add_u32 v250, {L_WO}, v250")
    a("v_xor_b32 v6, 16, v250")
    a("v_lshrrev_b32 v7, 3, v0")
    a("v_and_b32 v8, 7, v0")
    a("v_xor_b32 v8, v8, v7")
    a("v_lshlrev_b32 v8, 4, v8")
    a("v_lshl_add_u32 v7, v7, 7, v8")
    a(f"s_lshl_b32 s15, s{S_WAVE}, 10")
    a("v_add_u32 v7, s15, v7")
    a("s_lshl_b32 s15, s73, 14")
    a(f"s_add_u32 s15, s15, {L_WO}")
    a("v_add_u32 v8, s15, v5")
    if OPT.get("orot", 1):
        a("s_bfe_u32 s15, s2, 0x10006")
    else:
        a("s_mov_b32 s15, 0")
    a("s_lshl_b32 s15, s15, 13")
    a("s_xor_b32 s14, s15, 8192")
    a("v_add_u32 v12, s14, v8")
    a("v_add_u32 v8, s15, v8")
    a("s_add_u32 s10, s11, s14")
    a("s_add_u32 s11, s11, s15")
    G, XF, TG = 80, 88, 48
    SAD = (14, 1, 2, 3, 4, 9, 10, 11)
    for r in range(4):
        a(f"v_lshlrev_b32 v{G + 2 * r}, 16, v{B2R + r}")
        a(f"v_and_b32 v{G + 2 * r + 1}, 0xffff0000, v{B2R + r}")
    for n in range(16):
        a(f"ds_read_b128 {vr(wo_reg(n), 4)}, v{(8, 12)[n >> 3]} offset:{(n & 7) * 1024}")
    ops = []
    if OPT.get("gd", 1):
        a("s_mov_b32 s6, 0x00003f80")
        a("s_mov_b32 s7, 0x3f800000")
        for kq in range(8):
            for r in range(8):
                ops.append(f"v_dot2_f32_bf16 v{G + r}, v{R + 4 * kq + (r >> 1)}, s{6 + (r & 1)}, v{G + r}")
    else:
        for kq in range(8):
            for r in range(4):
                ops.append(f"v_lshlrev_b32 v{56 + 2 * r}, 16, v{R + 4 * kq + r}")
                ops.append(f"v_and_b32 v{57 + 2 * r}, 0xffff0000, v{R + 4 * kq + r}")
            for r in range(8):
                ops.append(f"v_add_f32 v{G + r}, v{G + r}, v{56 + r}")
    for fmt in ("v_mul_f32 v{t}, " + f32(-LOG2E) + ", v{g}", "v_exp_f32 v{t}, v{t}", "v_add_f32 v{t}, 1.0, v{t}",
                "v_rcp_f32 v{t}, v{t}", "v_mul_f32 v{g}, v{g}, v{t}"):
        for r in range(8):
            ops.append(fmt.format(t=TG + r, g=G + r))
    for r in range(4):
        ops.append(f"v_lshlrev_b32 v{XF + 2 * r}, 16, v{XR + r}")
        ops.append(f"v_and_b32 v{XF + 2 * r + 1}, 0xffff0000, v{XR + r}")
    SB = OPT.get("sb", 1)
    if SB:
        ops.append(f"s_lshr_b32 s15, s{S_WAVE}, 1")
        ops.append(f"s_sub_u32 s15, s15, s{S_WAVE}")
        ops.append("s_lshl_b32 s15, s15, 13")
        ops.append("s_lshl_b32 s14, s72, 12")
        ops.append("s_add_u32 s15, s15, s14")
        for x in range(4):
            ops.append(f"v_add_u32 v{1 + x}, s15, v{1 + x}")
    else:
        for x in range(1, 8):
            ops.append(f"v_xor_b32 v{SAD[x]}, {((x >> 2) << 7) | (((x >> 1) & 1) << 6) | ((x & 1) << 4)}, v14")

    def some(n):
        for _ in range(n):
            if ops:
                a(ops.pop(0))

    OF, SA = 212, 16

    def o_loads():
        for i in range(8):
            a(f"s_add_u32 s14, s{(11, 10)[i >> 2]}, {((i >> 1) & 1) * 4096}")
            a(f"buffer_load_dwordx4 {vr(OF + 4 * i, 4)}, v5, {sr(SO, 4)}, s14 offen offset:{(i & 1) * 2048} sc1")

    a(f"s_cmp_lg_u32 s{S_WAVE}, 7")
    a.settle()
    a("s_cbranch_scc1 L_poll3_ok")
    snap = a.snapshot()
    a("s_mov_b32 s86, 0")
    a.label("L_poll3")
    a(f"buffer_load_dword v103, v252, {sr(SO, 4)}, 0 offen offset:896 sc1")
    a("s_add_u32 s86, s86, 1")
    a("v_cmp_eq_u32 vcc, -1, v103")
    a("s_cmp_eq_u64 vcc, 0")
    a.settle()
    a("s_cbranch_scc1 L_poll3_ok")
    a(f"s_sleep {OPT.get('slp', 2)}")
    a(f"s_cmp_lt_u32 s86, {SPIN_LIMIT}")
    a("s_cbranch_scc1 L_poll3")
    a.label("L_poll3_ok")
    a.restore(snap)
    a.wait_all(vm=False)
    stamp(a)
    a("s_barrier")
    stamp(a)
    def m_reads():
        for kq in range(8):
            a(f"ds_read_b128 {vr(R + 4 * kq, 4)}, v7 offset:{kq * 8192}")

    if OPT.get("ord", 1):
        a.comment("the younger waves reduce the gate first, while the loads of the older ones occupy the memory path")
        a(f"s_cmp_ge_u32 s{S_WAVE}, 4")
        a.settle()
        a("s_cbranch_scc1 L_ylast")
        snap = a.snapshot()
        keep = list(ops)
        o_loads()
        m_reads()
        some(64)
        a.settle()
        a("s_branch L_ojoin")
        a.label("L_ylast")
        a.restore(snap)
        ops[:] = keep
        m_reads()
        a("s_setprio 1")
        some(OPT.get("yo", 64))
        a("s_setprio 0")
        o_loads()
        some(64 - OPT.get("yo", 64))
        a.settle()
        a.label("L_ojoin")
    else:
        o_loads()
        m_reads()
        some(64)
    stamp(a, 23)

    def wo_mm(i, u):
        acc = vr(SA + 16 * u, 16)
        a(f"v_mfma_f32_32x32x16_bf16 {acc}, {vr(wo_reg(2 * i + u), 4)}, {vr(OF + 4 * i, 4)}, {'0' if i == 0 else acc}")

    def s_write(u, q):
        ad = f"v{SAD[4 * u + q]}"
        a(f"ds_write_b128 {ad}, {vr(SA + 16 * u + 4 * q, 4)}")

    def contract(fill):
        for i in range(8):
            for u in range(2):
                wo_mm(i, u)
                o = OF + 4 * i + 2 * u
                a(f"v_max3_u32 v103, v{o}, v{o + 1}, {'v103' if (i or u) else '0'}")
                some(fill)
        a("v_cmp_eq_u32 vcc, -1, v103")

    contract(OPT.get("gf", 4))
    some(len(ops))
    a("s_cmp_lg_u64 vcc, 0")
    a.settle()
    a("s_cbranch_scc1 L_refetch")
    a.label("L_fetched")
    stamp(a, 24)
    if SB:
        for u in range(2):
            for g in range(2):
                d = 48 + 8 * u + 4 * g
                for r in range(4):
                    s0 = SA + 16 * u + 8 * g + 2 * r
                    a(f"v_cvt_pk_bf16_f32 v{d + r}, v{s0}, v{s0 + 1}")
                a(f"ds_write_b128 v{1 + 2 * u + g}, {vr(d, 4)}")
    else:
        for u in range(2):
            for q in range(4):
                s_write(u, q)
    a.wait_all(vm=False)
    stamp(a)
    a("s_barrier")
    if SB:
        for kq in range(4):
            a(f"ds_read_b128 {vr(104 + 4 * kq, 4)}, v7 offset:{kq * 8192}")
        for kq in range(4):
            for r in range(4):
                a(f"v_lshlrev_b32 v{R + 8 * kq + 2 * r}, 16, v{104 + 4 * kq + r}")
                a(f"v_and_b32 v{R + 8 * kq + 2 * r + 1}, 0xffff0000, v{104 + 4 * kq + r}")
    for kq in range(4):
        for i in range(0 if SB else 2):
            a(f"ds_read_b128 {vr(R + 8 * kq + 4 * i, 4)}, v{(250, 6)[i]} offset:{kq * 16384}")
    for kq in range(1, 4):
        for r in range(8):
            a(f"v_add_f32 v{R + r}, v{R + r}, v{R + 8 * kq + r}")
    for r in range(8):
        a(f"v_fmac_f32 v{XF + r}, v{R + r}, v{G + r}")
    for r in range(4):
        a(f"v_cvt_pk_bf16_f32 v{XR + r}, v{XF + 2 * r}, v{XF + 2 * r + 1}")
    a(f"buffer_store_dwordx4 {vr(XR, 4)}, v251, {sr(SOUT, 4)}, s12 offen {('', 'sc1', 'nt', 'sc0 sc1')[OPT.get('om', 0)]}")
    a(f"s_or_b32 s14, s2, s{S_WAVE}")
    a("s_cmp_lg_u32 s14, 0")
    a("s_cbranch_scc1 L_notag")
    a(f"s_mov_b32 s14, {WS_E}")
    flag_store(a, "s14", 101)
    a.label("L_notag")
    if STAMPS:
        a.wait_all()
        stamp_flush(a)
    a("s_endpgm")

    a.label("L_refetch")
    a.reset_state()
    stamp(a, 25)
    a("s_mov_b32 s86, 0")
    a.label("L_refetch_loop")
    o_loads()
    contract(0)
    a("s_add_u32 s86, s86, 1")
    a(f"s_cmp_ge_u32 s86, {SPIN_LIMIT}")
    a("s_cselect_b64 vcc, 0, vcc")
    a("s_cmp_lg_u64 vcc, 0")
    a.settle()
    a("s_cbranch_scc1 L_refetch_loop")
    a("s_branch L_fetched")

    a.label("L_spin2")
    a.reset_state()
    spin(a, "L_poll2", poll2_issue, 102, 1)
    a("s_branch L_spin2_ret")

    a.label("L_slow")
    a.reset_state()
    QS, C0 = S0 + 28, O0 + 16
    a("v_and_b32 v6, 15, v0")
    a("v_lshrrev_b32 v7, 5, v0")
    a("v_lshlrev_b32 v6, 4, v6")
    a("v_lshl_add_u32 v6, v7, 8, v6")
    a("v_mov_b32 v101, 0xff800000")
    a("s_mov_b32 s74, 0")
    a.settle()
    a.label("L_p1")
    a(f"s_add_u32 s75, s74, {WS_KF}")
    a(f"buffer_load_dwordx4 {vr(KR, 4)}, v5, {sr(SWS, 4)}, s75 offen sc1")
    a(f"v_mfma_f32_32x32x16_bf16 {vr(S0, 16)}, {vr(KR, 4)}, {vr(QS, 4)}, 0")
    for r in range(8):
        a(f"v_max3_f32 v101, v{S0 + 2 * r}, v{S0 + 2 * r + 1}, v101")
    a("s_add_u32 s74, s74, 1024")
    a("s_cmp_lt_u32 s74, 65536")
    a.settle()
    a("s_cbranch_scc1 L_p1")
    a("v_mov_b32 v102, v101")
    a("v_permlane32_swap_b32 v101, v102")
    a("v_max_f32 v101, v101, v102")
    for r in range(16):
        a(f"v_sub_f32 v{C0 + r}, 0, v101")
        a(f"v_mov_b32 v{O0 + r}, 0")
    for r in range(8):
        a(f"v_mov_b32 v{V0R + r}, 0x3f803f80")
    a("s_mov_b32 s74, 0")
    a("s_mov_b32 s14, 0x0000ffff")
    a("s_mov_b32 s15, 0x0000ffff")
    a.settle()
    a.label("L_p2")
    a(f"s_add_u32 s75, s74, {WS_KF}")
    a(f"buffer_load_dwordx4 {vr(KR, 4)}, v5, {sr(SWS, 4)}, s75 offen sc1")
    a(f"s_add_u32 s75, s74, {WS_VF}")
    a("s_mov_b64 exec, s[14:15]")
    a(f"buffer_load_dwordx4 {vr(V0R, 4)}, v6, {sr(SWS, 4)}, s75 offen sc1")
    a(f"buffer_load_dwordx4 {vr(V1R, 4)}, v6, {sr(SWS, 4)}, s75 offen offset:512 sc1")
    a("s_mov_b64 exec, -1")
    a(f"v_mfma_f32_32x32x16_bf16 {vr(S0, 16)}, {vr(KR, 4)}, {vr(QS, 4)}, {vr(C0, 16)}")
    ex(0, 0, 16, False)
    smf(0, 0)
    smf(0, 1)
    a("s_add_u32 s74, s74, 1024")
    a("s_cmp_lt_u32 s74, 65536")
    a.wait_all()
    a.settle()
    a("s_cbranch_scc1 L_p2")
    a("s_branch L_fin")


def descriptor(name):
    return f""".section .rodata,"a"
.p2align 6
.amdhsa_kernel {name}
  .amdhsa_next_free_vgpr 256
  .amdhsa_next_free_sgpr 96
  .amdhsa_accum_offset 256
  .amdhsa_group_segment_fixed_size 0
  .amdhsa_kernarg_size 104
  .amdhsa_user_sgpr_count 2
  .amdhsa_user_sgpr_kernarg_segment_ptr 1
  .amdhsa_system_sgpr_workgroup_id_x 1
  .amdhsa_float_denorm_mode_32 3
.end_amdhsa_kernel
"""


def main(out):
    a = Asm()
    hdr = open("cdna_kernels/" + NAME + ".s.ref").read().split("; Override launch")[0]
    a.raw(hdr.rstrip())
    a.raw("; @launch grid=(256,1,1) block=(512,1,1) lds=163840")
    a.raw('.amdgcn_target "amdgcn-amd-amdhsa--gfx950"\n.text')
    gen(a)
    a.raw(descriptor(KN))
    open(out, "w").write(a.text())
    print("written", out, "nop states", a.nops, "stamps", _stamp["n"])


if __name__ == "__main__":
    STAMPS = len(sys.argv) > 2 and sys.argv[2] in "12"
    LIGHT = len(sys.argv) > 2 and sys.argv[2] == "2"
    for kv in sys.argv[3:]:
        k_, v_ = kv.split("=")
        OPT[k_] = int(v_)
    main(sys.argv[1])
```
